```python
import torch

def _softmax(x, axis=-1):
    return torch.softmax(x, dim=axis)
def _gelu(x):
    return torch.nn.functional.gelu(x, approximate="tanh")
def _silu(x):
    return torch.nn.functional.silu(x)
def _sigmoid(x):
    return torch.sigmoid(x)
def _layernorm(x, axis=-1, eps=1e-5):
    m = x.mean(dim=axis, keepdim=True)
    v = x.var(dim=axis, keepdim=True, unbiased=False)
    return (x - m) / torch.sqrt(v + eps)
def _scatter_add(tgt, idx, src, axis=0):
    return tgt.clone().index_add_(axis, idx, src)
def _segment_sum(src, seg, n):
    out = torch.zeros((n,) + src.shape[1:], dtype=src.dtype)
    return out.index_add_(0, seg, src)
def _pad(x, pw):
    flat = tuple(v for pair in reversed(pw) for v in pair)
    return torch.nn.functional.pad(x, flat)

kernel_name = 'concat_heads__sliding_block_cached__mha_block_cached__decode'

def setup_inputs():

    _w = (lambda a: (lambda t: t.to(torch.bfloat16) if t.is_floating_point() else t)(torch.as_tensor(a)))
    def _A_setup():
        B, Sq, D = 2, 1, 512
        Hq, Hkv, Sk, Dh = 32, 8, 8192, 128
        assert Hq % Hkv == 0, (Hq, Hkv)
        return {
            "x": _w((lambda *s: torch.randn(*s, dtype=torch.bfloat16) * 0.8)(B, Sq, D)),
            "k_cache": _w((lambda *s: torch.randn(*s, dtype=torch.bfloat16) * 1.6)(B, Hkv, Sk, Dh)),
            "v_cache": _w((lambda *s: torch.randn(*s, dtype=torch.bfloat16) * 0.2)(B, Hkv, Sk, Dh)),
            "wq": _w((lambda *s: torch.randn(*s, dtype=torch.bfloat16) * 1.6)(D, Hq * Dh) * (D ** -0.5)),
            "wo": _w((lambda *s: torch.randn(*s, dtype=torch.bfloat16) * 0.2)(Hq * Dh, D) * ((Hq * Dh) ** -0.5)),
        }
    _A_in = _A_setup()

    def _B_setup():
        B, Sq, D = 2, 1, 512
        H, Sk, Dh = 32, 8192, 128
        return {
            "x": _w((lambda *s: torch.randn(*s, dtype=torch.bfloat16) * 0.8)(B, Sq, D)),
            "k_cache": _w((lambda *s: torch.randn(*s, dtype=torch.bfloat16) * 1.6)(B, H, Sk, Dh)),
            "v_cache": _w((lambda *s: torch.randn(*s, dtype=torch.bfloat16) * 0.2)(B, H, Sk, Dh)),
            "wq": _w((lambda *s: torch.randn(*s, dtype=torch.bfloat16) * 1.6)(D, H * Dh) * (D ** -0.5)),
            "wo": _w((lambda *s: torch.randn(*s, dtype=torch.bfloat16) * 0.2)(H * Dh, D) * ((H * Dh) ** -0.5)),
        }
    _B_in = _B_setup()

    return {
        "A_x": _A_in["x"],
        "A_k_cache": _A_in["k_cache"],
        "A_v_cache": _A_in["v_cache"],
        "A_wq": _A_in["wq"],
        "A_wo": _A_in["wo"],
        "B_x": _B_in["x"],
        "B_k_cache": _B_in["k_cache"],
        "B_v_cache": _B_in["v_cache"],
        "B_wq": _B_in["wq"],
        "B_wo": _B_in["wo"],
    }

def reference(A_x, A_k_cache, A_v_cache, A_wq, A_wo, B_x, B_k_cache, B_v_cache, B_wq, B_wo):
    def _A_ref(x, k_cache, v_cache, wq, wo):
        B, Sq, D = x.shape
        Hq, Dh = 32, 128
        Hkv, Sk = k_cache.shape[1], k_cache.shape[2]
        W = min(4096, max(256, Sk // 4))
        rep = Hq // Hkv
        q = (lambda x, *d: x.permute(*d))((x @ wq).reshape(B, Sq, Hq, Dh), 0, 2, 1, 3)
        k = (lambda x, n, axis: torch.repeat_interleave(x, n, dim=axis))(k_cache[:, :, Sk - W:, :], rep, axis=1)
        v = (lambda x, n, axis: torch.repeat_interleave(x, n, dim=axis))(v_cache[:, :, Sk - W:, :], rep, axis=1)
        scores = torch.einsum("bhqd,bhkd->bhqk", q, k) * (Dh ** -0.5)
        p = _softmax(scores, axis=-1)
        o = torch.einsum("bhqk,bhkd->bhqd", p, v)
        return (lambda x, *d: x.permute(*d))(o, 0, 2, 1, 3).reshape(B, Sq, Hq * Dh) @ wo

    def _B_ref(x, k_cache, v_cache, wq, wo):
        B, Sq, D = x.shape
        H, Dh = 32, 128
        q = (lambda x, *d: x.permute(*d))((x @ wq).reshape(B, Sq, H, Dh), 0, 2, 1, 3)
        scores = torch.einsum("bhqd,bhkd->bhqk", q, k_cache) * (Dh ** -0.5)
        p = _softmax(scores, axis=-1)
        o = torch.einsum("bhqk,bhkd->bhqd", p, v_cache)
        return (lambda x, *d: x.permute(*d))(o, 0, 2, 1, 3).reshape(B, Sq, H * Dh) @ wo

    a = _A_ref(A_x, A_k_cache, A_v_cache, A_wq, A_wo)
    b = _B_ref(B_x, B_k_cache, B_v_cache, B_wq, B_wo)
    return torch.concatenate([a, b], axis=-1)
```

```python
import re

def _regs(tok, kind):
    tok = tok.strip()
    m = re.fullmatch(r'-?\|?%s(\d+)\|?' % kind, tok)
    if m: return [int(m.group(1))]
    m = re.fullmatch(r'%s\[(\d+):(\d+)\]' % kind, tok)
    if m: return list(range(int(m.group(1)), int(m.group(2)) + 1))
    return []

TRANS = ('v_exp_f32', 'v_rcp_f32', 'v_log_f32', 'v_rsq_f32', 'v_sqrt_f32')

class Ins:
    def __init__(self, text):
        self.text = text
        t = text.split(';')[0].strip()
        self.op = t.split()[0] if t else ''
        rest = t[len(self.op):].strip()
        ops = []; depth = 0; cur = ''
        for ch in rest:
            if ch == '[': depth += 1
            if ch == ']': depth -= 1
            if ch == ',' and depth == 0:
                ops.append(cur.strip()); cur = ''
            else: cur += ch
        if cur.strip(): ops.append(cur.strip())
        self.mods = ''
        if ops:
            parts = ops[-1].split(None, 1)
            ops[-1] = parts[0]
            if len(parts) > 1: self.mods = parts[1]
        self.ops = ops
        op = self.op
        self.is_valu = op.startswith('v_')
        self.is_vmem = op.startswith('buffer_') or op.startswith('global_')
        self.is_ds = op.startswith('ds_')
        self.is_salu = op.startswith('s_')
        self.dpp = op.endswith('_dpp')
        self.base = op[:-4] if self.dpp else op
        self.base = re.sub(r'_e(32|64)$', '', self.base)
        self.is_dot = self.base.startswith('v_dot')
        self.is_trans = self.base in TRANS
        self.is_perm = self.base.startswith('v_permlane')
        self.vw = set(); self.vr = set(); self.sw = set(); self.sr = set(); self.dppr = set(); self.srcc = set()
        def V(t): return set(_regs(t, 'v'))
        def S(t):
            if t == 'vcc': return {'vcc'}
            if t == 'exec': return {'exec'}
            return set(_regs(t, 's'))
        if self.is_valu:
            if self.base.startswith('v_cmp'):
                self.sw |= S(ops[0])
                for o in ops[1:]: self.vr |= V(o); self.sr |= S(o)
            elif self.base in ('v_readfirstlane_b32', 'v_readlane_b32'):
                self.sw |= S(ops[0])
                for o in ops[1:]: self.vr |= V(o); self.sr |= S(o)
            elif self.is_perm:
                self.vw |= V(ops[0]) | V(ops[1]); self.vr |= V(ops[0]) | V(ops[1])
            else:
                self.vw |= V(ops[0])
                for o in ops[1:]: self.vr |= V(o); self.sr |= S(o)
                if self.base in ('v_dot2c_f32_bf16', 'v_fmac_f32'):
                    self.srcc |= V(ops[0])
                if self.base == 'v_dot2_f32_bf16':
                    self.srcc |= V(ops[3]); self.vr = V(ops[1]) | V(ops[2])
                if self.dpp:
                    self.dppr |= V(ops[1])
                    self.vr |= V(ops[0])
        elif self.is_vmem:
            if 'load' in op:
                self.vw |= V(ops[0])
                for o in ops[1:]: self.vr |= V(o); self.sr |= S(o)
            else:
                for o in ops: self.vr |= V(o); self.sr |= S(o)
            self.wide_store = ('store' in op) and (op.endswith('x4') or op.endswith('x3'))
            self.store_data = V(ops[0]) if 'store' in op else set()
        elif self.is_ds:
            if 'read' in op:
                self.vw |= V(ops[0])
                for o in ops[1:]: self.vr |= V(o)
            else:
                for o in ops: self.vr |= V(o)
    def states(self):
        if self.op == 's_nop': return int(self.ops[0]) + 1
        return 1

def need(prod, cons):
    n = 0
    if prod.is_valu:
        if cons.is_valu:
            if prod.vw & cons.dppr: n = max(n, 2)
            if cons.is_perm and (prod.vw & cons.vr): n = max(n, 2)
            if prod.is_trans and not cons.is_trans and (prod.vw & (cons.vr | cons.srcc)): n = max(n, 1)
            if cons.base in ('v_readfirstlane_b32', 'v_readlane_b32') and (prod.vw & cons.vr): n = max(n, 1)
            if prod.sw & cons.sr: n = max(n, 4 if cons.base == 'v_readlane_b32' else 2)
            if prod.is_dot:
                if cons.base == prod.base:
                    r = cons.vr - (cons.srcc if cons.base == 'v_dot2c_f32_bf16' else set())
                    if prod.vw & r: n = max(n, 3)
                elif prod.vw & (cons.vr | cons.vw | cons.srcc): n = max(n, 3)
        if (cons.is_vmem or cons.is_ds) and prod.is_dot and (prod.vw & (cons.vr | cons.vw)): n = max(n, 3)
        if cons.is_vmem and (prod.sw & cons.sr): n = max(n, 5)
        if cons.is_salu and prod.sw:
            for r in prod.sw:
                nm = r if isinstance(r, str) else None
                if nm and nm in cons.text: n = max(n, 1)
                elif not nm and any(r in _regs(o, 's') for o in cons.ops): n = max(n, 1)
    if prod.is_vmem and getattr(prod, 'wide_store', False):
        if cons.vw & prod.store_data: n = max(n, 2)
    return n

class Asm:
    def __init__(self):
        self.lines = []
        self.hist = []
        self.nops = 0
    def raw(self, s):
        self.lines.append(s)
    def label(self, name):
        self.lines.append(f"{name}:")
    def flush_hazards(self):
        self('s_nop 4')
    def __call__(self, text):
        ins = Ins(text)
        dist = 0; req = 0
        for p in reversed(self.hist[-8:]):
            n = need(p, ins)
            if n - dist > req: req = n - dist
            dist += p.states()
            if dist >= 6: break
        if req > 0:
            nop = Ins(f"s_nop {req - 1}")
            self.lines.append("  " + nop.text); self.hist.append(nop); self.nops += 1
        self.lines.append("  " + text)
        self.hist.append(ins)
    def text(self):
        return "\n".join(self.lines) + "\n"
```

```python
import sys, json
from asmlib import Asm

NAME = "concat_heads__sliding_block_cached__mha_block_cached__decode_kernel"
HEADER = open("concat_heads__sliding_block_cached__mha_block_cached__decode.s.ref").read().split("; Override launch")[0]

DPPF = "row_mask:0xf bank_mask:0xf"

def gen(dmin=12, burst=4, stamps=False, pol="nt", shpol="nt", order="spread", decay=0.5):
    a = Asm()
    S_WG = 2
    sW = 3
    PT = 8
    srd = {}
    names = ["xA", "kA", "vA", "wqA", "woA", "xB", "kB", "vB", "wqB", "woB", "out", "dbg", "ws"]
    sizes = {"xA": 2048, "kA": 32 << 20, "vA": 32 << 20, "wqA": 4 << 20, "woA": 4 << 20,
             "xB": 2048, "kB": 128 << 20, "vB": 128 << 20, "wqB": 4 << 20, "woB": 4 << 20,
             "out": 4096, "dbg": 256, "ws": 2 << 20}
    for i, n in enumerate(names):
        srd[n] = 36 + 4 * i
    def SRD(n): return f"s[{srd[n]}:{srd[n]+3}]"
    def build(n):
        i = names.index(n); r = srd[n]
        a(f"s_mov_b32 s{r}, s{PT+2*i}"); a(f"s_mov_b32 s{r+1}, s{PT+2*i+1}")
        a(f"s_mov_b32 s{r+2}, {hex(sizes[n])}"); a(f"s_mov_b32 s{r+3}, 0x20000")
    sH, sB, sS = 4, 5, 6
    sT = 7
    sKB, sKA, sWQ, sWO = 88, 89, 90, 91
    sOFF = 92
    sBOX = 93
    sM1, sM0 = 94, 96
    sSC, sL2E = 98, 99
    sT2 = 100; sCNT = 101
    sST = 34
    vLane, vL16, vWq, vWo = 0, 1, 2, 3
    vPW = 4
    vT = list(range(5, 13))
    vMA, vMB = 13, 14
    vRdy = 15
    qB = list(range(16, 20)); qA = list(range(20, 24))
    accB = list(range(24, 32)); accX = list(range(32, 40))
    partB = list(range(40, 56)); partA = list(range(56, 72))
    PB = list(range(72, 80))
    PA = [80, 81]; XB = [82, 83]; XA = [84, 85]
    vMl = 86; vY = 87
    RING0 = 88
    NS = (256 - RING0) // 4
    L_QB, L_QA, L_OA, L_OB = 0, 4096, 8192, 12288
    L_YA, L_YB = 16384, 20480
    L_MX = 24576
    L_LS = 24576 + 64
    L_RED = 24576 + 256
    LDS = 24576 + 256 + 1024

    a.raw(HEADER.rstrip("\n"))
    a.raw(f"; @launch grid=(256,1,1) block=(512,1,1) lds={LDS}")
    a.raw('.amdgcn_target "amdgcn-amd-amdhsa--gfx950"')
    a.raw(".text"); a.raw(f".globl {NAME}"); a.raw(".p2align 8"); a.raw(f".type {NAME},@function")
    a.label(NAME)
    a("s_cmp_ge_u32 s2, 256")
    a("s_cbranch_scc1 L_end")
    a(f"s_load_dwordx16 s[{PT}:{PT+15}], s[0:1], 0")
    a(f"s_load_dwordx8 s[{PT+16}:{PT+23}], s[0:1], 64")
    a(f"s_load_dwordx2 s[{PT+24}:{PT+25}], s[0:1], 96")
    if stamps: a(f"s_memrealtime s[{sST}:{sST+1}]")
    a("v_lshrrev_b32 v1, 6, v0")
    a("v_and_b32 v0, 63, v0")
    a(f"v_readfirstlane_b32 s{sW}, v1")
    a(f"s_and_b32 s{sT}, s2, 7")
    a(f"s_lshr_b32 s{sT2}, s2, 3")
    a(f"s_lshr_b32 s{sH}, s{sT2}, 3")
    a(f"s_lshl_b32 s{sB}, s{sT}, 2")
    a(f"s_add_u32 s{sH}, s{sH}, s{sB}")
    a(f"s_bfe_u32 s{sB}, s{sT2}, 0x10002")
    a(f"s_and_b32 s{sS}, s{sT2}, 3")
    a("v_lshrrev_b32 v5, 4, v0")
    a("v_and_b32 v6, 15, v0")
    a(f"v_lshlrev_b32 v{vL16}, 4, v0")
    a("v_lshlrev_b32 v7, 4, v6")
    a(f"v_lshl_add_u32 v{vWq}, v5, 13, v7")
    a(f"v_lshl_add_u32 v{vWo}, v5, 10, v7")
    a("v_lshl_add_u32 v8, v6, 2, v5")
    a("v_lshlrev_b32 v8, 1, v8")
    a(f"s_lshl_b32 s{sKB}, s{sB}, 5"); a(f"s_add_u32 s{sKB}, s{sKB}, s{sH}")
    a(f"s_lshl_b32 s{sKB}, s{sKB}, 2"); a(f"s_add_u32 s{sKB}, s{sKB}, s{sS}")
    a(f"s_lshl_b32 s{sBOX}, s{sKB}, 11")
    a(f"s_lshl_b32 s{sKB}, s{sKB}, 19")
    a(f"s_lshl_b32 s{sT2}, s{sW}, 10")
    a(f"s_add_u32 s{sKB}, s{sKB}, s{sT2}")
    a(f"s_lshl_b32 s{sKA}, s{sB}, 3"); a(f"s_add_u32 s{sKA}, s{sKA}, s{sT}")
    a(f"s_lshl_b32 s{sKA}, s{sKA}, 4"); a(f"s_add_u32 s{sKA}, s{sKA}, s{sS}"); a(f"s_add_u32 s{sKA}, s{sKA}, 12")
    a(f"s_lshl_b32 s{sKA}, s{sKA}, 17")
    a(f"s_add_u32 s{sKA}, s{sKA}, s{sT2}")
    a(f"s_lshl_b32 s{sWQ}, s{sW}, 19"); a(f"s_lshl_b32 s{sT2}, s{sH}, 8"); a(f"s_add_u32 s{sWQ}, s{sWQ}, s{sT2}")
    a(f"s_lshl_b32 s{sOFF}, s{sB}, 10"); a(f"s_lshl_b32 s{sT2}, s{sW}, 7"); a(f"s_add_u32 s{sOFF}, s{sOFF}, s{sT2}")
    a("s_waitcnt lgkmcnt(0)")
    build("xB"); build("wqB"); build("kB")

    vm = {"n": 0}
    done = {"upto": 0}
    def vmem(text):
        a(text); vm["n"] += 1; return vm["n"] - 1
    def wait_for(idx):
        if idx < done["upto"]: return
        n = vm["n"] - 1 - idx
        assert n <= 63
        a(f"s_waitcnt vmcnt({n})")
        done["upto"] = idx + 1

    ixB = vmem(f"buffer_load_ushort v{XB[0]}, v8, {SRD('xB')}, s{sOFF} offen")

    P = [("kB", i) for i in range(64)] + [("vB", i) for i in range(64)]
    S = [(n, i) for n in ("wqB", "wqA", "kA", "vA", "woA", "woB") for i in range(16)]
    issue = []
    if order == "spread":
        k = 0
        for i, e in enumerate(P):
            while k < len(S) and k * len(P) <= i * len(S):
                issue.append(S[k]); k += 1
            issue.append(e)
        issue += S[k:]
    pos = {e: i for i, e in enumerate(issue)}
    free = list(range(NS))
    slot = {}; vidx = {}
    st = {"ip": 0, "tgt": 0.0}
    built = {"xB", "wqB", "kB"}
    def issue_one():
        e = issue[st["ip"]]; n, i = e
        if n not in built:
            build(n); built.add(n)
        s = free.pop(0); slot[e] = s
        r = RING0 + 4 * s
        if n in ("kB", "vB"): base, off, va, pl = sKB, i * 8192, vL16, pol
        elif n in ("kA", "vA"): base, off, va, pl = sKA, i * 8192, vL16, shpol
        elif n in ("wqB", "wqA"): base, off, va, pl = sWQ, i * 32768, vWq, shpol
        else: base, off, va, pl = sWO, i * 4096, vWo, shpol
        if off:
            a(f"s_add_u32 s{sOFF}, s{base}, {off}"); so = sOFF
        else: so = base
        vidx[e] = vmem(f"buffer_load_dwordx4 v[{r}:{r+3}], v{va}, {SRD(n)}, s{so} offen {pl}")
        st["ip"] += 1
    def issue_upto(t):
        while st["ip"] <= t and st["ip"] < len(issue) and free:
            issue_one()
    def release(e):
        free.append(slot.pop(e))

    def zero(regs):
        for r in regs: a(f"v_mov_b32 v{r}, 0")
    def vlike(e, acc, plo, phi, lane):
        r = RING0 + 4 * slot[e]
        wait_for(vidx[e])
        for k in range(4):
            a(f"v_dot2c_f32_bf16_dpp v{acc[2*k]}, v{plo}, v{r+k} row_newbcast:{lane} {DPPF}")
            a(f"v_dot2c_f32_bf16_dpp v{acc[2*k+1]}, v{phi}, v{r+k} row_newbcast:{lane} {DPPF}")
        release(e)
    def klike(e, q, dst):
        r = RING0 + 4 * slot[e]
        wait_for(vidx[e])
        a(f"v_dot2_f32_bf16 v{dst}, v{r}, v{q[0]}, 0")
        for k in range(1, 4):
            a(f"v_dot2_f32_bf16 v{dst}, v{r+k}, v{q[k]}, v{dst}")
        release(e)
    def reduce_scatter16(r, dst):
        for i in range(8): a(f"v_add_f32_dpp v{r[i]}, v{r[i]}, v{r[i]} row_ror:8 row_mask:0xf bank_mask:0x3")
        for i in range(8): a(f"v_add_f32_dpp v{r[i]}, v{r[i+8]}, v{r[i+8]} row_ror:8 row_mask:0xf bank_mask:0xc")
        for i in range(4): a(f"v_add_f32_dpp v{r[i]}, v{r[i]}, v{r[i]} row_half_mirror row_mask:0xf bank_mask:0x5")
        for i in range(4): a(f"v_add_f32_dpp v{r[i]}, v{r[i+4]}, v{r[i+4]} row_half_mirror row_mask:0xf bank_mask:0xa")
        for i in range(4): a(f"v_add_f32_dpp v{r[i]}, v{r[i]}, v{r[i]} quad_perm:[2,3,0,1] {DPPF}")
        a(f"v_cndmask_b32 v{r[0]}, v{r[0]}, v{r[2]}, s[{sM1}:{sM1+1}]")
        a(f"v_cndmask_b32 v{r[1]}, v{r[1]}, v{r[3]}, s[{sM1}:{sM1+1}]")
        for i in range(2): a(f"v_add_f32_dpp v{r[i]}, v{r[i]}, v{r[i]} quad_perm:[1,0,3,2] {DPPF}")
        a(f"v_cndmask_b32 v{dst}, v{r[0]}, v{r[1]}, s[{sM0}:{sM0+1}]")
        a(f"v_cvt_pk_bf16_f32 v{dst}, 0, v{dst}")
        a(f"v_mul_f32 v{dst}, s{sSC}, v{dst}")
        a(f"v_cvt_pk_bf16_f32 v{dst}, 0, v{dst}")
    def rowsum8(acc):
        for k in range(4): a(f"v_permlane16_swap_b32 v{acc[k]}, v{acc[k+4]}")
        for k in range(4): a(f"v_add_f32 v{acc[k]}, v{acc[k]}, v{acc[k+4]}")
        for k in range(2): a(f"v_permlane32_swap_b32 v{acc[k]}, v{acc[k+2]}")
        for k in range(2): a(f"v_add_f32 v{acc[k]}, v{acc[k]}, v{acc[k+2]}")
    def allreduce(op, regs, tmps):
        for sh in (8, 4, 2, 1):
            for r in regs: a(f"{op}_dpp v{r}, v{r}, v{r} row_ror:{sh} {DPPF}")
        for pl in ("v_permlane16_swap_b32", "v_permlane32_swap_b32"):
            for r, t in zip(regs, tmps): a(f"v_mov_b32 v{t}, v{r}")
            for r, t in zip(regs, tmps): a(f"{pl} v{r}, v{t}")
            for r, t in zip(regs, tmps): a(f"{op} v{r}, v{r}, v{t}")
    def barrier():
        a("s_waitcnt lgkmcnt(0)"); a("s_barrier")
    def grab(n):
        sl = [free.pop() for _ in range(n)]
        return sl
    def ungrab(sl):
        free.extend(sl)

    def part_write(acc, lbase):
        rowsum8(acc)
        a(f"ds_write_b64 v{vPW}, v[{acc[0]}:{acc[1]}] offset:{lbase}")
    def q_read(lbase, tmp):
        a("v_lshrrev_b32 v5, 4, v0"); a("v_and_b32 v6, 15, v0")
        a("v_lshlrev_b32 v6, 5, v6"); a("v_lshl_add_u32 v5, v5, 3, v6")
        for w in range(8): a(f"ds_read_b64 v[{tmp[2*w]}:{tmp[2*w+1]}], v5 offset:{lbase + w*512}")
    def q_finish(tmp, q):
        a("s_waitcnt lgkmcnt(0)")
        for st_ in (8, 4, 2):
            for k in range(st_): a(f"v_add_f32 v{tmp[k]}, v{tmp[k]}, v{tmp[k+st_]}")
        a(f"v_cvt_pk_bf16_f32 v{q[0]}, v{tmp[0]}, v{tmp[1]}")
        a(f"v_mov_b32 v{q[1]}, v{q[0]}")
        a(f"v_permlane16_swap_b32 v{q[0]}, v{q[1]}")
        a(f"v_mov_b32 v{q[2]}, v{q[0]}"); a(f"v_mov_b32 v{q[3]}, v{q[1]}")
        a(f"v_permlane32_swap_b32 v{q[0]}, v{q[2]}")
        a(f"v_permlane32_swap_b32 v{q[1]}, v{q[3]}")
    def o_read(lbase, tmp):
        a("v_lshrrev_b32 v5, 4, v0"); a("v_and_b32 v6, 15, v0")
        a("v_lshl_add_u32 v5, v6, 2, v5"); a("v_lshlrev_b32 v5, 2, v5")
        a(f"s_lshr_b32 s{sT}, s{sW}, 2"); a(f"s_lshl_b32 s{sT}, s{sT}, 8"); a(f"s_add_u32 s{sT}, s{sT}, {lbase}")
        a(f"v_add_u32 v5, s{sT}, v5")
        for w in range(4): a(f"ds_read2st64_b32 v[{tmp[2*w]}:{tmp[2*w+1]}], v5 offset0:{4*w} offset1:{4*w+2}")
    def o_finish(tmp, o):
        a("s_waitcnt lgkmcnt(0)")
        for st_ in (4, 2, 1):
            for k in range(st_): a(f"v_add_f32 v{tmp[k]}, v{tmp[k]}, v{tmp[k+st_]}")
        a(f"v_cvt_pk_bf16_f32 v{o[0]}, v{tmp[0]}, 0")
        a(f"v_cvt_pk_bf16_f32 v{o[1]}, 0, v{tmp[0]}")
    def y_read(lbase):
        a(f"v_xor_b32 v5, 0x800, v{vPW}")
        a(f"ds_read_b64 v[6:7], v5 offset:{lbase}")
    def y_finish(acc, br):
        a("s_waitcnt lgkmcnt(0)")
        a(f"v_add_f32 v{acc[0]}, v{acc[0]}, v6"); a(f"v_add_f32 v{acc[1]}, v{acc[1]}, v7")
        a(f"s_add_u32 s{sOFF}, s{sBOX}, {br * 2 * 128 * 2048}")
        vmem(f"buffer_store_dwordx2 v[{acc[0]}:{acc[1]}], v{vY}, {SRD('ws')}, s{sOFF} offen sc1")

    issue_upto(7)
    build("ws"); build("xA"); build("dbg"); built |= {"ws", "xA", "dbg"}
    a(f"s_lshl_b32 s{sT}, s{sB}, 10"); a(f"s_lshl_b32 s{sT2}, s{sW}, 7"); a(f"s_add_u32 s{sT}, s{sT}, s{sT2}")
    ixA = vmem(f"buffer_load_ushort v{XA[0]}, v8, {SRD('xA')}, s{sT} offen")
    a("v_mov_b32 v10, -1"); a("v_mov_b32 v11, -1")
    a("v_lshlrev_b32 v9, 3, v0")
    a(f"s_lshr_b32 s{sT}, s{sW}, 2"); a(f"s_lshl_b32 s{sT}, s{sT}, 19")
    a(f"s_and_b32 s{sT2}, s{sW}, 3"); a(f"s_lshl_b32 s{sT2}, s{sT2}, 9")
    a(f"s_add_u32 s{sT}, s{sT}, s{sT2}"); a(f"s_add_u32 s{sT}, s{sT}, s{sBOX}")
    vmem(f"buffer_store_dwordx2 v[10:11], v9, {SRD('ws')}, s{sT} offen sc1")
    a(f"s_lshr_b32 s{sT}, s{sBOX}, 8"); a(f"s_add_u32 s{sT}, s{sT}, 0x100000")
    a(f"s_cmp_eq_u32 s{sW}, 0"); a(f"s_cselect_b32 s{sT}, s{sT}, 0x40000000")
    a(f"v_lshlrev_b32 v9, 11, v0"); a(f"v_add_u32 v{vMl}, s{sT}, v9")
    a("v_cmp_gt_u32 vcc, 2, v0"); a("v_mov_b32 v9, 0x40000000")
    a(f"v_cndmask_b32 v{vMl}, v9, v{vMl}, vcc")
    vmem(f"buffer_store_dwordx2 v[10:11], v{vMl}, {SRD('ws')}, 0 offen sc1")
    a("v_lshrrev_b32 v5, 4, v0"); a("v_and_b32 v6, 15, v0")
    a("v_and_b32 v7, 1, v5"); a("v_lshlrev_b32 v7, 2, v7"); a("v_and_b32 v5, 2, v5"); a("v_or_b32 v5, v5, v7")
    a("v_lshl_add_u32 v5, v6, 3, v5"); a("v_lshlrev_b32 v5, 2, v5")
    a(f"s_lshl_b32 s{sT}, s{sW}, 9")
    a(f"v_add_u32 v{vPW}, s{sT}, v5")
    a(f"s_cmp_lt_u32 s{sW}, 4"); a(f"s_cselect_b32 s{sT}, s{sT}, 0x40000000")
    a(f"v_add_u32 v{vY}, s{sT}, v5")
    a(f"s_lshl_b32 s{sWO}, s{sH}, 17"); a(f"s_lshr_b32 s{sT}, s{sW}, 2"); a(f"s_lshl_b32 s{sT}, s{sT}, 16")
    a(f"s_add_u32 s{sWO}, s{sWO}, s{sT}"); a(f"s_and_b32 s{sT}, s{sW}, 3"); a(f"s_lshl_b32 s{sT}, s{sT}, 8")
    a(f"s_add_u32 s{sWO}, s{sWO}, s{sT}")
    a(f"s_mov_b32 s{sM1}, 0xcccccccc"); a(f"s_mov_b32 s{sM1+1}, 0xcccccccc")
    a(f"s_mov_b32 s{sM0}, 0xaaaaaaaa"); a(f"s_mov_b32 s{sM0+1}, 0xaaaaaaaa")
    a(f"s_mov_b32 s{sSC}, 0x3db504f3"); a(f"s_mov_b32 s{sL2E}, 0x3fb8aa3b")
    zero(accX)
    issue_upto(NS - 1)
    wait_for(ixB)
    a(f"v_lshlrev_b32 v{XB[1]}, 16, v{XB[0]}")

    steps = []
    ready = {"wqB": True, "wqA": True, "kB": False, "kA": False, "vA": False, "vB": False, "woA": False, "woB": False}
    pending = []
    cnt = {n: 0 for n in ready}
    tot = {"kB": 64, "vB": 64}
    def push(e):
        steps.append(("c", e)); cnt[e[0]] += 1
    def drain():
        nonlocal pending
        again = True
        while again:
            again = False
            for e in list(pending):
                if ready[e[0]]:
                    pending.remove(e); push(e); post(e); again = True; break
    def post(e):
        n, i = e
        last = cnt[n] == tot.get(n, 16)
        if n in ("kB", "kA") and i % 16 == 15: steps.append(("rs", n, i // 16))
        if not last: return
        if n == "wqB": steps.append(("op", "qB")); ready["kB"] = True
        if n == "wqA": steps.append(("op", "qA")); ready["kA"] = True
        if n in ("kA", "kB") and cnt["kA"] == 16 and cnt["kB"] == 64:
            steps.append(("op", "max")); ready["vA"] = ready["vB"] = True
        if n == "vA": steps.append(("op", "oA")); ready["woA"] = True
        if n == "woA": steps.append(("op", "yA"))
        if n == "vB": steps.append(("op", "oB")); ready["woB"] = True
        if n == "woB": steps.append(("op", "yB"))
    for e in issue:
        if ready[e[0]] and not any(p[0] == e[0] for p in pending):
            push(e); post(e); drain()
        else:
            pending.append(e)
    drain()
    assert not pending

    st["tgt"] = float(st["ip"] - 1)
    irdy = None
    for sidx, s in enumerate(steps):
        if s[0] == "c":
            e = s[1]; n, i = e
            st["tgt"] = max(pos[e] + dmin, st["tgt"] + decay)
            issue_upto(int(st["tgt"]))
            assert e in slot, ("deadlock", e)
            if n == "wqB": vlike(e, accX, XB[0], XB[1], i)
            elif n == "wqA":
                if i == 0:
                    wait_for(ixA); a(f"v_lshlrev_b32 v{XA[1]}, 16, v{XA[0]}")
                vlike(e, accX, XA[0], XA[1], i)
            elif n == "kB": klike(e, qB, partB[i % 16])
            elif n == "kA": klike(e, qA, partA[i])
            elif n == "vA": vlike(e, accX, PA[0], PA[1], i)
            elif n == "vB": vlike(e, accB, PB[2 * (i // 16)], PB[2 * (i // 16) + 1], i % 16)
            elif n == "woA": vlike(e, accX, XA[0], XA[1], i)
            elif n == "woB": vlike(e, accX, XB[0], XB[1], i)
            if n == "vB" and i == 40:
                a("v_and_b32 v5, 7, v0"); a("v_lshlrev_b32 v5, 2, v5")
                irdy = vmem(f"buffer_load_dword v{vRdy}, v5, {SRD('dbg')}, 0 offen sc1")
        elif s[0] == "rs":
            if s[1] == "kB": reduce_scatter16(partB, PB[2 * s[2]])
            else: reduce_scatter16(partA, PA[0])
        else:
            op = s[1]
            def bump():
                st["tgt"] += burst; issue_upto(int(st["tgt"]))
            if op in ("qB", "qA"):
                lb = L_QB if op == "qB" else L_QA
                tmp = partA if op == "qA" else partB
                part_write(accX, lb)
                barrier()
                q_read(lb, tmp)
                if op == "qB":
                    a(f"s_and_b32 s{sT}, s2, 7"); a(f"s_lshl_b32 s{sT}, s{sT}, 2")
                    a(f"s_cmp_eq_u32 s{sW}, 0"); a(f"s_cselect_b32 s{sT}, s{sT}, 0x40000000")
                    a(f"v_lshlrev_b32 v9, 8, v0"); a(f"v_add_u32 v9, s{sT}, v9"); a("v_mov_b32 v10, 1")
                    vmem(f"buffer_atomic_add v10, v9, {SRD('dbg')}, 0 offen sc1")
                bump()
                zero(accX)
                q_finish(tmp, qB if op == "qB" else qA)
            elif op == "max":
                a(f"v_max3_f32 v{vMB}, v{PB[0]}, v{PB[2]}, v{PB[4]}"); a(f"v_max_f32 v{vMB}, v{vMB}, v{PB[6]}")
                a(f"v_mov_b32 v{vMA}, v{PA[0]}")
                allreduce("v_max_f32", [vMA, vMB], [5, 6])
                a(f"s_lshl_b32 s{sT}, s{sW}, 2"); a(f"v_mov_b32 v5, s{sT}")
                a(f"ds_write2_b32 v5, v{vMA}, v{vMB} offset0:{L_MX//4 % 256} offset1:{(L_MX//4 + 8) % 256}") if False else None
                a(f"ds_write_b32 v5, v{vMA} offset:{L_MX}"); a(f"ds_write_b32 v5, v{vMB} offset:{L_MX+32}")
                barrier()
                t = partB
                a("v_mov_b32 v6, 0")
                for k in range(4): a(f"ds_read_b128 v[{t[4*k]}:{t[4*k+3]}], v6 offset:{L_MX + 16*k}")
                bump()
                zero(accB)
                a("s_waitcnt lgkmcnt(0)")
                for m, o in ((vMA, 0), (vMB, 8)):
                    a(f"v_max3_f32 v{m}, v{t[o]}, v{t[o+1]}, v{t[o+2]}")
                    a(f"v_max3_f32 v{m}, v{m}, v{t[o+3]}, v{t[o+4]}")
                    a(f"v_max3_f32 v{m}, v{m}, v{t[o+5]}, v{t[o+6]}")
                    a(f"v_max_f32 v{m}, v{m}, v{t[o+7]}")
                srcs = [(PA[0], PA[1], vMA)] + [(PB[2*r], PB[2*r+1], vMB) for r in range(4)]
                for lo, hi, m in srcs: a(f"v_sub_f32 v{lo}, v{lo}, v{m}")
                for lo, hi, m in srcs: a(f"v_mul_f32 v{lo}, s{sL2E}, v{lo}")
                for lo, hi, m in srcs: a(f"v_exp_f32 v{lo}, v{lo}")
                a(f"v_mov_b32 v7, v{PA[0]}")
                a(f"v_add_f32 v8, v{PB[0]}, v{PB[2]}"); a(f"v_add_f32 v9, v{PB[4]}, v{PB[6]}"); a("v_add_f32 v8, v8, v9")
                for lo, hi, m in srcs: a(f"v_cvt_pk_bf16_f32 v{hi}, 0, v{lo}")
                for lo, hi, m in srcs: a(f"v_cvt_pk_bf16_f32 v{lo}, v{lo}, 0")
                allreduce("v_add_f32", [7, 8], [9, 10])
                a(f"ds_write_b32 v5, v7 offset:{L_LS}"); a(f"ds_write_b32 v5, v8 offset:{L_LS+32}")
            elif op in ("oA", "oB"):
                acc = accX if op == "oA" else accB
                lb = L_OA if op == "oA" else L_OB
                part_write(acc, lb)
                barrier()
                o_read(lb, partB)
                if op == "oA":
                    t = partA
                    a("v_mov_b32 v6, 0")
                    for k in range(4): a(f"ds_read_b128 v[{t[4*k]}:{t[4*k+3]}], v6 offset:{L_LS + 16*k}")
                    bump()
                zero(accX)
                o_finish(partB, XA if op == "oA" else XB)
                if op == "oA":
                    for o in (0, 8):
                        for st_ in (4, 2, 1):
                            for k in range(st_): a(f"v_add_f32 v{t[o+k]}, v{t[o+k]}, v{t[o+k+st_]}")
                    a("v_cmp_eq_u32 vcc, 0, v0")
                    a(f"v_cndmask_b32 v6, v{vMB}, v{vMA}, vcc"); a(f"v_cndmask_b32 v7, v{t[8]}, v{t[0]}, vcc")
                    vmem(f"buffer_store_dwordx2 v[6:7], v{vMl}, {SRD('ws')}, 0 offen sc1")
            elif op in ("yA", "yB"):
                lb = L_YA if op == "yA" else L_YB
                part_write(accX, lb)
                barrier()
                y_read(lb)
                if op == "yA": bump()
                y_finish(accX, 0 if op == "yA" else 1)
    assert st["ip"] == len(issue)

    a("s_cmp_ge_u32 s2, 64")
    a("s_cbranch_scc1 L_fin")
    build("out")
    wait_for(irdy)
    a(f"s_mov_b32 s{sCNT}, 0")
    a("v_and_b32 v5, 7, v0"); a("v_lshlrev_b32 v5, 2, v5")
    a.label("L_rdy")
    a(f"v_cmp_ne_u32 vcc, 32, v{vRdy}")
    a("s_nop 1")
    a("s_cbranch_vccz L_rdy_ok")
    a("s_sleep 8")
    a(f"buffer_load_dword v{vRdy}, v5, {SRD('dbg')}, 0 offen sc1")
    a(f"s_add_u32 s{sCNT}, s{sCNT}, 1")
    a(f"s_cmp_lt_u32 s{sCNT}, 0x20000")
    a("s_waitcnt vmcnt(0)")
    a("s_cbranch_scc1 L_rdy")
    a.label("L_rdy_ok")
    a("v_lshrrev_b32 v5, 2, v0")
    a(f"s_lshl_b32 s{sT}, s{sW}, 4"); a(f"v_add_u32 v5, s{sT}, v5")
    a("v_and_b32 v6, 3, v0")
    a("v_lshlrev_b32 v6, 5, v6"); a("v_lshl_add_u32 v6, v5, 11, v6")
    a("v_lshlrev_b32 v5, 3, v5")
    a(f"s_lshr_b32 s{sT}, s2, 4")
    a(f"s_lshl_b32 s{sOFF}, s{sT}, 18"); a(f"s_and_b32 s{sT2}, s2, 15"); a(f"s_lshl_b32 s{sT2}, s{sT2}, 7")
    a(f"s_add_u32 s{sOFF}, s{sOFF}, s{sT2}")
    a(f"s_lshl_b32 s{sT}, s{sT}, 10"); a(f"s_add_u32 s{sT}, s{sT}, 0x100000")
    y = list(range(24, 32)); ml = [32, 33]
    a(f"s_mov_b32 s{sCNT}, 0")
    a.label("L_poll")
    a(f"buffer_load_dwordx4 v[24:27], v6, {SRD('ws')}, s{sOFF} offen sc1")
    a(f"buffer_load_dwordx4 v[28:31], v6, {SRD('ws')}, s{sOFF} offen offset:16 sc1")
    a(f"buffer_load_dwordx2 v[32:33], v5, {SRD('ws')}, s{sT} offen sc1")
    a(f"s_add_u32 s{sCNT}, s{sCNT}, 1")
    a("s_waitcnt vmcnt(0)")
    a("v_max3_u32 v7, v24, v25, v26"); a("v_max3_u32 v8, v27, v28, v29"); a("v_max3_u32 v7, v7, v30, v31")
    a("v_max3_u32 v8, v8, v32, v33"); a("v_max_u32 v7, v7, v8")
    a("v_cmp_eq_u32 vcc, -1, v7")
    a("s_nop 1")
    a("s_cbranch_vccz L_poll_ok")
    a(f"s_cmp_lt_u32 s{sCNT}, 0x20000")
    a("s_cbranch_scc1 L_poll")
    a.label("L_poll_ok")
    a(f"v_max_f32_dpp v7, v32, v32 row_ror:4 {DPPF}")
    a(f"v_max_f32_dpp v7, v7, v7 row_ror:8 {DPPF}")
    a("v_sub_f32 v7, v32, v7"); a(f"v_mul_f32 v7, s{sL2E}, v7"); a("v_exp_f32 v7, v7")
    a("v_mul_f32 v8, v7, v33")
    a(f"v_add_f32_dpp v8, v8, v8 row_ror:4 {DPPF}")
    a(f"v_add_f32_dpp v8, v8, v8 row_ror:8 {DPPF}")
    a("v_rcp_f32 v8, v8"); a("v_mul_f32 v7, v7, v8")
    for k in range(8): a(f"v_mul_f32 v{y[k]}, v7, v{y[k]}")
    for k in range(4): a(f"v_add_f32_dpp v{y[k]}, v{y[k]}, v{y[k]} row_ror:8 row_mask:0xf bank_mask:0x3")
    for k in range(4): a(f"v_add_f32_dpp v{y[k]}, v{y[k+4]}, v{y[k+4]} row_ror:8 row_mask:0xf bank_mask:0xc")
    for k in range(2): a(f"v_add_f32_dpp v{y[k]}, v{y[k]}, v{y[k]} row_shl:4 row_mask:0xf bank_mask:0x5")
    for k in range(2): a(f"v_add_f32_dpp v{y[k]}, v{y[k+2]}, v{y[k+2]} row_shr:4 row_mask:0xf bank_mask:0xa")
    a(f"v_permlane16_swap_b32 v{y[0]}, v{y[1]}")
    a(f"v_add_f32 v{y[0]}, v{y[0]}, v{y[1]}")
    a(f"v_mov_b32 v{y[1]}, v{y[0]}")
    a(f"v_permlane32_swap_b32 v{y[0]}, v{y[1]}")
    a(f"v_add_f32 v{y[0]}, v{y[0]}, v{y[1]}")
    a("v_and_b32 v5, 3, v0"); a("v_lshlrev_b32 v5, 3, v5")
    a("v_bfe_u32 v6, v0, 3, 1"); a("v_lshl_add_u32 v5, v6, 2, v5")
    a("v_bfe_u32 v6, v0, 2, 1"); a("v_lshl_add_u32 v5, v6, 1, v5")
    a("v_bfe_u32 v6, v0, 4, 1"); a("v_add_u32 v5, v6, v5")
    a("v_lshlrev_b32 v5, 2, v5")
    a(f"s_lshl_b32 s{sT}, s{sW}, 7"); a(f"v_add_u32 v5, s{sT}, v5")
    a(f"ds_write_b32 v5, v{y[0]} offset:{L_RED}")
    barrier()
    a(f"s_cmp_lg_u32 s{sW}, 0")
    a("s_cbranch_scc1 L_fin")
    a("v_and_b32 v5, 15, v0"); a("v_lshlrev_b32 v6, 3, v5")
    t = partB
    for w in range(8): a(f"ds_read_b64 v[{t[2*w]}:{t[2*w+1]}], v6 offset:{L_RED + w*128}")
    a(f"s_bfe_u32 s{sT}, s2, 0x10004"); a(f"s_lshl_b32 s{sT}, s{sT}, 11")
    a(f"s_lshr_b32 s{sT2}, s2, 5"); a(f"s_lshl_b32 s{sT2}, s{sT2}, 10"); a(f"s_add_u32 s{sT}, s{sT}, s{sT2}")
    a(f"s_and_b32 s{sT2}, s2, 15"); a(f"s_lshl_b32 s{sT2}, s{sT2}, 6"); a(f"s_add_u32 s{sT}, s{sT}, s{sT2}")
    a("v_lshlrev_b32 v5, 2, v5")
    a("s_waitcnt lgkmcnt(0)")
    for st_ in (8, 4, 2):
        for k in range(st_): a(f"v_add_f32 v{t[k]}, v{t[k]}, v{t[k+st_]}")
    a(f"v_cvt_pk_bf16_f32 v7, v{t[0]}, v{t[1]}")
    a("s_mov_b64 exec, 0xffff")
    a(f"buffer_store_dword v7, v5, {SRD('out')}, s{sT} offen")
    a("s_mov_b64 exec, -1")
    a.label("L_fin")
    if stamps:
        a("s_memrealtime s[10:11]")
        a(f"s_lshl_b32 s{sT}, s2, 3"); a(f"s_add_u32 s{sT}, s{sT}, s{sW}"); a(f"s_lshl_b32 s{sT}, s{sT}, 4")
        a(f"s_add_u32 s{sT}, s{sT}, 0x110000")
        a("s_waitcnt lgkmcnt(0)")
        a(f"v_mov_b32 v8, s{sST}"); a(f"v_mov_b32 v9, s{sCNT}"); a("v_mov_b32 v10, s10"); a("v_mov_b32 v11, s12")
        a("v_mov_b32 v5, 0")
        a("s_mov_b64 exec, 1")
        a(f"buffer_store_dwordx4 v[8:11], v5, {SRD('ws')}, s{sT} offen")
    a.label("L_end")
    a("s_endpgm")
    a.raw('.section .rodata,"a"'); a.raw(".p2align 6"); a.raw(f".amdhsa_kernel {NAME}")
    a.raw("  .amdhsa_next_free_vgpr 256"); a.raw("  .amdhsa_next_free_sgpr 102"); a.raw("  .amdhsa_accum_offset 256")
    a.raw("  .amdhsa_group_segment_fixed_size 0"); a.raw("  .amdhsa_kernarg_size 104"); a.raw("  .amdhsa_user_sgpr_count 2")
    a.raw("  .amdhsa_user_sgpr_kernarg_segment_ptr 1"); a.raw("  .amdhsa_system_sgpr_workgroup_id_x 1"); a.raw(".end_amdhsa_kernel")
    return a.text()

if __name__ == "__main__":
    out = sys.argv[1]
    kw = json.loads(sys.argv[2]) if len(sys.argv) > 2 else {}
    open(out, "w").write(gen(**kw))
```

```python
import sys, json
from asmlib import Asm

NAME = "concat_heads__sliding_block_cached__mha_block_cached__decode_kernel"
HEADER = open("concat_heads__sliding_block_cached__mha_block_cached__decode.s.ref").read().split("; Override launch")[0]

DPPF = "row_mask:0xf bank_mask:0xf"

def gen(dmin=12, burst=4, stamps=False, pol="nt", shpol="nt", order="spread", decay=0.5, diag=""):
    a = Asm()
    S_WG = 2
    sW = 3
    PT = 8
    srd = {}
    names = ["xA", "kA", "vA", "wqA", "woA", "xB", "kB", "vB", "wqB", "woB", "out", "dbg", "ws"]
    sizes = {"xA": 2048, "kA": 32 << 20, "vA": 32 << 20, "wqA": 4 << 20, "woA": 4 << 20,
             "xB": 2048, "kB": 128 << 20, "vB": 128 << 20, "wqB": 4 << 20, "woB": 4 << 20,
             "out": 4096, "dbg": 256, "ws": 2 << 20}
    for i, n in enumerate(names):
        srd[n] = 36 + 4 * i
    def SRD(n): return f"s[{srd[n]}:{srd[n]+3}]"
    def build(n):
        i = names.index(n); r = srd[n]
        a(f"s_mov_b32 s{r}, s{PT+2*i}"); a(f"s_mov_b32 s{r+1}, s{PT+2*i+1}")
        a(f"s_mov_b32 s{r+2}, {hex(sizes[n])}"); a(f"s_mov_b32 s{r+3}, 0x20000")
    sH, sB, sS = 4, 5, 6
    sT = 7
    sKB, sKA, sWQ, sWO = 88, 89, 90, 91
    sOFF = 92
    sBOX = 93
    sM1, sM0 = 94, 96
    sSC, sL2E = 98, 99
    sT2 = 100; sCNT = 101
    sST = 34
    vLane, vL16, vWq, vWo = 0, 1, 2, 3
    vPW = 4
    vT = list(range(5, 13))
    vMA, vMB = 13, 14
    vRdy = 15
    qB = list(range(16, 20)); qA = list(range(20, 24))
    accB = list(range(24, 32)); accX = list(range(32, 40))
    partB = list(range(40, 56)); partA = list(range(56, 72))
    PB = list(range(72, 80))
    PA = [80, 81]; XB = [82, 83]; XA = [84, 85]
    vMl = 86; vY = 87
    RING0 = 88
    vSTAMP = 12
    NS = (256 - RING0) // 4
    L_QB, L_QA, L_OA, L_OB = 0, 4096, 8192, 12288
    L_YA, L_YB = 16384, 20480
    L_MX = 24576
    L_LS = 24576 + 64
    L_RED = 24576 + 256
    LDS = 24576 + 256 + 1024

    a.raw(HEADER.rstrip("\n"))
    a.raw(f"; @launch grid=(256,1,1) block=(512,1,1) lds={LDS}")
    a.raw('.amdgcn_target "amdgcn-amd-amdhsa--gfx950"')
    a.raw(".text"); a.raw(f".globl {NAME}"); a.raw(".p2align 8"); a.raw(f".type {NAME},@function")
    a.label(NAME)
    a("s_cmp_ge_u32 s2, 256")
    a("s_cbranch_scc1 L_end")
    a(f"s_load_dwordx16 s[{PT}:{PT+15}], s[0:1], 0")
    a(f"s_load_dwordx8 s[{PT+16}:{PT+23}], s[0:1], 64")
    a(f"s_load_dwordx2 s[{PT+24}:{PT+25}], s[0:1], 96")
    if stamps: a(f"s_memrealtime s[{sST}:{sST+1}]")
    stampn = {"n": 1}
    def stamp():
        if not stamps: return
        a(f"s_memrealtime s[{sST}:{sST+1}]"); a("s_waitcnt lgkmcnt(0)")
        a(f"v_writelane_b32 v{vSTAMP}, s{sST}, {stampn['n']}"); stampn['n'] += 1
    a("v_lshrrev_b32 v1, 6, v0")
    a("v_and_b32 v0, 63, v0")
    a(f"v_readfirstlane_b32 s{sW}, v1")
    a(f"s_and_b32 s{sT}, s2, 7")
    a(f"s_lshr_b32 s{sT2}, s2, 3")
    a(f"s_lshr_b32 s{sH}, s{sT2}, 3")
    a(f"s_lshl_b32 s{sB}, s{sT}, 2")
    a(f"s_add_u32 s{sH}, s{sH}, s{sB}")
    a(f"s_bfe_u32 s{sB}, s{sT2}, 0x10002")
    a(f"s_and_b32 s{sS}, s{sT2}, 3")
    a("v_lshrrev_b32 v5, 4, v0")
    a("v_and_b32 v6, 15, v0")
    a(f"v_lshlrev_b32 v{vL16}, 4, v0")
    a("v_lshlrev_b32 v7, 4, v6")
    a(f"v_lshl_add_u32 v{vWq}, v5, 13, v7")
    a(f"v_lshl_add_u32 v{vWo}, v5, 10, v7")
    a("v_lshl_add_u32 v8, v6, 2, v5")
    a("v_lshlrev_b32 v8, 1, v8")
    a(f"s_lshl_b32 s{sKB}, s{sB}, 5"); a(f"s_add_u32 s{sKB}, s{sKB}, s{sH}")
    a(f"s_lshl_b32 s{sKB}, s{sKB}, 2"); a(f"s_add_u32 s{sKB}, s{sKB}, s{sS}")
    a(f"s_lshl_b32 s{sBOX}, s{sKB}, 11")
    a(f"s_lshl_b32 s{sKB}, s{sKB}, 19")
    a(f"s_lshl_b32 s{sT2}, s{sW}, 10")
    a(f"s_add_u32 s{sKB}, s{sKB}, s{sT2}")
    a(f"s_lshl_b32 s{sKA}, s{sB}, 3"); a(f"s_add_u32 s{sKA}, s{sKA}, s{sT}")
    a(f"s_lshl_b32 s{sKA}, s{sKA}, 4"); a(f"s_add_u32 s{sKA}, s{sKA}, s{sS}"); a(f"s_add_u32 s{sKA}, s{sKA}, 12")
    a(f"s_lshl_b32 s{sKA}, s{sKA}, 17")
    a(f"s_add_u32 s{sKA}, s{sKA}, s{sT2}")
    a(f"s_lshl_b32 s{sWQ}, s{sW}, 19"); a(f"s_lshl_b32 s{sT2}, s{sH}, 8"); a(f"s_add_u32 s{sWQ}, s{sWQ}, s{sT2}")
    a(f"s_lshl_b32 s{sOFF}, s{sB}, 10"); a(f"s_lshl_b32 s{sT2}, s{sW}, 7"); a(f"s_add_u32 s{sOFF}, s{sOFF}, s{sT2}")
    if diag:
        sDG = 33 + 0
        a(f"s_lshl_b32 s{sWO}, s{sH}, 17"); a(f"s_lshr_b32 s{sT}, s{sW}, 2"); a(f"s_lshl_b32 s{sT}, s{sT}, 16")
        a(f"s_add_u32 s{sWO}, s{sWO}, s{sT}"); a(f"s_and_b32 s{sT}, s{sW}, 3"); a(f"s_lshl_b32 s{sT}, s{sT}, 8")
        a(f"s_add_u32 s{sWO}, s{sWO}, s{sT}")
        sDG = sCNT
        a(f"s_lshl_b32 s{sDG}, s{sH}, 17"); a(f"s_lshl_b32 s{sT}, s{sW}, 10"); a(f"s_add_u32 s{sDG}, s{sDG}, s{sT}")
    a("s_waitcnt lgkmcnt(0)")
    if stamps: a(f"v_writelane_b32 v{vSTAMP}, s{sST}, 0")
    build("xB"); build("wqB"); build("kB")

    vm = {"n": 0}
    done = {"upto": 0}
    def vmem(text):
        a(text); vm["n"] += 1; return vm["n"] - 1
    def wait_for(idx):
        if idx < done["upto"]: return
        n = vm["n"] - 1 - idx
        assert n <= 63
        a(f"s_waitcnt vmcnt({n})")
        done["upto"] = idx + 1

    ixB = vmem(f"buffer_load_ushort v{XB[0]}, v8, {SRD('xB')}, s{sOFF} offen")

    P = [("kB", i) for i in range(64)] + [("vB", i) for i in range(64)]
    S = [(n, i) for n in ("wqB", "wqA", "kA", "vA", "woA", "woB") for i in range(16)]
    issue = []
    if order == "spread":
        k = 0
        for i, e in enumerate(P):
            while k < len(S) and k * len(P) <= i * len(S):
                issue.append(S[k]); k += 1
            issue.append(e)
        issue += S[k:]
    pos = {e: i for i, e in enumerate(issue)}
    free = list(range(NS))
    slot = {}; vidx = {}
    st = {"ip": 0, "tgt": 0.0}
    built = {"xB", "wqB", "kB"}
    def issue_one():
        e = issue[st["ip"]]; n, i = e
        if n not in built:
            build(n); built.add(n)
        s = free.pop(0); slot[e] = s
        r = RING0 + 4 * s
        if n in ("kB", "vB"): base, off, va, pl = sKB, i * 8192, vL16, pol
        elif n in ("kA", "vA"): base, off, va, pl = sKA, i * 8192, vL16, shpol
        elif n in ("wqB", "wqA"): base, off, va, pl = sWQ, i * 32768, vWq, shpol
        else: base, off, va, pl = sWO, i * 4096, vWo, shpol
        if "wqc" in diag and n in ("wqB", "wqA"): base, off, va = sWO, i * 4096, vWo
        if "woc" in diag and n in ("woB", "woA", "wqB", "wqA"): base, off, va = sDG, i * 8192, vL16
        if "nosh" in diag and n not in ("kB", "vB"): base, off, va = sDG, 0, vL16
        if off:
            a(f"s_add_u32 s{sOFF}, s{base}, {off}"); so = sOFF
        else: so = base
        vidx[e] = vmem(f"buffer_load_dwordx4 v[{r}:{r+3}], v{va}, {SRD(n)}, s{so} offen {pl}")
        st["ip"] += 1
    def issue_upto(t):
        while st["ip"] <= t and st["ip"] < len(issue) and free:
            issue_one()
    def release(e):
        free.append(slot.pop(e))

    def zero(regs):
        for r in regs: a(f"v_mov_b32 v{r}, 0")
    def vlike(e, acc, plo, phi, lane):
        r = RING0 + 4 * slot[e]
        wait_for(vidx[e])
        for k in range(4):
            a(f"v_dot2c_f32_bf16_dpp v{acc[2*k]}, v{plo}, v{r+k} row_newbcast:{lane} {DPPF}")
            a(f"v_dot2c_f32_bf16_dpp v{acc[2*k+1]}, v{phi}, v{r+k} row_newbcast:{lane} {DPPF}")
        release(e)
    def klike(e, q, dst):
        r = RING0 + 4 * slot[e]
        wait_for(vidx[e])
        a(f"v_dot2_f32_bf16 v{dst}, v{r}, v{q[0]}, 0")
        for k in range(1, 4):
            a(f"v_dot2_f32_bf16 v{dst}, v{r+k}, v{q[k]}, v{dst}")
        release(e)
    def reduce_scatter16(r, dst):
        for i in range(8): a(f"v_add_f32_dpp v{r[i]}, v{r[i]}, v{r[i]} row_ror:8 row_mask:0xf bank_mask:0x3")
        for i in range(8): a(f"v_add_f32_dpp v{r[i]}, v{r[i+8]}, v{r[i+8]} row_ror:8 row_mask:0xf bank_mask:0xc")
        for i in range(4): a(f"v_add_f32_dpp v{r[i]}, v{r[i]}, v{r[i]} row_half_mirror row_mask:0xf bank_mask:0x5")
        for i in range(4): a(f"v_add_f32_dpp v{r[i]}, v{r[i+4]}, v{r[i+4]} row_half_mirror row_mask:0xf bank_mask:0xa")
        for i in range(4): a(f"v_add_f32_dpp v{r[i]}, v{r[i]}, v{r[i]} quad_perm:[2,3,0,1] {DPPF}")
        a(f"v_cndmask_b32 v{r[0]}, v{r[0]}, v{r[2]}, s[{sM1}:{sM1+1}]")
        a(f"v_cndmask_b32 v{r[1]}, v{r[1]}, v{r[3]}, s[{sM1}:{sM1+1}]")
        for i in range(2): a(f"v_add_f32_dpp v{r[i]}, v{r[i]}, v{r[i]} quad_perm:[1,0,3,2] {DPPF}")
        a(f"v_cndmask_b32 v{dst}, v{r[0]}, v{r[1]}, s[{sM0}:{sM0+1}]")
        a(f"v_cvt_pk_bf16_f32 v{dst}, 0, v{dst}")
        a(f"v_mul_f32 v{dst}, s{sSC}, v{dst}")
        a(f"v_cvt_pk_bf16_f32 v{dst}, 0, v{dst}")
    def rowsum8(acc):
        for k in range(4): a(f"v_permlane16_swap_b32 v{acc[k]}, v{acc[k+4]}")
        for k in range(4): a(f"v_add_f32 v{acc[k]}, v{acc[k]}, v{acc[k+4]}")
        for k in range(2): a(f"v_permlane32_swap_b32 v{acc[k]}, v{acc[k+2]}")
        for k in range(2): a(f"v_add_f32 v{acc[k]}, v{acc[k]}, v{acc[k+2]}")
    def allreduce(op, regs, tmps):
        for sh in (8, 4, 2, 1):
            for r in regs: a(f"{op}_dpp v{r}, v{r}, v{r} row_ror:{sh} {DPPF}")
        for pl in ("v_permlane16_swap_b32", "v_permlane32_swap_b32"):
            for r, t in zip(regs, tmps): a(f"v_mov_b32 v{t}, v{r}")
            for r, t in zip(regs, tmps): a(f"{pl} v{r}, v{t}")
            for r, t in zip(regs, tmps): a(f"{op} v{r}, v{r}, v{t}")
    def barrier():
        a("s_waitcnt lgkmcnt(0)"); a("s_barrier")
    def grab(n):
        sl = [free.pop() for _ in range(n)]
        return sl
    def ungrab(sl):
        free.extend(sl)

    def part_write(acc, lbase):
        rowsum8(acc)
        a(f"ds_write_b64 v{vPW}, v[{acc[0]}:{acc[1]}] offset:{lbase}")
    def q_read(lbase, tmp):
        a("v_lshrrev_b32 v5, 4, v0"); a("v_and_b32 v6, 15, v0")
        a("v_lshlrev_b32 v6, 5, v6"); a("v_lshl_add_u32 v5, v5, 3, v6")
        for w in range(8): a(f"ds_read_b64 v[{tmp[2*w]}:{tmp[2*w+1]}], v5 offset:{lbase + w*512}")
    def q_finish(tmp, q):
        a("s_waitcnt lgkmcnt(0)")
        for st_ in (8, 4, 2):
            for k in range(st_): a(f"v_add_f32 v{tmp[k]}, v{tmp[k]}, v{tmp[k+st_]}")
        a(f"v_cvt_pk_bf16_f32 v{q[0]}, v{tmp[0]}, v{tmp[1]}")
        a(f"v_mov_b32 v{q[1]}, v{q[0]}")
        a(f"v_permlane16_swap_b32 v{q[0]}, v{q[1]}")
        a(f"v_mov_b32 v{q[2]}, v{q[0]}"); a(f"v_mov_b32 v{q[3]}, v{q[1]}")
        a(f"v_permlane32_swap_b32 v{q[0]}, v{q[2]}")
        a(f"v_permlane32_swap_b32 v{q[1]}, v{q[3]}")
    def o_read(lbase, tmp):
        a("v_lshrrev_b32 v5, 4, v0"); a("v_and_b32 v6, 15, v0")
        a("v_lshl_add_u32 v5, v6, 2, v5"); a("v_lshlrev_b32 v5, 2, v5")
        a(f"s_lshr_b32 s{sT}, s{sW}, 2"); a(f"s_lshl_b32 s{sT}, s{sT}, 8"); a(f"s_add_u32 s{sT}, s{sT}, {lbase}")
        a(f"v_add_u32 v5, s{sT}, v5")
        for w in range(4): a(f"ds_read2st64_b32 v[{tmp[2*w]}:{tmp[2*w+1]}], v5 offset0:{4*w} offset1:{4*w+2}")
    def o_finish(tmp, o):
        a("s_waitcnt lgkmcnt(0)")
        for st_ in (4, 2, 1):
            for k in range(st_): a(f"v_add_f32 v{tmp[k]}, v{tmp[k]}, v{tmp[k+st_]}")
        a(f"v_cvt_pk_bf16_f32 v{o[0]}, v{tmp[0]}, 0")
        a(f"v_cvt_pk_bf16_f32 v{o[1]}, 0, v{tmp[0]}")
    def y_read(lbase):
        a(f"v_xor_b32 v5, 0x800, v{vPW}")
        a(f"ds_read_b64 v[6:7], v5 offset:{lbase}")
    def y_finish(acc, br):
        a("s_waitcnt lgkmcnt(0)")
        a(f"v_add_f32 v{acc[0]}, v{acc[0]}, v6"); a(f"v_add_f32 v{acc[1]}, v{acc[1]}, v7")
        a(f"s_add_u32 s{sOFF}, s{sBOX}, {br * 2 * 128 * 2048}")
        vmem(f"buffer_store_dwordx2 v[{acc[0]}:{acc[1]}], v{vY}, {SRD('ws')}, s{sOFF} offen sc1")

    issue_upto(7)
    build("ws"); build("xA"); build("dbg"); built |= {"ws", "xA", "dbg"}
    a(f"s_lshl_b32 s{sT}, s{sB}, 10"); a(f"s_lshl_b32 s{sT2}, s{sW}, 7"); a(f"s_add_u32 s{sT}, s{sT}, s{sT2}")
    ixA = vmem(f"buffer_load_ushort v{XA[0]}, v8, {SRD('xA')}, s{sT} offen")
    a("v_mov_b32 v10, -1"); a("v_mov_b32 v11, -1")
    a("v_lshlrev_b32 v9, 3, v0")
    a(f"s_lshr_b32 s{sT}, s{sW}, 2"); a(f"s_lshl_b32 s{sT}, s{sT}, 19")
    a(f"s_and_b32 s{sT2}, s{sW}, 3"); a(f"s_lshl_b32 s{sT2}, s{sT2}, 9")
    a(f"s_add_u32 s{sT}, s{sT}, s{sT2}"); a(f"s_add_u32 s{sT}, s{sT}, s{sBOX}")
    vmem(f"buffer_store_dwordx2 v[10:11], v9, {SRD('ws')}, s{sT} offen sc1")
    a(f"s_lshr_b32 s{sT}, s{sBOX}, 8"); a(f"s_add_u32 s{sT}, s{sT}, 0x100000")
    a(f"s_cmp_eq_u32 s{sW}, 0"); a(f"s_cselect_b32 s{sT}, s{sT}, 0x40000000")
    a(f"v_lshlrev_b32 v9, 11, v0"); a(f"v_add_u32 v{vMl}, s{sT}, v9")
    a("v_cmp_gt_u32 vcc, 2, v0"); a("v_mov_b32 v9, 0x40000000")
    a(f"v_cndmask_b32 v{vMl}, v9, v{vMl}, vcc")
    vmem(f"buffer_store_dwordx2 v[10:11], v{vMl}, {SRD('ws')}, 0 offen sc1")
    a("v_lshrrev_b32 v5, 4, v0"); a("v_and_b32 v6, 15, v0")
    a("v_and_b32 v7, 1, v5"); a("v_lshlrev_b32 v7, 2, v7"); a("v_and_b32 v5, 2, v5"); a("v_or_b32 v5, v5, v7")
    a("v_lshl_add_u32 v5, v6, 3, v5"); a("v_lshlrev_b32 v5, 2, v5")
    a(f"s_lshl_b32 s{sT}, s{sW}, 9")
    a(f"v_add_u32 v{vPW}, s{sT}, v5")
    a(f"s_cmp_lt_u32 s{sW}, 4"); a(f"s_cselect_b32 s{sT}, s{sT}, 0x40000000")
    a(f"v_add_u32 v{vY}, s{sT}, v5")
    a(f"s_lshl_b32 s{sWO}, s{sH}, 17"); a(f"s_lshr_b32 s{sT}, s{sW}, 2"); a(f"s_lshl_b32 s{sT}, s{sT}, 16")
    a(f"s_add_u32 s{sWO}, s{sWO}, s{sT}"); a(f"s_and_b32 s{sT}, s{sW}, 3"); a(f"s_lshl_b32 s{sT}, s{sT}, 8")
    a(f"s_add_u32 s{sWO}, s{sWO}, s{sT}")
    a(f"s_mov_b32 s{sM1}, 0xcccccccc"); a(f"s_mov_b32 s{sM1+1}, 0xcccccccc")
    a(f"s_mov_b32 s{sM0}, 0xaaaaaaaa"); a(f"s_mov_b32 s{sM0+1}, 0xaaaaaaaa")
    a(f"s_mov_b32 s{sSC}, 0x3db504f3"); a(f"s_mov_b32 s{sL2E}, 0x3fb8aa3b")
    zero(accX)
    issue_upto(NS - 1)
    wait_for(ixB)
    a(f"v_lshlrev_b32 v{XB[1]}, 16, v{XB[0]}")

    steps = []
    ready = {"wqB": True, "wqA": True, "kB": False, "kA": False, "vA": False, "vB": False, "woA": False, "woB": False}
    pending = []
    cnt = {n: 0 for n in ready}
    tot = {"kB": 64, "vB": 64}
    def push(e):
        steps.append(("c", e)); cnt[e[0]] += 1
    def drain():
        nonlocal pending
        again = True
        while again:
            again = False
            for e in list(pending):
                if ready[e[0]]:
                    pending.remove(e); push(e); post(e); again = True; break
    def post(e):
        n, i = e
        last = cnt[n] == tot.get(n, 16)
        if n in ("kB", "kA") and i % 16 == 15: steps.append(("rs", n, i // 16))
        if not last: return
        if n == "wqB": steps.append(("op", "qB")); ready["kB"] = True
        if n == "wqA": steps.append(("op", "qA")); ready["kA"] = True
        if n in ("kA", "kB") and cnt["kA"] == 16 and cnt["kB"] == 64:
            steps.append(("op", "max")); ready["vA"] = ready["vB"] = True
        if n == "vA": steps.append(("op", "oA")); ready["woA"] = True
        if n == "woA": steps.append(("op", "yA"))
        if n == "vB": steps.append(("op", "oB")); ready["woB"] = True
        if n == "woB": steps.append(("op", "yB"))
    for e in issue:
        if ready[e[0]] and not any(p[0] == e[0] for p in pending):
            push(e); post(e); drain()
        else:
            pending.append(e)
    drain()
    assert not pending

    st["tgt"] = float(st["ip"] - 1)
    irdy = None
    for sidx, s in enumerate(steps):
        if s[0] == "c":
            e = s[1]; n, i = e
            st["tgt"] = max(pos[e] + dmin, st["tgt"] + decay)
            issue_upto(int(st["tgt"]))
            assert e in slot, ("deadlock", e)
            if n == "wqB": vlike(e, accX, XB[0], XB[1], i)
            elif n == "wqA":
                if i == 0:
                    wait_for(ixA); a(f"v_lshlrev_b32 v{XA[1]}, 16, v{XA[0]}")
                vlike(e, accX, XA[0], XA[1], i)
            elif n == "kB": klike(e, qB, partB[i % 16])
            elif n == "kA": klike(e, qA, partA[i])
            elif n == "vA": vlike(e, accX, PA[0], PA[1], i)
            elif n == "vB": vlike(e, accB, PB[2 * (i // 16)], PB[2 * (i // 16) + 1], i % 16)
            elif n == "woA": vlike(e, accX, XA[0], XA[1], i)
            elif n == "woB": vlike(e, accX, XB[0], XB[1], i)
            if n == "vB" and i == 40:
                a("v_and_b32 v5, 7, v0"); a("v_lshlrev_b32 v5, 2, v5")
                irdy = vmem(f"buffer_load_dword v{vRdy}, v5, {SRD('dbg')}, 0 offen sc1")
        elif s[0] == "rs":
            if s[1] == "kB": reduce_scatter16(partB, PB[2 * s[2]])
            else: reduce_scatter16(partA, PA[0])
        else:
            op = s[1]
            def bump():
                st["tgt"] += burst; issue_upto(int(st["tgt"]))
            if op in ("qB", "qA"):
                lb = L_QB if op == "qB" else L_QA
                tmp = partA if op == "qA" else partB
                part_write(accX, lb)
                barrier()
                q_read(lb, tmp)
                if op == "qB":
                    a(f"s_and_b32 s{sT}, s2, 7"); a(f"s_lshl_b32 s{sT}, s{sT}, 2")
                    a(f"s_cmp_eq_u32 s{sW}, 0"); a(f"s_cselect_b32 s{sT}, s{sT}, 0x40000000")
                    a(f"v_lshlrev_b32 v9, 8, v0"); a(f"v_add_u32 v9, s{sT}, v9"); a("v_mov_b32 v10, 1")
                    vmem(f"buffer_atomic_add v10, v9, {SRD('dbg')}, 0 offen sc1")
                bump()
                zero(accX)
                q_finish(tmp, qB if op == "qB" else qA)
                if op == "qB": stamp()
            elif op == "max":
                a(f"v_max3_f32 v{vMB}, v{PB[0]}, v{PB[2]}, v{PB[4]}"); a(f"v_max_f32 v{vMB}, v{vMB}, v{PB[6]}")
                a(f"v_mov_b32 v{vMA}, v{PA[0]}")
                allreduce("v_max_f32", [vMA, vMB], [5, 6])
                a(f"s_lshl_b32 s{sT}, s{sW}, 2"); a(f"v_mov_b32 v5, s{sT}")
                a(f"ds_write2_b32 v5, v{vMA}, v{vMB} offset0:{L_MX//4 % 256} offset1:{(L_MX//4 + 8) % 256}") if False else None
                a(f"ds_write_b32 v5, v{vMA} offset:{L_MX}"); a(f"ds_write_b32 v5, v{vMB} offset:{L_MX+32}")
                barrier()
                t = partB
                a("v_mov_b32 v6, 0")
                for k in range(4): a(f"ds_read_b128 v[{t[4*k]}:{t[4*k+3]}], v6 offset:{L_MX + 16*k}")
                bump()
                zero(accB)
                a("s_waitcnt lgkmcnt(0)")
                for m, o in ((vMA, 0), (vMB, 8)):
                    a(f"v_max3_f32 v{m}, v{t[o]}, v{t[o+1]}, v{t[o+2]}")
                    a(f"v_max3_f32 v{m}, v{m}, v{t[o+3]}, v{t[o+4]}")
                    a(f"v_max3_f32 v{m}, v{m}, v{t[o+5]}, v{t[o+6]}")
                    a(f"v_max_f32 v{m}, v{m}, v{t[o+7]}")
                srcs = [(PA[0], PA[1], vMA)] + [(PB[2*r], PB[2*r+1], vMB) for r in range(4)]
                for lo, hi, m in srcs: a(f"v_sub_f32 v{lo}, v{lo}, v{m}")
                for lo, hi, m in srcs: a(f"v_mul_f32 v{lo}, s{sL2E}, v{lo}")
                for lo, hi, m in srcs: a(f"v_exp_f32 v{lo}, v{lo}")
                a(f"v_mov_b32 v7, v{PA[0]}")
                a(f"v_add_f32 v8, v{PB[0]}, v{PB[2]}"); a(f"v_add_f32 v9, v{PB[4]}, v{PB[6]}"); a("v_add_f32 v8, v8, v9")
                for lo, hi, m in srcs: a(f"v_cvt_pk_bf16_f32 v{hi}, 0, v{lo}")
                for lo, hi, m in srcs: a(f"v_cvt_pk_bf16_f32 v{lo}, v{lo}, 0")
                allreduce("v_add_f32", [7, 8], [9, 10])
                a(f"ds_write_b32 v5, v7 offset:{L_LS}"); a(f"ds_write_b32 v5, v8 offset:{L_LS+32}")
                stamp()
            elif op in ("oA", "oB"):
                acc = accX if op == "oA" else accB
                lb = L_OA if op == "oA" else L_OB
                if op == "oB": stamp()
                part_write(acc, lb)
                barrier()
                if op == "oB": stamp()
                o_read(lb, partB)
                if op == "oA":
                    t = partA
                    a("v_mov_b32 v6, 0")
                    for k in range(4): a(f"ds_read_b128 v[{t[4*k]}:{t[4*k+3]}], v6 offset:{L_LS + 16*k}")
                    bump()
                zero(accX)
                o_finish(partB, XA if op == "oA" else XB)
                if op == "oA":
                    for o in (0, 8):
                        for st_ in (4, 2, 1):
                            for k in range(st_): a(f"v_add_f32 v{t[o+k]}, v{t[o+k]}, v{t[o+k+st_]}")
                    a("v_cmp_eq_u32 vcc, 0, v0")
                    a(f"v_cndmask_b32 v6, v{vMB}, v{vMA}, vcc"); a(f"v_cndmask_b32 v7, v{t[8]}, v{t[0]}, vcc")
                    vmem(f"buffer_store_dwordx2 v[6:7], v{vMl}, {SRD('ws')}, 0 offen sc1")
            elif op in ("yA", "yB"):
                lb = L_YA if op == "yA" else L_YB
                part_write(accX, lb)
                barrier()
                y_read(lb)
                if op == "yA": bump()
                y_finish(accX, 0 if op == "yA" else 1)
                stamp()
    assert st["ip"] == len(issue)

    a("s_cmp_ge_u32 s2, 64")
    a("s_cbranch_scc1 L_fin")
    build("out")
    wait_for(irdy)
    a(f"s_mov_b32 s{sCNT}, 0")
    a("v_and_b32 v5, 7, v0"); a("v_lshlrev_b32 v5, 2, v5")
    a.label("L_rdy")
    a(f"v_cmp_gt_u32 vcc, 32, v{vRdy}")
    a("s_nop 1")
    a("s_cbranch_vccz L_rdy_ok")
    a("s_sleep 8")
    a(f"buffer_load_dword v{vRdy}, v5, {SRD('dbg')}, 0 offen sc1")
    a(f"s_add_u32 s{sCNT}, s{sCNT}, 1")
    a(f"s_cmp_lt_u32 s{sCNT}, 0x20000")
    a("s_waitcnt vmcnt(0)")
    a("s_cbranch_scc1 L_rdy")
    a.label("L_rdy_ok")
    a("v_lshrrev_b32 v5, 2, v0")
    a(f"s_lshl_b32 s{sT}, s{sW}, 4"); a(f"v_add_u32 v5, s{sT}, v5")
    a("v_and_b32 v6, 3, v0")
    a("v_lshlrev_b32 v6, 5, v6"); a("v_lshl_add_u32 v6, v5, 11, v6")
    a("v_lshlrev_b32 v5, 3, v5")
    a(f"s_lshr_b32 s{sT}, s2, 4")
    a(f"s_lshl_b32 s{sOFF}, s{sT}, 18"); a(f"s_and_b32 s{sT2}, s2, 15"); a(f"s_lshl_b32 s{sT2}, s{sT2}, 7")
    a(f"s_add_u32 s{sOFF}, s{sOFF}, s{sT2}")
    a(f"s_lshl_b32 s{sT}, s{sT}, 10"); a(f"s_add_u32 s{sT}, s{sT}, 0x100000")
    y = list(range(24, 32)); ml = [32, 33]
    a(f"s_mov_b32 s{sCNT}, 0")
    a.label("L_poll")
    a(f"buffer_load_dwordx4 v[24:27], v6, {SRD('ws')}, s{sOFF} offen sc1")
    a(f"buffer_load_dwordx4 v[28:31], v6, {SRD('ws')}, s{sOFF} offen offset:16 sc1")
    a(f"buffer_load_dwordx2 v[32:33], v5, {SRD('ws')}, s{sT} offen sc1")
    a(f"s_add_u32 s{sCNT}, s{sCNT}, 1")
    a("s_waitcnt vmcnt(0)")
    a("v_max3_u32 v7, v24, v25, v26"); a("v_max3_u32 v8, v27, v28, v29"); a("v_max3_u32 v7, v7, v30, v31")
    a("v_max3_u32 v8, v8, v32, v33"); a("v_max_u32 v7, v7, v8")
    a("v_cmp_eq_u32 vcc, -1, v7")
    a("s_nop 1")
    a("s_cbranch_vccz L_poll_ok")
    a(f"s_cmp_lt_u32 s{sCNT}, 0x20000")
    a("s_cbranch_scc1 L_poll")
    a.label("L_poll_ok")
    a(f"v_max_f32_dpp v7, v32, v32 row_ror:4 {DPPF}")
    a(f"v_max_f32_dpp v7, v7, v7 row_ror:8 {DPPF}")
    a("v_sub_f32 v7, v32, v7"); a(f"v_mul_f32 v7, s{sL2E}, v7"); a("v_exp_f32 v7, v7")
    a("v_mul_f32 v8, v7, v33")
    a(f"v_add_f32_dpp v8, v8, v8 row_ror:4 {DPPF}")
    a(f"v_add_f32_dpp v8, v8, v8 row_ror:8 {DPPF}")
    a("v_rcp_f32 v8, v8"); a("v_mul_f32 v7, v7, v8")
    for k in range(8): a(f"v_mul_f32 v{y[k]}, v7, v{y[k]}")
    for k in range(4): a(f"v_add_f32_dpp v{y[k]}, v{y[k]}, v{y[k]} row_ror:8 row_mask:0xf bank_mask:0x3")
    for k in range(4): a(f"v_add_f32_dpp v{y[k]}, v{y[k+4]}, v{y[k+4]} row_ror:8 row_mask:0xf bank_mask:0xc")
    for k in range(2): a(f"v_add_f32_dpp v{y[k]}, v{y[k]}, v{y[k]} row_shl:4 row_mask:0xf bank_mask:0x5")
    for k in range(2): a(f"v_add_f32_dpp v{y[k]}, v{y[k+2]}, v{y[k+2]} row_shr:4 row_mask:0xf bank_mask:0xa")
    a(f"v_permlane16_swap_b32 v{y[0]}, v{y[1]}")
    a(f"v_add_f32 v{y[0]}, v{y[0]}, v{y[1]}")
    a(f"v_mov_b32 v{y[1]}, v{y[0]}")
    a(f"v_permlane32_swap_b32 v{y[0]}, v{y[1]}")
    a(f"v_add_f32 v{y[0]}, v{y[0]}, v{y[1]}")
    a("v_and_b32 v5, 3, v0"); a("v_lshlrev_b32 v5, 3, v5")
    a("v_bfe_u32 v6, v0, 3, 1"); a("v_lshl_add_u32 v5, v6, 2, v5")
    a("v_bfe_u32 v6, v0, 2, 1"); a("v_lshl_add_u32 v5, v6, 1, v5")
    a("v_bfe_u32 v6, v0, 4, 1"); a("v_add_u32 v5, v6, v5")
    a("v_lshlrev_b32 v5, 2, v5")
    a(f"s_lshl_b32 s{sT}, s{sW}, 7"); a(f"v_add_u32 v5, s{sT}, v5")
    a(f"ds_write_b32 v5, v{y[0]} offset:{L_RED}")
    barrier()
    a(f"s_cmp_lg_u32 s{sW}, 0")
    a("s_cbranch_scc1 L_fin")
    a("v_and_b32 v5, 15, v0"); a("v_lshlrev_b32 v6, 3, v5")
    t = partB
    for w in range(8): a(f"ds_read_b64 v[{t[2*w]}:{t[2*w+1]}], v6 offset:{L_RED + w*128}")
    a(f"s_bfe_u32 s{sT}, s2, 0x10004"); a(f"s_lshl_b32 s{sT}, s{sT}, 11")
    a(f"s_lshr_b32 s{sT2}, s2, 5"); a(f"s_lshl_b32 s{sT2}, s{sT2}, 10"); a(f"s_add_u32 s{sT}, s{sT}, s{sT2}")
    a(f"s_and_b32 s{sT2}, s2, 15"); a(f"s_lshl_b32 s{sT2}, s{sT2}, 6"); a(f"s_add_u32 s{sT}, s{sT}, s{sT2}")
    a("v_lshlrev_b32 v5, 2, v5")
    a("s_waitcnt lgkmcnt(0)")
    for st_ in (8, 4, 2):
        for k in range(st_): a(f"v_add_f32 v{t[k]}, v{t[k]}, v{t[k+st_]}")
    a(f"v_cvt_pk_bf16_f32 v7, v{t[0]}, v{t[1]}")
    a("s_mov_b64 exec, 0xffff")
    a(f"buffer_store_dword v7, v5, {SRD('out')}, s{sT} offen")
    a("s_mov_b64 exec, -1")
    a.label("L_fin")
    if stamps:
        stamp()
        assert stampn['n'] == 8, stampn
        a(f"s_lshl_b32 s{sT}, s2, 3"); a(f"s_add_u32 s{sT}, s{sT}, s{sW}"); a(f"s_lshl_b32 s{sT}, s{sT}, 5")
        a(f"s_add_u32 s{sT}, s{sT}, 0x110000")
        a("v_lshlrev_b32 v5, 2, v0")
        a("s_mov_b64 exec, 0xff")
        a(f"buffer_store_dword v{vSTAMP}, v5, {SRD('ws')}, s{sT} offen")
    a.label("L_end")
    a("s_endpgm")
    a.raw('.section .rodata,"a"'); a.raw(".p2align 6"); a.raw(f".amdhsa_kernel {NAME}")
    a.raw("  .amdhsa_next_free_vgpr 256"); a.raw("  .amdhsa_next_free_sgpr 102"); a.raw("  .amdhsa_accum_offset 256")
    a.raw("  .amdhsa_group_segment_fixed_size 0"); a.raw("  .amdhsa_kernarg_size 104"); a.raw("  .amdhsa_user_sgpr_count 2")
    a.raw("  .amdhsa_user_sgpr_kernarg_segment_ptr 1"); a.raw("  .amdhsa_system_sgpr_workgroup_id_x 1"); a.raw(".end_amdhsa_kernel")
    return a.text()

if __name__ == "__main__":
    out = sys.argv[1]
    kw = json.loads(sys.argv[2]) if len(sys.argv) > 2 else {}
    open(out, "w").write(gen(**kw))
```

```python
import sys, json
from asmlib import Asm

NAME = "concat_heads__sliding_block_cached__mha_block_cached__decode_kernel"
HEADER = open("concat_heads__sliding_block_cached__mha_block_cached__decode.s.ref").read().split("; Override launch")[0]
DPPF = "row_mask:0xf bank_mask:0xf"

WS_Y = 0
WS_ML = 0x200000
WS_Q = 0x220000
WS_EP = 0x320000
WS_ST = 0x340000
WS_SIZE = 0x400000
OOB = 0x40000000

def gen(F=4, dmin=None, burst=0, stamps=False, pol="nt", qpos=26, decay=0.5, rsh=2, rotw=0, diag="", relax=4, lateA=True, slp=8, apos=0, aburst=0, F0=None, pols=None):
    if dmin is None: dmin = F - 1
    a = Asm()
    names = ["xA", "kA", "vA", "wqA", "woA", "xB", "kB", "vB", "wqB", "woB", "out", "dbg", "ws"]
    sizes = {"xA": 2048, "kA": 32 << 20, "vA": 32 << 20, "wqA": 4 << 20, "woA": 4 << 20,
             "xB": 2048, "kB": 128 << 20, "vB": 128 << 20, "wqB": 4 << 20, "woB": 4 << 20,
             "out": 4096, "ws": WS_SIZE}
    srd = {}
    r = 8
    for n in names:
        if n == "dbg": continue
        srd[n] = r; r += 4
    def SRD(n): return f"s[{srd[n]}:{srd[n]+3}]"
    sW, sH, sB, sS, sT = 3, 4, 5, 6, 7
    sX, sJ, sT2, sKB, sKA, sWQ, sWO, sOFF, sP, sTAG, sSC, sL2E, sCNT, sRW = range(56, 70)
    sM1, sM0, sST = 70, 72, 74
    NSGPR = 80
    vL16, vWq, vWo, vPW = 1, 2, 3, 4
    vSTAMP, vMA, vMB, vTAG = 12, 13, 14, 15
    qB = list(range(16, 20)); qA = list(range(20, 24))
    accB = list(range(24, 32)); accX = list(range(32, 40))
    partB = list(range(40, 56)); partA = list(range(56, 72))
    PB = list(range(72, 80)); PA = [80, 81]; OX = [82, 83]
    vY = 84
    RING0 = 88
    NS = (256 - RING0) // 4
    L_QP = 0
    L_QB, L_QA, L_OA, L_OB, L_YA, L_YB = [16384 + 4096 * i for i in range(6)]
    L_MX = 40960; L_LS = L_MX + 64; L_RED = L_MX + 256
    LDS = L_RED + 512

    a.raw(HEADER.rstrip("\n"))
    a.raw(f"; @launch grid=(256,1,1) block=(512,1,1) lds={LDS}")
    a.raw('.amdgcn_target "amdgcn-amd-amdhsa--gfx950"')
    a.raw(".text"); a.raw(f".globl {NAME}"); a.raw(".p2align 8"); a.raw(f".type {NAME},@function")
    a.label(NAME)
    a("s_cmp_ge_u32 s2, 256")
    a("s_cbranch_scc1 L_end")
    for n in ["ws", "xB", "wqB", "xA", "wqA", "kB", "kA", "vA", "vB", "woA", "woB", "out"]:
        a(f"s_load_dwordx2 s[{srd[n]}:{srd[n]+1}], s[0:1], {8 * names.index(n)}")
    if stamps: a(f"s_memrealtime s[{sST}:{sST+1}]")
    stampn = {"n": 1}
    def stamp():
        if not stamps: return
        a(f"s_memrealtime s[{sST}:{sST+1}]"); a("s_waitcnt lgkmcnt(0)")
        a(f"v_writelane_b32 v{vSTAMP}, s{sST}, {stampn['n']}"); stampn["n"] += 1
    a("v_lshrrev_b32 v1, 6, v0")
    a("v_and_b32 v0, 63, v0")
    a(f"v_readfirstlane_b32 s{sW}, v1")
    for n in srd:
        a(f"s_mov_b32 s{srd[n]+2}, {hex(sizes[n])}"); a(f"s_mov_b32 s{srd[n]+3}, 0x20000")
    a(f"s_and_b32 s{sX}, s2, 7"); a(f"s_lshr_b32 s{sJ}, s2, 3")
    a("v_lshrrev_b32 v5, 4, v0"); a("v_and_b32 v6, 15, v0")
    a(f"v_lshlrev_b32 v{vL16}, 4, v0")
    a("v_lshlrev_b32 v7, 4, v6")
    a(f"v_lshl_add_u32 v{vWq}, v5, 13, v7")
    a(f"v_lshl_add_u32 v{vWo}, v5, 10, v7")
    a("v_bfe_u32 v8, v0, 1, 1"); a("v_lshlrev_b32 v8, 9, v8")
    a("v_and_b32 v9, 1, v0"); a("v_lshl_add_u32 v8, v9, 2, v8"); a("v_add_u32 v8, v8, v5"); a("v_lshlrev_b32 v8, 1, v8")
    a(f"s_lshl_b32 s{sT}, s{sX}, 3"); a(f"s_add_u32 s{sT}, s{sT}, s{sW}")
    a(f"s_lshl_b32 s{sOFF}, s{sT}, 4")
    a(f"s_lshl_b32 s{sWQ}, s{sT}, 16"); a(f"s_lshl_b32 s{sT2}, s{sJ}, 8"); a(f"s_add_u32 s{sWQ}, s{sWQ}, s{sT2}")
    a(f"s_add_u32 s{sT2}, s{sWQ}, 32768")
    a("s_waitcnt lgkmcnt(0)")
    a(f"s_load_dword s{sTAG}, s[{srd['ws']}:{srd['ws']+1}], {hex(WS_EP)}") if WS_EP < (1 << 20) else None
    if WS_EP >= (1 << 20):
        a(f"s_mov_b32 s{sCNT}, {hex(WS_EP)}")
        a(f"s_load_dword s{sTAG}, s[{srd['ws']}:{srd['ws']+1}], s{sCNT}")
    if stamps: a(f"v_writelane_b32 v{vSTAMP}, s{sST}, 0")

    vm = {"n": 0}; done = {"upto": 0}
    def vmem(text):
        a(text); vm["n"] += 1; return vm["n"] - 1
    def wait_for(idx):
        if idx < done["upto"]: return
        n = vm["n"] - 1 - idx
        assert n <= 63
        a(f"s_waitcnt vmcnt({n})"); done["upto"] = idx + 1
    last_store = {"i": -100}
    def limit(f):
        tgt = vm["n"] - f
        if tgt >= last_store["i"] and vm["n"] - last_store["i"] <= f + relax - 1: tgt = last_store["i"] - 1
        if tgt >= 0: wait_for(tgt)

    free = list(range(NS))
    XB = [PB[0], PB[1]]; XA = [PB[2], PB[3]]
    wsl = [free.pop(0) for _ in range(4)]
    wr = [RING0 + 4 * s for s in wsl]
    ixB = vmem(f"buffer_load_ushort v{XB[0]}, v8, {SRD('xB')}, s{sOFF} offen")
    iw = []
    iw.append(vmem(f"buffer_load_dwordx4 v[{wr[0]}:{wr[0]+3}], v{vWq}, {SRD('wqB')}, s{sWQ} offen {pol}"))
    iw.append(vmem(f"buffer_load_dwordx4 v[{wr[1]}:{wr[1]+3}], v{vWq}, {SRD('wqB')}, s{sT2} offen {pol}"))
    ixA = vmem(f"buffer_load_ushort v{XA[0]}, v8, {SRD('xA')}, s{sOFF} offen")
    iw.append(vmem(f"buffer_load_dwordx4 v[{wr[2]}:{wr[2]+3}], v{vWq}, {SRD('wqA')}, s{sWQ} offen {pol}"))
    iw.append(vmem(f"buffer_load_dwordx4 v[{wr[3]}:{wr[3]+3}], v{vWq}, {SRD('wqA')}, s{sT2} offen {pol}"))

    a(f"s_lshr_b32 s{sH}, s{sJ}, 3"); a(f"s_lshl_b32 s{sT}, s{sX}, 2"); a(f"s_add_u32 s{sH}, s{sH}, s{sT}")
    a(f"s_bfe_u32 s{sB}, s{sJ}, 0x10002"); a(f"s_and_b32 s{sS}, s{sJ}, 3")
    a(f"s_lshl_b32 s{sP}, s{sB}, 5"); a(f"s_add_u32 s{sP}, s{sP}, s{sH}")
    a(f"s_lshl_b32 s{sP}, s{sP}, 2"); a(f"s_add_u32 s{sP}, s{sP}, s{sS}")
    a(f"s_and_b32 s{sT2}, s{sW}, 3"); a(f"s_lshl_b32 s{sT2}, s{sT2}, 1"); a(f"s_lshr_b32 s{sT}, s{sW}, 2")
    a(f"s_add_u32 s{sT2}, s{sT2}, s{sT}"); a(f"s_lshl_b32 s{sT2}, s{sT2}, 10")
    a(f"s_lshl_b32 s{sKB}, s{sP}, 19"); a(f"s_add_u32 s{sKB}, s{sKB}, s{sT2}")
    a(f"s_lshr_b32 s{sT}, s2, {rsh}"); a(f"s_and_b32 s{sT}, s{sT}, 63"); a(f"s_lshl_b32 s{sT}, s{sT}, 13")
    a(f"s_or_b32 s{sKB}, s{sKB}, s{sT}")
    a(f"s_lshl_b32 s{sKA}, s{sB}, 3"); a(f"s_add_u32 s{sKA}, s{sKA}, s{sX}")
    a(f"s_lshl_b32 s{sKA}, s{sKA}, 4"); a(f"s_add_u32 s{sKA}, s{sKA}, s{sS}"); a(f"s_add_u32 s{sKA}, s{sKA}, 12")
    a(f"s_lshl_b32 s{sKA}, s{sKA}, 17"); a(f"s_add_u32 s{sKA}, s{sKA}, s{sT2}")
    a(f"s_bfe_u32 s{sT}, s2, 0x40002"); a(f"s_lshl_b32 s{sT}, s{sT}, 13")
    a(f"s_or_b32 s{sKA}, s{sKA}, s{sT}")

    P = [("kB", i) for i in range(64)] + [("vB", i) for i in range(64)]
    S = [(n, i) for n in ("kA", "vA", "woA", "woB") for i in range(16)]
    issue = []
    k = 0
    for i, e in enumerate(P):
        issue.append(e)
        while k < len(S) and (k + 1) * len(P) <= (i + 2) * len(S) - 0:
            issue.append(S[k]); k += 1
    issue += S[k:]
    while issue[-1][0] != "vB":
        e = issue.pop(); issue.insert(len(issue) - 2, e)
    issue.insert(qpos, ("qB", 0)); issue.insert(qpos + 1, ("qA", 0))
    pos = {e: i for i, e in enumerate(issue)}
    slot = {}; vidx = {}
    st = {"ip": 0, "tgt": 0.0}
    def qload(n, r):
        br = 1 if n == "qB" else 0
        a(f"s_add_u32 s{sOFF}, s{sWQ}, {WS_Q + br * 2 * 32 * 8 * 1024}")
        return f"buffer_load_dwordx4 v[{r}:{r+3}], v{vL16}, {SRD('ws')}, s{sOFF} offen sc1"
    def issue_one():
        e = issue[st["ip"]]; n, i = e
        s = free.pop(0); slot[e] = s
        r = RING0 + 4 * s
        limit(F if st["ip"] >= qpos + 8 or F0 is None else F0)
        if n in ("qB", "qA"):
            vidx[e] = vmem(qload(n, r))
        else:
            if n in ("kB", "vB"): base, off, va = sKB, i * 8192, vL16
            elif n in ("kA", "vA"): base, off, va = sKA, i * 8192, vL16
            else: base, off, va = sWO, i * 4096, vWo
            if off:
                a(f"s_xor_b32 s{sOFF}, s{base}, {off}"); so = sOFF
            else: so = base
            vidx[e] = vmem(f"buffer_load_dwordx4 v[{r}:{r+3}], v{va}, {SRD(n)}, s{so} offen {(pols or {}).get(n, pol)}")
        st["ip"] += 1
    def issue_upto(t):
        while st["ip"] <= t and st["ip"] < len(issue) and free:
            issue_one()
    def release(e): free.append(slot.pop(e))

    def zero(regs):
        for r in regs: a(f"v_mov_b32 v{r}, 0")
    def dots(r, acc, plo, phi, lane):
        for k in range(4):
            a(f"v_dot2c_f32_bf16_dpp v{acc[2*k]}, v{plo}, v{r+k} row_newbcast:{lane} {DPPF}")
            a(f"v_dot2c_f32_bf16_dpp v{acc[2*k+1]}, v{phi}, v{r+k} row_newbcast:{lane} {DPPF}")
    def vlike(e, acc, plo, phi, lane):
        wait_for(vidx[e]); dots(RING0 + 4 * slot[e], acc, plo, phi, lane); release(e)
    def klike(e, q, dst):
        r = RING0 + 4 * slot[e]
        wait_for(vidx[e])
        a(f"v_dot2_f32_bf16 v{dst}, v{r}, v{q[0]}, 0")
        for k in range(1, 4): a(f"v_dot2_f32_bf16 v{dst}, v{r+k}, v{q[k]}, v{dst}")
        release(e)
    def reduce_scatter16(r, dst):
        for i in range(8): a(f"v_add_f32_dpp v{r[i]}, v{r[i]}, v{r[i]} row_ror:8 row_mask:0xf bank_mask:0x3")
        for i in range(8): a(f"v_add_f32_dpp v{r[i]}, v{r[i+8]}, v{r[i+8]} row_ror:8 row_mask:0xf bank_mask:0xc")
        for i in range(4): a(f"v_add_f32_dpp v{r[i]}, v{r[i]}, v{r[i]} row_half_mirror row_mask:0xf bank_mask:0x5")
        for i in range(4): a(f"v_add_f32_dpp v{r[i]}, v{r[i+4]}, v{r[i+4]} row_half_mirror row_mask:0xf bank_mask:0xa")
        for i in range(4): a(f"v_add_f32_dpp v{r[i]}, v{r[i]}, v{r[i]} quad_perm:[2,3,0,1] {DPPF}")
        a(f"v_cndmask_b32 v{r[0]}, v{r[0]}, v{r[2]}, s[{sM1}:{sM1+1}]")
        a(f"v_cndmask_b32 v{r[1]}, v{r[1]}, v{r[3]}, s[{sM1}:{sM1+1}]")
        for i in range(2): a(f"v_add_f32_dpp v{r[i]}, v{r[i]}, v{r[i]} quad_perm:[1,0,3,2] {DPPF}")
        a(f"v_cndmask_b32 v{dst}, v{r[0]}, v{r[1]}, s[{sM0}:{sM0+1}]")
        a(f"v_cvt_pk_bf16_f32 v{dst}, 0, v{dst}")
        a(f"v_mul_f32 v{dst}, s{sSC}, v{dst}")
        a(f"v_cvt_pk_bf16_f32 v{dst}, 0, v{dst}")
    def rowsum8(*accs):
        for acc in accs:
            for k in range(4): a(f"v_permlane16_swap_b32 v{acc[k]}, v{acc[k+4]}")
        for acc in accs:
            for k in range(4): a(f"v_add_f32 v{acc[k]}, v{acc[k]}, v{acc[k+4]}")
        for acc in accs:
            for k in range(2): a(f"v_permlane32_swap_b32 v{acc[k]}, v{acc[k+2]}")
        for acc in accs:
            for k in range(2): a(f"v_add_f32 v{acc[k]}, v{acc[k]}, v{acc[k+2]}")
    def allreduce(op, regs, tmps):
        for sh in (8, 4, 2, 1):
            for r in regs: a(f"{op}_dpp v{r}, v{r}, v{r} row_ror:{sh} {DPPF}")
        for pl in ("v_permlane16_swap_b32", "v_permlane32_swap_b32"):
            for r, t in zip(regs, tmps): a(f"v_mov_b32 v{t}, v{r}")
            for r, t in zip(regs, tmps): a(f"{pl} v{r}, v{t}")
            for r, t in zip(regs, tmps): a(f"{op} v{r}, v{r}, v{t}")
    def barrier():
        a("s_waitcnt lgkmcnt(0)"); a("s_barrier")
    def tree(t, n, stop=1):
        st_ = n // 2
        while st_ >= stop:
            for k in range(st_): a(f"v_add_f32 v{t[k]}, v{t[k]}, v{t[k+st_]}")
            st_ //= 2
    def q_finish(tmp, q):
        tree(tmp, 16, 2)
        a(f"v_cvt_pk_bf16_f32 v{q[0]}, v{tmp[0]}, v{tmp[1]}")
        a(f"v_mov_b32 v{q[1]}, v{q[0]}")
        a(f"v_permlane16_swap_b32 v{q[0]}, v{q[1]}")
        a(f"v_mov_b32 v{q[2]}, v{q[0]}"); a(f"v_mov_b32 v{q[3]}, v{q[1]}")
        a(f"v_permlane32_swap_b32 v{q[0]}, v{q[2]}")
        a(f"v_permlane32_swap_b32 v{q[1]}, v{q[3]}")
    def o_read(lbase, tmp):
        a("v_lshrrev_b32 v5, 4, v0"); a("v_and_b32 v6, 15, v0")
        if rotw: a(f"v_xor_b32 v6, s{sRW}, v6")
        a("v_lshl_add_u32 v5, v6, 2, v5"); a("v_lshlrev_b32 v5, 2, v5")
        a(f"s_lshr_b32 s{sT}, s{sW}, 2"); a(f"s_lshl_b32 s{sT}, s{sT}, 8"); a(f"s_add_u32 s{sT}, s{sT}, {lbase}")
        a(f"v_add_u32 v5, s{sT}, v5")
        for w in range(4): a(f"ds_read2st64_b32 v[{tmp[2*w]}:{tmp[2*w+1]}], v5 offset0:{4*w} offset1:{4*w+2}")
    def o_finish(tmp, o):
        tree(tmp, 8)
        a(f"v_cvt_pk_bf16_f32 v{o[0]}, v{tmp[0]}, 0")
        a(f"v_cvt_pk_bf16_f32 v{o[1]}, 0, v{tmp[0]}")
    def bump():
        st["tgt"] += burst; issue_upto(int(st["tgt"]))
    def max_write(m, srcs, off):
        if len(srcs) == 1: a(f"v_mov_b32 v{m}, v{srcs[0]}")
        else:
            a(f"v_max3_f32 v{m}, v{srcs[0]}, v{srcs[1]}, v{srcs[2]}"); a(f"v_max_f32 v{m}, v{m}, v{srcs[3]}")
        allreduce("v_max_f32", [m], [5])
        a(f"s_lshl_b32 s{sT}, s{sW}, 2"); a(f"v_mov_b32 v5, s{sT}")
        a(f"ds_write_b32 v5, v{m} offset:{L_MX + off}")
    def max_read(t, off):
        a("v_mov_b32 v6, 0")
        for k in range(2): a(f"ds_read_b128 v[{t[4*k]}:{t[4*k+3]}], v6 offset:{L_MX + off + 16*k}")
    def max_finish(m, t, pairs, off):
        a(f"v_max3_f32 v{m}, v{t[0]}, v{t[1]}, v{t[2]}"); a(f"v_max3_f32 v{m}, v{m}, v{t[3]}, v{t[4]}")
        a(f"v_max3_f32 v{m}, v{m}, v{t[5]}, v{t[6]}"); a(f"v_max_f32 v{m}, v{m}, v{t[7]}")
        for lo, hi in pairs: a(f"v_sub_f32 v{lo}, v{lo}, v{m}")
        for lo, hi in pairs: a(f"v_mul_f32 v{lo}, s{sL2E}, v{lo}")
        for lo, hi in pairs: a(f"v_exp_f32 v{lo}, v{lo}")
        if len(pairs) == 1: a(f"v_mov_b32 v7, v{pairs[0][0]}")
        else:
            a(f"v_add_f32 v7, v{pairs[0][0]}, v{pairs[1][0]}"); a(f"v_add_f32 v8, v{pairs[2][0]}, v{pairs[3][0]}"); a("v_add_f32 v7, v7, v8")
        for lo, hi in pairs: a(f"v_cvt_pk_bf16_f32 v{hi}, 0, v{lo}")
        for lo, hi in pairs: a(f"v_cvt_pk_bf16_f32 v{lo}, v{lo}, 0")
        allreduce("v_add_f32", [7], [8])
        a(f"s_lshl_b32 s{sT}, s{sW}, 2"); a(f"v_mov_b32 v5, s{sT}")
        a(f"ds_write_b32 v5, v7 offset:{L_LS + off}")

    a("v_lshrrev_b32 v5, 4, v0"); a("v_and_b32 v6, 15, v0")
    a("v_and_b32 v7, 1, v5"); a("v_lshlrev_b32 v7, 2, v7"); a("v_and_b32 v5, 2, v5"); a("v_or_b32 v5, v5, v7")
    a("v_lshl_add_u32 v5, v6, 3, v5"); a("v_lshlrev_b32 v5, 2, v5")
    a(f"s_lshl_b32 s{sT}, s{sW}, 9")
    a(f"v_add_u32 v{vPW}, s{sT}, v5")
    a(f"s_cmp_lt_u32 s{sW}, 4"); a(f"s_cselect_b32 s{sT}, s{sT}, {OOB >> 1}")
    a(f"v_add_u32 v{vY}, s{sT}, v5"); a(f"v_lshlrev_b32 v{vY}, 1, v{vY}")
    a(f"s_lshl_b32 s{sWO}, s{sH}, 17"); a(f"s_lshr_b32 s{sT}, s{sW}, 2"); a(f"s_lshl_b32 s{sT}, s{sT}, 16")
    a(f"s_add_u32 s{sWO}, s{sWO}, s{sT}"); a(f"s_and_b32 s{sT}, s{sW}, 3"); a(f"s_lshl_b32 s{sT}, s{sT}, 8")
    a(f"s_add_u32 s{sWO}, s{sWO}, s{sT}")
    if rotw:
        a(f"s_mul_i32 s{sRW}, s{sH}, {rotw}"); a(f"s_and_b32 s{sRW}, s{sRW}, 15")
        a(f"s_lshl_b32 s{sT}, s{sRW}, 12"); a(f"s_or_b32 s{sWO}, s{sWO}, s{sT}")
    a(f"s_mov_b32 s{sM1}, 0xcccccccc"); a(f"s_mov_b32 s{sM1+1}, 0xcccccccc")
    a(f"s_mov_b32 s{sM0}, 0xaaaaaaaa"); a(f"s_mov_b32 s{sM0+1}, 0xaaaaaaaa")
    a(f"s_mov_b32 s{sSC}, 0x3db504f3"); a(f"s_mov_b32 s{sL2E}, 0x3fb8aa3b")
    qacc = [partB[0:8], partB[8:16], partA[0:8], partA[8:16]]
    for q in qacc: zero(q)
    wait_for(ixB); a(f"v_lshlrev_b32 v{XB[1]}, 16, v{XB[0]}")
    for i in range(2):
        wait_for(iw[i])
        issue_upto(i)
        for b in range(2): dots(wr[i], qacc[b], XB[0], XB[1], 2 * b + i)
    wait_for(ixA); a(f"v_lshlrev_b32 v{XA[1]}, 16, v{XA[0]}")
    for i in range(2):
        wait_for(iw[2 + i])
        issue_upto(2 + i)
        for b in range(2): dots(wr[2 + i], qacc[2 + b], XA[0], XA[1], 2 * b + i)
    free.extend(wsl)
    rowsum8(*qacc)
    for idx, q in enumerate(qacc):
        br = 1 if idx < 2 else 0; b = idx & 1
        a(f"ds_write_b64 v{vPW}, v[{q[0]}:{q[1]}] offset:{L_QP + (br * 2 + b) * 4096}")
    barrier()
    a(f"s_lshr_b32 s{sT}, s{sW}, 1"); a(f"s_lshl_b32 s{sT}, s{sT}, 12"); a(f"s_and_b32 s{sT2}, s{sW}, 1"); a(f"s_lshl_b32 s{sT2}, s{sT2}, 8")
    a(f"s_add_u32 s{sT}, s{sT}, s{sT2}")
    a("v_lshlrev_b32 v5, 2, v0"); a(f"v_add_u32 v5, s{sT}, v5")
    t = partB
    for w in range(4): a(f"ds_read2st64_b32 v[{t[2*w]}:{t[2*w+1]}], v5 offset0:{L_QP//256 + 4*w} offset1:{L_QP//256 + 4*w+2}")
    a(f"s_mul_i32 s{sTAG}, s{sTAG}, 0x9e3779b1"); a(f"s_add_u32 s{sTAG}, s{sTAG}, 0x7f4a7c15")
    a(f"v_mov_b32 v{vTAG}, s{sTAG}")
    a(f"s_lshr_b32 s{sT}, s{sW}, 1"); a(f"s_lshl_b32 s{sT}, s{sT}, 5"); a(f"s_add_u32 s{sT}, s{sT}, s{sJ}")
    a(f"s_lshl_b32 s{sT}, s{sT}, 3"); a(f"s_add_u32 s{sT}, s{sT}, s{sX}"); a(f"s_lshl_b32 s{sT}, s{sT}, 10")
    a(f"s_lshl_b32 s{sT2}, s{sT2}, 1"); a(f"s_add_u32 s{sT}, s{sT}, s{sT2}"); a(f"s_add_u32 s{sT}, s{sT}, {WS_Q}")
    a("v_lshlrev_b32 v5, 3, v0")
    a("s_waitcnt lgkmcnt(0)")
    tree(t, 8)
    a(f"v_mov_b32 v{t[1]}, v{vTAG}")
    if "noq" not in diag: last_store["i"] = vmem(f"buffer_store_dwordx2 v[{t[0]}:{t[1]}], v5, {SRD('ws')}, s{sT} offen sc1")
    a(f"s_lshl_b32 s{sWQ}, s{sB}, 5"); a(f"s_add_u32 s{sWQ}, s{sWQ}, s{sH}"); a(f"s_lshl_b32 s{sWQ}, s{sWQ}, 3")
    a(f"s_add_u32 s{sWQ}, s{sWQ}, s{sW}"); a(f"s_lshl_b32 s{sWQ}, s{sWQ}, 10")
    zero(accX); zero(accB)
    stamp()
    issue_upto(qpos + 1 + dmin)
    eB, eA = ("qB", 0), ("qA", 0)
    rB, rA = RING0 + 4 * slot[eB], RING0 + 4 * slot[eA]
    wait_for(vidx[eA])
    a(f"s_mov_b32 s{sCNT}, 0")
    a.label("L_qchk")
    a(f"v_cmp_ne_u32 vcc, v{rB+1}, v{vTAG}"); a(f"v_cmp_ne_u32 s[{sST}:{sST+1}], v{rB+3}, v{vTAG}"); a(f"s_or_b64 vcc, vcc, s[{sST}:{sST+1}]")
    a(f"v_cmp_ne_u32 s[{sST}:{sST+1}], v{rA+1}, v{vTAG}"); a(f"s_or_b64 vcc, vcc, s[{sST}:{sST+1}]")
    a(f"v_cmp_ne_u32 s[{sST}:{sST+1}], v{rA+3}, v{vTAG}"); a(f"s_or_b64 vcc, vcc, s[{sST}:{sST+1}]")
    a("s_cbranch_scc0 L_qok" if "noq" not in diag else "s_branch L_qok")
    a(qload("qB", rB)); a(qload("qA", rA))
    a(f"s_add_u32 s{sCNT}, s{sCNT}, 1")
    a(f"s_cmp_lt_u32 s{sCNT}, 0x20000")
    a("s_waitcnt vmcnt(0)")
    a("s_cbranch_scc1 L_qchk")
    a.label("L_qok")
    a(f"v_mov_b32 v{rB+1}, v{rB+2}"); a(f"v_mov_b32 v{rA+1}, v{rA+2}")
    a("v_lshlrev_b32 v5, 3, v0"); a(f"s_lshl_b32 s{sT}, s{sW}, 9"); a(f"v_add_u32 v5, s{sT}, v5")
    a(f"ds_write_b64 v5, v[{rB}:{rB+1}] offset:{L_QB}"); a(f"ds_write_b64 v5, v[{rA}:{rA+1}] offset:{L_QA}")
    barrier()
    release(eB); release(eA)
    a("v_lshrrev_b32 v5, 4, v0"); a("v_and_b32 v6, 15, v0")
    a("v_lshlrev_b32 v6, 5, v6"); a("v_lshl_add_u32 v5, v5, 3, v6")
    for w in range(8): a(f"ds_read_b64 v[{partB[2*w]}:{partB[2*w+1]}], v5 offset:{L_QB + w*512}")
    for w in range(8): a(f"ds_read_b64 v[{partA[2*w]}:{partA[2*w+1]}], v5 offset:{L_QA + w*512}")
    st["tgt"] = float(st["ip"] - 1) + 1
    issue_upto(int(st["tgt"]))
    a("s_waitcnt lgkmcnt(0)")
    q_finish(partB, qB); q_finish(partA, qA)
    stamp()

    steps = []
    ready = {"kB": True, "kA": True, "vA": False, "vB": False, "woA": False, "woB": False}
    pending = []; cnt = {n: 0 for n in ready}; tot = {"kB": 64, "vB": 64}
    def push(e):
        steps.append(("c", e)); cnt[e[0]] += 1
        n, i = e
        if n in ("kB", "kA") and i % 16 == 15: steps.append(("rs", n, i // 16))
        if cnt[n] != tot.get(n, 16): return
        if n == "kA": steps.append(("op", "maxA")); ready["vA"] = True
        if n in ("vA", "kB") and cnt["vA"] == 16 and cnt["kB"] == 64:
            steps.append(("op", "mid")); ready["woA"] = ready["vB"] = True
        if n == "woA": steps.append(("op", "yA"))
        if n == "vB": steps.append(("op", "oB")); ready["woB"] = True
        if n == "woB": steps.append(("op", "yB"))
    def drain():
        again = True
        while again:
            again = False
            for e in list(pending):
                if ready[e[0]]:
                    pending.remove(e); push(e); again = True; break
    for e in issue:
        if e[0] in ("qB", "qA"): continue
        if ready[e[0]] and not any(p[0] == e[0] for p in pending):
            push(e); drain()
        else: pending.append(e)
    drain(); assert not pending

    YA = [qA[0], qA[1], qA[2], qA[3]]
    ML = [qB[0], qB[1], qB[2], qB[3]]
    def y_exchange(lb, br, dst):
        rowsum8(accX)
        a(f"ds_write_b64 v{vPW}, v[{accX[0]}:{accX[1]}] offset:{lb}")
        barrier()
        a(f"v_xor_b32 v5, 0x800, v{vPW}")
        a(f"ds_read_b64 v[6:7], v5 offset:{lb}")
        if br == 0:
            t = partA
            a("v_mov_b32 v8, 0")
            for k in range(4): a(f"ds_read_b128 v[{t[4*k]}:{t[4*k+3]}], v8 offset:{L_LS + 16*k}")
            bump()
        a(f"v_mov_b32 v{dst[3]}, v{vTAG}")
        a("s_waitcnt lgkmcnt(0)")
        a(f"v_add_f32 v{dst[2]}, v{accX[1]}, v7"); a(f"v_add_f32 v{dst[0]}, v{accX[0]}, v6")
        a(f"v_mov_b32 v{dst[1]}, v{vTAG}")
        if br == 0:
            tree(t[0:8], 8); tree(t[8:16], 8)
            a("v_cmp_eq_u32 vcc, 0, v0")
            a(f"v_cndmask_b32 v{ML[0]}, v{vMB}, v{vMA}, vcc"); a(f"v_cndmask_b32 v{ML[2]}, v{t[8]}, v{t[0]}, vcc")
            a(f"v_mov_b32 v{ML[1]}, v{vTAG}"); a(f"v_mov_b32 v{ML[3]}, v{vTAG}")
    def y_store(br, src):
        if br == 0 and "noast" in diag: return
        a(f"s_lshl_b32 s{sOFF}, s{sP}, 12"); a(f"s_add_u32 s{sOFF}, s{sOFF}, {WS_Y + br * 256 * 4096}")
        last_store["i"] = vmem(f"buffer_store_dwordx4 v[{src[0]}:{src[3]}], v{vY}, {SRD('ws')}, s{sOFF} offen sc1")
        if br == 0:
            a(f"s_lshl_b32 s{sT}, s{sP}, 7"); a(f"s_add_u32 s{sT}, s{sT}, {WS_ML}")
            a(f"s_cmp_eq_u32 s{sW}, 0"); a(f"s_cselect_b32 s{sT}, s{sT}, {OOB}")
            a("v_lshlrev_b32 v5, 15, v0"); a(f"v_mov_b32 v6, {OOB}")
            a("v_cmp_gt_u32 vcc, 2, v0"); a("v_cndmask_b32 v5, v6, v5, vcc")
            vmem(f"buffer_store_dwordx4 v[{ML[0]}:{ML[3]}], v5, {SRD('ws')}, s{sT} offen sc1")
    apub = {"have": False, "done": False}

    for s in steps:
        if s[0] == "c":
            e = s[1]; n, i = e
            st["tgt"] = max(pos[e] + dmin, st["tgt"] + decay)
            issue_upto(int(st["tgt"]))
            assert e in slot, ("deadlock", e)
            if apub["have"] and not apub["done"] and st["ip"] >= len(issue) - apos:
                y_store(0, YA); apub["done"] = True
                st["tgt"] += aburst; issue_upto(int(st["tgt"]))
            if n == "kB": klike(e, qB, partB[i % 16])
            elif n == "kA": klike(e, qA, partA[i])
            elif n == "vA": vlike(e, accX, PA[0], PA[1], i)
            elif n == "vB": vlike(e, accB, PB[2 * (i // 16)], PB[2 * (i // 16) + 1], i % 16)
            else: vlike(e, accX, OX[0], OX[1], i)
        elif s[0] == "rs":
            if s[1] == "kB": reduce_scatter16(partB, PB[2 * s[2]])
            else: reduce_scatter16(partA, PA[0])
        else:
            op = s[1]
            if op == "maxA":
                max_write(vMA, [PA[0]], 0)
                barrier()
                max_read(partA, 0)
                bump()
                a("s_waitcnt lgkmcnt(0)")
                max_finish(vMA, partA, [(PA[0], PA[1])], 0)
            elif op == "mid":
                max_write(vMB, [PB[0], PB[2], PB[4], PB[6]], 32)
                rowsum8(accX)
                a(f"ds_write_b64 v{vPW}, v[{accX[0]}:{accX[1]}] offset:{L_OA}")
                barrier()
                max_read(partA, 32)
                o_read(L_OA, partB)
                bump()
                zero(accX)
                a("s_waitcnt lgkmcnt(0)")
                max_finish(vMB, partA, [(PB[2*r], PB[2*r+1]) for r in range(4)], 32)
                o_finish(partB, OX)
                stamp()
            elif op == "yA":
                y_exchange(L_YA, 0, YA); apub["have"] = True
                if not lateA:
                    y_store(0, YA); apub["done"] = True
            elif op == "oB":
                stamp()
                rowsum8(accB)
                a(f"ds_write_b64 v{vPW}, v[{accB[0]}:{accB[1]}] offset:{L_OB}")
                zero(accX)
                barrier()
                stamp()
                o_read(L_OB, partB)
                a("s_waitcnt lgkmcnt(0)")
                o_finish(partB, OX)
            elif op == "yB":
                y_exchange(L_YB, 1, accX); y_store(1, accX)
                stamp()
    assert st["ip"] == len(issue) and apub["done"]

    if "nored" in diag: a("s_branch L_fin")
    a("s_cmp_ge_u32 s2, 128")
    a("s_cbranch_scc1 L_fin")
    a("v_lshrrev_b32 v5, 2, v0")
    a(f"s_lshl_b32 s{sT}, s{sW}, 4"); a(f"v_add_u32 v5, s{sT}, v5")
    a("v_and_b32 v6, 3, v0")
    a("v_lshlrev_b32 v6, 5, v6"); a("v_lshl_add_u32 v6, v5, 12, v6")
    a("v_lshlrev_b32 v5, 7, v5")
    a(f"s_lshr_b32 s{sT}, s2, 5")
    a(f"s_lshl_b32 s{sOFF}, s{sT}, 19"); a(f"s_and_b32 s{sT2}, s2, 31"); a(f"s_lshl_b32 s{sT2}, s{sT2}, 7")
    a(f"s_add_u32 s{sOFF}, s{sOFF}, s{sT2}")
    if WS_Y: a(f"s_add_u32 s{sOFF}, s{sOFF}, {WS_Y}")
    a(f"s_lshl_b32 s{sT}, s{sT}, 14"); a(f"s_add_u32 s{sT}, s{sT}, {WS_ML}")
    a(f"s_mov_b32 s{sCNT}, 0")
    sMY, sMM = 76, 78
    a(f"s_mov_b64 s[{sMY}:{sMY+1}], -1"); a(f"s_mov_b64 s[{sMM}:{sMM+1}], -1")
    a.label("L_poll")
    a(f"s_mov_b64 exec, s[{sMY}:{sMY+1}]")
    a("s_cbranch_execz L_poll_m")
    a(f"buffer_load_dwordx4 v[24:27], v6, {SRD('ws')}, s{sOFF} offen sc1")
    a(f"buffer_load_dwordx4 v[28:31], v6, {SRD('ws')}, s{sOFF} offen offset:16 sc1")
    a.label("L_poll_m")
    a(f"s_mov_b64 exec, s[{sMM}:{sMM+1}]")
    a("s_cbranch_execz L_poll_w")
    a(f"buffer_load_dwordx4 v[40:43], v5, {SRD('ws')}, s{sT} offen sc1")
    a.label("L_poll_w")
    a("s_mov_b64 exec, -1")
    a(f"s_add_u32 s{sCNT}, s{sCNT}, 1")
    a("s_waitcnt vmcnt(0)")
    a(f"v_xor_b32 v7, v25, v{vTAG}"); a(f"v_xor_b32 v8, v27, v{vTAG}"); a(f"v_xor_b32 v9, v29, v{vTAG}")
    a("v_or3_b32 v7, v7, v8, v9")
    a(f"v_xor_b32 v8, v31, v{vTAG}"); a(f"v_xor_b32 v9, v41, v{vTAG}"); a(f"v_xor_b32 v10, v43, v{vTAG}")
    a("v_or_b32 v7, v7, v8"); a("v_or_b32 v9, v9, v10")
    a(f"v_cmp_ne_u32 s[{sMY}:{sMY+1}], 0, v7"); a(f"v_cmp_ne_u32 s[{sMM}:{sMM+1}], 0, v9")
    a("s_nop 1")
    a(f"s_or_b64 vcc, s[{sMY}:{sMY+1}], s[{sMM}:{sMM+1}]")
    a("s_cbranch_scc0 L_poll_ok")
    if slp: a(f"s_sleep {slp}")
    a(f"s_cmp_lt_u32 s{sCNT}, 0x20000")
    a("s_cbranch_scc1 L_poll")
    a.label("L_poll_ok")
    y = [24, 26, 28, 30]
    a(f"v_max_f32_dpp v7, v40, v40 row_ror:4 {DPPF}")
    a(f"v_max_f32_dpp v7, v7, v7 row_ror:8 {DPPF}")
    a("v_sub_f32 v7, v40, v7"); a(f"v_mul_f32 v7, s{sL2E}, v7"); a("v_exp_f32 v7, v7")
    a("v_mul_f32 v8, v7, v42")
    a(f"v_add_f32_dpp v8, v8, v8 row_ror:4 {DPPF}")
    a(f"v_add_f32_dpp v8, v8, v8 row_ror:8 {DPPF}")
    a("v_rcp_f32 v8, v8"); a("v_mul_f32 v7, v7, v8")
    for k in range(4): a(f"v_mul_f32 v{y[k]}, v7, v{y[k]}")
    for k in range(2): a(f"v_add_f32_dpp v{y[k]}, v{y[k]}, v{y[k]} row_ror:8 row_mask:0xf bank_mask:0x3")
    for k in range(2): a(f"v_add_f32_dpp v{y[k]}, v{y[k+2]}, v{y[k+2]} row_ror:8 row_mask:0xf bank_mask:0xc")
    a(f"v_add_f32_dpp v{y[0]}, v{y[0]}, v{y[0]} row_shl:4 row_mask:0xf bank_mask:0x5")
    a(f"v_add_f32_dpp v{y[0]}, v{y[1]}, v{y[1]} row_shr:4 row_mask:0xf bank_mask:0xa")
    a("v_and_b32 v5, 3, v0"); a("v_lshlrev_b32 v5, 2, v5")
    a("v_bfe_u32 v6, v0, 3, 1"); a("v_lshl_add_u32 v5, v6, 1, v5")
    a("v_bfe_u32 v6, v0, 2, 1"); a("v_add_u32 v5, v6, v5")
    a(f"v_mov_b32 v9, v{y[0]}")
    a(f"v_permlane16_swap_b32 v{y[0]}, v9"); a(f"v_add_f32 v{y[0]}, v{y[0]}, v9")
    a(f"v_mov_b32 v9, v{y[0]}")
    a(f"v_permlane32_swap_b32 v{y[0]}, v9"); a(f"v_add_f32 v{y[0]}, v{y[0]}, v9")
    a("v_lshlrev_b32 v5, 2, v5")
    a(f"s_lshl_b32 s{sT}, s{sW}, 6"); a(f"v_add_u32 v5, s{sT}, v5")
    a(f"ds_write_b32 v5, v{y[0]} offset:{L_RED}")
    barrier()
    a(f"s_cmp_lg_u32 s{sW}, 0")
    a("s_cbranch_scc1 L_fin")
    a("v_and_b32 v5, 7, v0"); a("v_lshlrev_b32 v6, 3, v5")
    t = partB
    for w in range(8): a(f"ds_read_b64 v[{t[2*w]}:{t[2*w+1]}], v6 offset:{L_RED + w*64}")
    a(f"s_bfe_u32 s{sT}, s2, 0x10005"); a(f"s_lshl_b32 s{sT}, s{sT}, 11")
    a(f"s_lshr_b32 s{sT2}, s2, 6"); a(f"s_lshl_b32 s{sT2}, s{sT2}, 10"); a(f"s_add_u32 s{sT}, s{sT}, s{sT2}")
    a(f"s_and_b32 s{sT2}, s2, 31"); a(f"s_lshl_b32 s{sT2}, s{sT2}, 5"); a(f"s_add_u32 s{sT}, s{sT}, s{sT2}")
    a("v_lshlrev_b32 v5, 2, v5")
    a("s_waitcnt lgkmcnt(0)")
    tree(t, 16, 2)
    a(f"v_cvt_pk_bf16_f32 v7, v{t[0]}, v{t[1]}")
    a("s_mov_b64 exec, 0xff")
    a(f"buffer_store_dword v7, v5, {SRD('out')}, s{sT} offen")
    a("s_cmp_lg_u32 s2, 64")
    a("s_cbranch_scc1 L_fin")
    a("s_mov_b64 exec, 1")
    a(f"s_mov_b32 s{sT}, {hex(WS_EP)}")
    a(f"buffer_store_dword v{vTAG}, v5, {SRD('ws')}, s{sT} offen sc1")
    a.label("L_fin")
    if stamps:
        a("s_mov_b64 exec, -1")
        stamp()
        assert stampn["n"] == 8, stampn
        a(f"s_lshl_b32 s{sT}, s2, 3"); a(f"s_add_u32 s{sT}, s{sT}, s{sW}"); a(f"s_lshl_b32 s{sT}, s{sT}, 5")
        a(f"s_add_u32 s{sT}, s{sT}, {WS_ST}")
        a("v_lshlrev_b32 v5, 2, v0")
        a("s_mov_b64 exec, 0xff")
        a(f"buffer_store_dword v{vSTAMP}, v5, {SRD('ws')}, s{sT} offen")
    a.label("L_end")
    a("s_endpgm")
    a.raw('.section .rodata,"a"'); a.raw(".p2align 6"); a.raw(f".amdhsa_kernel {NAME}")
    a.raw("  .amdhsa_next_free_vgpr 256"); a.raw(f"  .amdhsa_next_free_sgpr {NSGPR}"); a.raw("  .amdhsa_accum_offset 256")
    a.raw("  .amdhsa_group_segment_fixed_size 0"); a.raw("  .amdhsa_kernarg_size 104"); a.raw("  .amdhsa_user_sgpr_count 2")
    a.raw("  .amdhsa_user_sgpr_kernarg_segment_ptr 1"); a.raw("  .amdhsa_system_sgpr_workgroup_id_x 1"); a.raw(".end_amdhsa_kernel")
    return a.text()

if __name__ == "__main__":
    out = sys.argv[1]
    kw = json.loads(sys.argv[2]) if len(sys.argv) > 2 else {}
    open(out, "w").write(gen(**kw))
```

```python
import re

def _regs(tok, kind):
    tok = tok.strip()
    m = re.fullmatch(r'-?\|?%s(\d+)\|?' % kind, tok)
    if m: return [int(m.group(1))]
    m = re.fullmatch(r'%s\[(\d+):(\d+)\]' % kind, tok)
    if m: return list(range(int(m.group(1)), int(m.group(2)) + 1))
    return []

TRANS = ('v_exp_f32', 'v_rcp_f32', 'v_log_f32', 'v_rsq_f32', 'v_sqrt_f32')

class Ins:
    def __init__(self, text):
        self.text = text
        t = text.split(';')[0].strip()
        self.op = t.split()[0] if t else ''
        rest = t[len(self.op):].strip()
        ops = []; depth = 0; cur = ''
        for ch in rest:
            if ch == '[': depth += 1
            if ch == ']': depth -= 1
            if ch == ',' and depth == 0:
                ops.append(cur.strip()); cur = ''
            else: cur += ch
        if cur.strip(): ops.append(cur.strip())
        self.mods = ''
        if ops:
            parts = ops[-1].split(None, 1)
            ops[-1] = parts[0]
            if len(parts) > 1: self.mods = parts[1]
        self.ops = ops
        op = self.op
        self.is_valu = op.startswith('v_')
        self.is_vmem = op.startswith('buffer_') or op.startswith('global_')
        self.is_ds = op.startswith('ds_')
        self.is_salu = op.startswith('s_')
        self.dpp = op.endswith('_dpp')
        self.base = op[:-4] if self.dpp else op
        self.base = re.sub(r'_e(32|64)$', '', self.base)
        self.is_dot = self.base.startswith('v_dot')
        self.is_trans = self.base in TRANS
        self.is_perm = self.base.startswith('v_permlane')
        self.is_mfma = self.base.startswith('v_mfma')
        self.vw = set(); self.vr = set(); self.sw = set(); self.sr = set(); self.dppr = set(); self.srcc = set()
        def V(t): return set(_regs(t, 'v'))
        def S(t):
            if t == 'vcc': return {'vcc'}
            if t == 'exec': return {'exec'}
            return set(_regs(t, 's'))
        if self.is_valu:
            if self.base.startswith('v_cmp'):
                self.sw |= S(ops[0])
                for o in ops[1:]: self.vr |= V(o); self.sr |= S(o)
            elif self.base in ('v_readfirstlane_b32', 'v_readlane_b32'):
                self.sw |= S(ops[0])
                for o in ops[1:]: self.vr |= V(o); self.sr |= S(o)
            elif self.is_mfma:
                self.vw |= V(ops[0]); self.vr |= V(ops[1]) | V(ops[2]); self.srcc |= V(ops[3])
            elif self.is_perm:
                self.vw |= V(ops[0]) | V(ops[1]); self.vr |= V(ops[0]) | V(ops[1])
            else:
                self.vw |= V(ops[0])
                for o in ops[1:]: self.vr |= V(o); self.sr |= S(o)
                if self.base in ('v_dot2c_f32_bf16', 'v_fmac_f32'):
                    self.srcc |= V(ops[0])
                if self.base == 'v_dot2_f32_bf16':
                    self.srcc |= V(ops[3]); self.vr = V(ops[1]) | V(ops[2])
                if self.dpp:
                    self.dppr |= V(ops[1])
                    self.vr |= V(ops[0])
        elif self.is_vmem:
            if 'load' in op:
                self.vw |= V(ops[0])
                for o in ops[1:]: self.vr |= V(o); self.sr |= S(o)
            else:
                for o in ops: self.vr |= V(o); self.sr |= S(o)
            self.wide_store = ('store' in op) and (op.endswith('x4') or op.endswith('x3'))
            self.store_data = V(ops[0]) if 'store' in op else set()
        elif self.is_ds:
            if 'read' in op:
                self.vw |= V(ops[0])
                for o in ops[1:]: self.vr |= V(o)
            else:
                for o in ops: self.vr |= V(o)
    def states(self):
        if self.op == 's_nop': return int(self.ops[0]) + 1
        return 1

def need(prod, cons):
    n = 0
    if prod.is_mfma:
        if cons.is_mfma:
            if prod.vw & cons.vr: n = max(n, 8)
            if (prod.vw & cons.srcc) and prod.vw != cons.srcc: n = max(n, 6)
            if (prod.vw & cons.vw) and not (prod.vw == cons.srcc): n = max(n, 8)
        elif cons.is_valu or cons.is_vmem or cons.is_ds:
            if prod.vw & (cons.vr | cons.vw | cons.srcc): n = max(n, 8)
            if cons.is_valu and (prod.srcc & cons.vw): n = max(n, 3)
        return n
    if prod.is_valu and cons.is_mfma:
        if prod.vw & (cons.vr | cons.srcc): n = max(n, 3 if prod.is_dot else 2)
        return n
    if prod.is_valu:
        if cons.is_valu:
            if prod.vw & cons.dppr: n = max(n, 2)
            if cons.is_perm and (prod.vw & cons.vr): n = max(n, 2)
            if prod.is_trans and not cons.is_trans and (prod.vw & (cons.vr | cons.srcc)): n = max(n, 1)
            if cons.base in ('v_readfirstlane_b32', 'v_readlane_b32') and (prod.vw & cons.vr): n = max(n, 1)
            if prod.sw & cons.sr: n = max(n, 4 if cons.base == 'v_readlane_b32' else 2)
            if prod.is_dot:
                if cons.base == prod.base:
                    r = cons.vr - (cons.srcc if cons.base == 'v_dot2c_f32_bf16' else set())
                    if prod.vw & r: n = max(n, 3)
                elif prod.vw & (cons.vr | cons.vw | cons.srcc): n = max(n, 3)
        if (cons.is_vmem or cons.is_ds) and prod.is_dot and (prod.vw & (cons.vr | cons.vw)): n = max(n, 3)
        if cons.is_vmem and (prod.sw & cons.sr): n = max(n, 5)
        if cons.is_salu and prod.sw:
            for r in prod.sw:
                nm = r if isinstance(r, str) else None
                if nm and nm in cons.text: n = max(n, 1)
                elif not nm and any(r in _regs(o, 's') for o in cons.ops): n = max(n, 1)
    if prod.is_vmem and getattr(prod, 'wide_store', False):
        if cons.vw & prod.store_data: n = max(n, 2)
    return n

class Asm:
    def __init__(self):
        self.lines = []
        self.hist = []
        self.nops = 0
    def raw(self, s):
        self.lines.append(s)
    def label(self, name):
        self.lines.append(f"{name}:")
    def flush_hazards(self):
        self('s_nop 4')
    def __call__(self, text):
        ins = Ins(text)
        dist = 0; req = 0
        for p in reversed(self.hist[-14:]):
            n = need(p, ins)
            if n - dist > req: req = n - dist
            dist += p.states()
            if dist >= 10: break
        if req > 0:
            nop = Ins(f"s_nop {req - 1}")
            self.lines.append("  " + nop.text); self.hist.append(nop); self.nops += 1
        self.lines.append("  " + text)
        self.hist.append(ins)
    def text(self):
        return "\n".join(self.lines) + "\n"
```

```python
import sys, json
from asmlib import Asm

NAME = "concat_heads__sliding_block_cached__mha_block_cached__decode_kernel"
HEADER = open("concat_heads__sliding_block_cached__mha_block_cached__decode.s.ref").read().split("; Override launch")[0]
DPPF = "row_mask:0xf bank_mask:0xf"

WS_Y = 0
WS_ML = 0x200000
WS_Q = 0x220000
WS_EP = 0x320000
WS_ST = 0x340000
WS_SIZE = 0x400000
OOB = 0x40000000

def gen(F=5, dmin=None, burst=0, stamps=False, pol="nt", shpol="", qpos=26, decay=0.5, rsh=2, diag="",
        relax=4, slp=8, slpthr=16, early=4, apos=0, sub=True, subburst=3, warmred=True, a_span=27, b_start=36):
    if dmin is None: dmin = F - 1
    a = Asm()
    names = ["xA", "kA", "vA", "wqA", "woA", "xB", "kB", "vB", "wqB", "woB", "out", "dbg", "ws"]
    sizes = {"x": 2048, "wq": 4 << 20, "kA": 32 << 20, "vA": 32 << 20, "woA": 4 << 20,
             "kB": 128 << 20, "vB": 128 << 20, "woB": 4 << 20, "out": 4096, "ws": WS_SIZE}
    srd = {n: 8 + 4 * i for i, n in enumerate(sizes)}
    def SRD(n): return f"s[{srd[n]}:{srd[n]+3}]"
    sW, sH, sB, sS, sT = 3, 4, 5, 6, 7
    sX, sJ, sT2, sKB, sKA, sWQ, sWO, sOFF, sP, sTAG, sSC, sL2E, sCNT, sRW = range(48, 62)
    sM1, sM0, sST, sMY, sMM = 62, 64, 66, 68, 70
    sRET = 72
    NSGPR = 96
    vL16, vWo, vPW, vOR = 1, 2, 3, 4
    vSTAMP, vMA, vMB, vTAG = 12, 13, 14, 15
    qB = list(range(16, 20)); qA = list(range(20, 24))
    accB = list(range(24, 28)); accX = list(range(28, 32))
    MK = list(range(32, 36))
    SEL = [list(range(36, 40)), list(range(40, 44))]
    partB = list(range(44, 60)); partA = list(range(60, 76))
    PB = list(range(76, 80)); PA = 80; OX = 81; vY = 82; vYR = 83
    RING0 = 84
    NS = (256 - RING0) // 4
    L_QP = 0
    L_Q, L_OA, L_OB, L_YA, L_YB = [8192 + 4096 * i for i in range(5)]
    L_MX = 8192 + 5 * 4096; L_LS = L_MX + 64; L_RED = L_MX + 256
    LDS = L_RED + 512

    a.raw(HEADER.rstrip("\n"))
    a.raw(f"; @launch grid=(256,1,1) block=(512,1,1) lds={LDS}")
    a.raw('.amdgcn_target "amdgcn-amd-amdhsa--gfx950"')
    a.raw(".text"); a.raw(f".globl {NAME}"); a.raw(".p2align 8"); a.raw(f".type {NAME},@function")
    a.label(NAME)
    a("s_cmp_ge_u32 s2, 256")
    a("s_cbranch_scc1 L_end")
    a(f"s_and_b32 s{sT}, s2, 1"); a(f"s_mul_i32 s{sT}, s{sT}, 40"); a(f"s_add_u32 s{sT2}, s{sT}, 24")
    a(f"s_load_dwordx2 s[{srd['wq']}:{srd['wq']+1}], s[0:1], s{sT2}")
    a(f"s_load_dwordx2 s[{srd['x']}:{srd['x']+1}], s[0:1], s{sT}")
    for n in ["kB", "ws", "kA", "vA", "vB"]:
        a(f"s_load_dwordx2 s[{srd[n]}:{srd[n]+1}], s[0:1], {8 * names.index(n)}")
    if stamps: a(f"s_memrealtime s[{sST}:{sST+1}]")
    if "tailprof" in diag: a("s_memtime s[90:91]")
    stampn = {"n": 1}
    def stamp():
        if not stamps: return
        a(f"s_memrealtime s[{sST}:{sST+1}]"); a("s_waitcnt lgkmcnt(0)")
        a(f"v_writelane_b32 v{vSTAMP}, s{sST}, {stampn['n']}"); stampn["n"] += 1
    a("v_lshrrev_b32 v1, 6, v0")
    a("v_and_b32 v0, 63, v0")
    a(f"v_readfirstlane_b32 s{sW}, v1")
    for n in srd:
        a(f"s_mov_b32 s{srd[n]+2}, {hex(sizes[n])}"); a(f"s_mov_b32 s{srd[n]+3}, 0x20000")
    a(f"s_and_b32 s{sX}, s2, 7"); a(f"s_lshr_b32 s{sJ}, s2, 3")
    a("v_lshrrev_b32 v5, 4, v0"); a("v_and_b32 v6, 15, v0")
    a(f"v_lshlrev_b32 v{vL16}, 4, v0")
    a("v_lshlrev_b32 v7, 4, v6")
    a("v_lshl_add_u32 v9, v5, 15, v7")
    a(f"v_lshl_add_u32 v{vWo}, v5, 10, v7")
    a("v_bfe_u32 v8, v0, 3, 1"); a("v_lshlrev_b32 v8, 10, v8"); a("v_lshl_add_u32 v8, v5, 3, v8")
    a(f"s_lshr_b32 s{sT}, s{sX}, 1"); a(f"s_lshl_b32 s{sT}, s{sT}, 3"); a(f"s_add_u32 s{sT}, s{sT}, s{sW}")
    a(f"s_lshl_b32 s{sRW}, s{sT}, 5")
    a(f"s_lshl_b32 s{sWQ}, s{sT}, 17"); a(f"s_lshl_b32 s{sT2}, s{sJ}, 8"); a(f"s_add_u32 s{sWQ}, s{sWQ}, s{sT2}")
    a(f"s_lshr_b32 s{sH}, s{sJ}, 3"); a(f"s_lshl_b32 s{sT}, s{sX}, 2"); a(f"s_add_u32 s{sH}, s{sH}, s{sT}")
    a(f"s_bfe_u32 s{sB}, s{sJ}, 0x10002"); a(f"s_and_b32 s{sS}, s{sJ}, 3")
    a(f"s_lshl_b32 s{sP}, s{sB}, 5"); a(f"s_add_u32 s{sP}, s{sP}, s{sH}")
    a(f"s_lshl_b32 s{sP}, s{sP}, 2"); a(f"s_add_u32 s{sP}, s{sP}, s{sS}")
    a(f"s_and_b32 s{sT2}, s{sW}, 3"); a(f"s_lshl_b32 s{sT2}, s{sT2}, 1"); a(f"s_lshr_b32 s{sT}, s{sW}, 2")
    a(f"s_add_u32 s{sT2}, s{sT2}, s{sT}"); a(f"s_lshl_b32 s{sT2}, s{sT2}, 10")
    a(f"s_lshl_b32 s{sKB}, s{sP}, 19"); a(f"s_add_u32 s{sKB}, s{sKB}, s{sT2}")
    a(f"s_lshr_b32 s{sT}, s2, {rsh}"); a(f"s_and_b32 s{sT}, s{sT}, 63"); a(f"s_lshl_b32 s{sT}, s{sT}, 13")
    a(f"s_or_b32 s{sKB}, s{sKB}, s{sT}")
    a(f"s_lshl_b32 s{sKA}, s{sB}, 3"); a(f"s_add_u32 s{sKA}, s{sKA}, s{sX}")
    a(f"s_lshl_b32 s{sKA}, s{sKA}, 4"); a(f"s_add_u32 s{sKA}, s{sKA}, s{sS}"); a(f"s_add_u32 s{sKA}, s{sKA}, 12")
    a(f"s_lshl_b32 s{sKA}, s{sKA}, 17"); a(f"s_add_u32 s{sKA}, s{sKA}, s{sT2}")
    a(f"s_bfe_u32 s{sT}, s2, 0x40002"); a(f"s_lshl_b32 s{sT}, s{sT}, 13")
    a(f"s_or_b32 s{sKA}, s{sKA}, s{sT}")
    a(f"s_mov_b32 s{sCNT}, {hex(WS_EP)}")
    a("s_waitcnt lgkmcnt(0)")
    if stamps: a(f"v_writelane_b32 v{vSTAMP}, s{sST}, 0")

    vm = {"n": 0}; done = {"upto": 0}; last_store = {"i": -100}
    def vmem(text):
        a(text); vm["n"] += 1; return vm["n"] - 1
    def wait_for(idx):
        if idx < done["upto"]: return
        n = vm["n"] - 1 - idx
        assert n <= 63
        a(f"s_waitcnt vmcnt({n})"); done["upto"] = idx + 1
    def limit(f):
        tgt = vm["n"] - f
        if tgt >= last_store["i"] and vm["n"] - last_store["i"] <= f + relax - 1: tgt = last_store["i"] - 1
        if tgt >= 0: wait_for(tgt)

    free = list(range(NS))
    wsl = [free.pop(0) for _ in range(4)]
    wr = [RING0 + 4 * s for s in wsl]
    ix = vmem(f"buffer_load_dwordx2 v[10:11], v8, {SRD('x')}, s{sRW} offen")
    iw = []
    for i in range(4):
        if i: a(f"s_add_u32 s{sOFF}, s{sWQ}, {i * 8192}")
        iw.append(vmem(f"buffer_load_dwordx4 v[{wr[i]}:{wr[i]+3}], v9, {SRD('wq')}, s{sOFF if i else sWQ} offen {pol}"))

    P = [("kB", i) for i in range(64)] + [("vB", i) for i in range(64)]
    issue = []
    after = {}
    for i in range(16):
        after.setdefault(2 * i, []).append(("kA", i))
        after.setdefault(32 + 2 * i, []).append(("vA", i))
        if sub:
            after.setdefault(64 + (i * a_span) // 16, []).append(("woA", i))
            after.setdefault(64 + b_start + (i * (63 - b_start)) // 16, []).append(("woB", i))
        else:
            after.setdefault(64 + 2 * i, []).append(("woA", i))
            after.setdefault(96 + 2 * i, []).append(("woB", i))
    for i, e in enumerate(P):
        issue.append(e); issue += after.get(i, [])
    assert issue[-1][0] == "vB"
    issue.insert(qpos, ("q", 0))
    pos = {e: i for i, e in enumerate(issue)}
    slot = {}; vidx = {}
    st = {"ip": 0, "tgt": 0.0}
    def qload(r):
        return f"buffer_load_dwordx4 v[{r}:{r+3}], v{vL16}, {SRD('ws')}, s{sWQ} offen sc1"
    WB0 = NS - 16
    def pick(n, i):
        if sub:
            if n in ("woA", "woB"):
                return WB0 + i if (WB0 + i) in free else None
            cand = [s for s in free if s < WB0 or st["ip"] < 56]
            return cand[0] if cand else None
        return free[0] if free else None
    def issue_one(lim=True):
        e = issue[st["ip"]]; n, i = e
        s = pick(n, i); free.remove(s); slot[e] = s
        r = RING0 + 4 * s
        if n == "q":
            if lim: limit(F)
            vidx[e] = vmem(qload(r))
        else:
            if n in ("kB", "vB"): base, off, va, pl = sKB, i * 8192, vL16, pol
            elif n in ("kA", "vA"): base, off, va, pl = sKA, i * 8192, vL16, shpol
            else: base, off, va, pl = sWO, i * 4096, vWo, shpol
            if off:
                a(f"s_xor_b32 s{sOFF}, s{base}, {off}"); so = sOFF
            else: so = base
            if lim: limit(F)
            vidx[e] = vmem(f"buffer_load_dwordx4 v[{r}:{r+3}], v{va}, {SRD(n)}, s{so} offen {pl}")
        st["ip"] += 1
    def issue_upto(t):
        while st["ip"] <= t and st["ip"] < len(issue) and pick(*issue[st["ip"]]) is not None:
            issue_one()
    def release(e): free.append(slot.pop(e))
    for _ in range(early): issue_one(False)
    a(f"s_load_dword s{sTAG}, s[{srd['ws']}:{srd['ws']+1}], s{sCNT}")
    for n in ["woA", "woB", "out"]:
        a(f"s_load_dwordx2 s[{srd[n]}:{srd[n]+1}], s[0:1], {8 * names.index(n)}")

    selk = {"k": 0}
    def R(regs): return f"v[{regs[0]}:{regs[-1]}]"
    def sel_bcast(p, lane):
        s = SEL[selk["k"]]; selk["k"] ^= 1
        for k in range(4): a(f"v_and_b32_dpp v{s[k]}, v{p}, v{MK[k]} row_newbcast:{lane} {DPPF}")
        return s
    def mfma(acc, s, r, first):
        a(f"v_mfma_f32_16x16x32_bf16 {R(acc)}, {R(s)}, v[{r}:{r+3}], {'0' if first else R(acc)}")
    def vlike(e, acc, p, lane, first):
        s = sel_bcast(p, lane)
        wait_for(vidx[e]); mfma(acc, s, RING0 + 4 * slot[e], first); release(e)
    def klike(e, q, dst):
        r = RING0 + 4 * slot[e]
        wait_for(vidx[e])
        a(f"v_dot2_f32_bf16 v{dst}, v{r}, v{q[0]}, 0")
        for k in range(1, 4): a(f"v_dot2_f32_bf16 v{dst}, v{r+k}, v{q[k]}, v{dst}")
        release(e)
    def reduce_scatter16(r, dst):
        for i in range(8): a(f"v_add_f32_dpp v{r[i]}, v{r[i]}, v{r[i]} row_ror:8 row_mask:0xf bank_mask:0x3")
        for i in range(8): a(f"v_add_f32_dpp v{r[i]}, v{r[i+8]}, v{r[i+8]} row_ror:8 row_mask:0xf bank_mask:0xc")
        for i in range(4): a(f"v_add_f32_dpp v{r[i]}, v{r[i]}, v{r[i]} row_half_mirror row_mask:0xf bank_mask:0x5")
        for i in range(4): a(f"v_add_f32_dpp v{r[i]}, v{r[i+4]}, v{r[i+4]} row_half_mirror row_mask:0xf bank_mask:0xa")
        for i in range(4): a(f"v_add_f32_dpp v{r[i]}, v{r[i]}, v{r[i]} quad_perm:[2,3,0,1] {DPPF}")
        a(f"v_cndmask_b32 v{r[0]}, v{r[0]}, v{r[2]}, s[{sM1}:{sM1+1}]")
        a(f"v_cndmask_b32 v{r[1]}, v{r[1]}, v{r[3]}, s[{sM1}:{sM1+1}]")
        for i in range(2): a(f"v_add_f32_dpp v{r[i]}, v{r[i]}, v{r[i]} quad_perm:[1,0,3,2] {DPPF}")
        a(f"v_cndmask_b32 v{dst}, v{r[0]}, v{r[1]}, s[{sM0}:{sM0+1}]")
        a(f"v_cvt_pk_bf16_f32 v{dst}, 0, v{dst}")
        a(f"v_mul_f32 v{dst}, s{sSC}, v{dst}")
        a(f"v_cvt_pk_bf16_f32 v{dst}, 0, v{dst}")
    def allreduce(op, regs, tmps):
        for sh in (8, 4, 2, 1):
            for r in regs: a(f"{op}_dpp v{r}, v{r}, v{r} row_ror:{sh} {DPPF}")
        for pl in ("v_permlane16_swap_b32", "v_permlane32_swap_b32"):
            for r, t in zip(regs, tmps): a(f"v_mov_b32 v{t}, v{r}")
            for r, t in zip(regs, tmps): a(f"{pl} v{r}, v{t}")
            for r, t in zip(regs, tmps): a(f"{op} v{r}, v{r}, v{t}")
    def barrier():
        a("s_waitcnt lgkmcnt(0)"); a("s_barrier")
    def tree(t, n, stop=1):
        st_ = n // 2
        while st_ >= stop:
            for k in range(st_): a(f"v_add_f32 v{t[k]}, v{t[k]}, v{t[k+st_]}")
            st_ //= 2
    def part_write(acc, lb):
        a("s_mov_b64 exec, 0xffffffff")
        a(f"ds_write_b128 v{vPW}, {R(acc)} offset:{lb}")
        a("s_mov_b64 exec, -1")
    def q_finish(tmp, q):
        tree(tmp, 8, 2)
        a(f"v_cvt_pk_bf16_f32 v{q[0]}, v{tmp[0]}, v{tmp[1]}")
        a(f"v_mov_b32 v{q[1]}, v{q[0]}")
        a(f"v_permlane16_swap_b32 v{q[0]}, v{q[1]}")
        a(f"v_mov_b32 v{q[2]}, v{q[0]}"); a(f"v_mov_b32 v{q[3]}, v{q[1]}")
        a(f"v_permlane32_swap_b32 v{q[0]}, v{q[2]}")
        a(f"v_permlane32_swap_b32 v{q[1]}, v{q[3]}")
    def o_read(lb, tmp):
        for w in range(4): a(f"ds_read2st64_b32 v[{tmp[2*w]}:{tmp[2*w+1]}], v{vOR} offset0:{lb//256 + 4*w} offset1:{lb//256 + 4*w+2}")
    def o_finish(tmp):
        tree(tmp, 8)
        a(f"v_cvt_pk_bf16_f32 v{OX}, v{tmp[0]}, v{tmp[0]}")
    def bump():
        st["tgt"] += burst; issue_upto(int(st["tgt"]))
    def max_write(m, srcs, off):
        if len(srcs) == 1: a(f"v_mov_b32 v{m}, v{srcs[0]}")
        else:
            a(f"v_max3_f32 v{m}, v{srcs[0]}, v{srcs[1]}, v{srcs[2]}"); a(f"v_max_f32 v{m}, v{m}, v{srcs[3]}")
        allreduce("v_max_f32", [m], [5])
        a(f"s_lshl_b32 s{sT}, s{sW}, 2"); a(f"v_mov_b32 v5, s{sT}")
        a(f"ds_write_b32 v5, v{m} offset:{L_MX + off}")
    def max_read(t, off):
        a("v_mov_b32 v6, 0")
        for k in range(2): a(f"ds_read_b128 v[{t[4*k]}:{t[4*k+3]}], v6 offset:{L_MX + off + 16*k}")
    def max_finish(m, t, ps, off):
        a(f"v_max3_f32 v{m}, v{t[0]}, v{t[1]}, v{t[2]}"); a(f"v_max3_f32 v{m}, v{m}, v{t[3]}, v{t[4]}")
        a(f"v_max3_f32 v{m}, v{m}, v{t[5]}, v{t[6]}"); a(f"v_max_f32 v{m}, v{m}, v{t[7]}")
        for p in ps: a(f"v_sub_f32 v{p}, v{p}, v{m}")
        for p in ps: a(f"v_mul_f32 v{p}, s{sL2E}, v{p}")
        for p in ps: a(f"v_exp_f32 v{p}, v{p}")
        if len(ps) == 1: a(f"v_mov_b32 v7, v{ps[0]}")
        else:
            a(f"v_add_f32 v7, v{ps[0]}, v{ps[1]}"); a(f"v_add_f32 v8, v{ps[2]}, v{ps[3]}"); a("v_add_f32 v7, v7, v8")
        for p in ps: a(f"v_cvt_pk_bf16_f32 v{p}, v{p}, v{p}")
        allreduce("v_add_f32", [7], [8])
        a(f"s_lshl_b32 s{sT}, s{sW}, 2"); a(f"v_mov_b32 v5, s{sT}")
        a(f"ds_write_b32 v5, v7 offset:{L_LS + off}")

    a("v_and_b32 v7, 1, v0"); a("v_lshlrev_b32 v7, 4, v7"); a("v_mov_b32 v8, 0xffff"); a("v_lshlrev_b32 v7, v7, v8")
    a("v_bfe_u32 v8, v0, 1, 2")
    for k in range(4):
        a(f"v_cmp_eq_u32 vcc, {k}, v8"); a(f"v_cndmask_b32 v{MK[k]}, 0, v7, vcc")
    a("v_and_b32 v7, 1, v5"); a("v_lshlrev_b32 v7, 4, v7"); a("v_lshl_add_u32 v7, v6, 5, v7")
    a("v_lshrrev_b32 v8, 1, v5"); a("v_lshl_add_u32 v7, v8, 12, v7")
    a(f"s_lshl_b32 s{sT}, s{sW}, 9"); a(f"v_add_u32 v{vPW}, s{sT}, v7")
    a("v_lshl_add_u32 v7, v6, 2, v5"); a("v_lshlrev_b32 v7, 2, v7")
    a(f"s_lshr_b32 s{sT}, s{sW}, 2"); a(f"s_lshl_b32 s{sT}, s{sT}, 8"); a(f"v_add_u32 v{vOR}, s{sT}, v7")
    a(f"s_and_b32 s{sT}, s{sW}, 3"); a(f"s_lshl_b32 s{sT}, s{sT}, 9")
    a("v_lshlrev_b32 v7, 3, v0"); a(f"v_add_u32 v{vYR}, s{sT}, v7")
    a(f"s_lshl_b32 s{sT}, s{sW}, 10"); a(f"s_cmp_lt_u32 s{sW}, 4"); a(f"s_cselect_b32 s{sT}, s{sT}, {OOB}")
    a(f"v_add_u32 v{vY}, s{sT}, v{vL16}")
    a(f"s_lshl_b32 s{sWO}, s{sH}, 17"); a(f"s_lshr_b32 s{sT}, s{sW}, 2"); a(f"s_lshl_b32 s{sT}, s{sT}, 16")
    a(f"s_add_u32 s{sWO}, s{sWO}, s{sT}"); a(f"s_and_b32 s{sT}, s{sW}, 3"); a(f"s_lshl_b32 s{sT}, s{sT}, 8")
    a(f"s_add_u32 s{sWO}, s{sWO}, s{sT}")
    a(f"s_mov_b32 s{sM1}, 0xcccccccc"); a(f"s_mov_b32 s{sM1+1}, 0xcccccccc")
    a(f"s_mov_b32 s{sM0}, 0xaaaaaaaa"); a(f"s_mov_b32 s{sM0+1}, 0xaaaaaaaa")
    a(f"s_mov_b32 s{sSC}, 0x3db504f3"); a(f"s_mov_b32 s{sL2E}, 0x3fb8aa3b")
    a(f"s_mov_b32 s{sT}, 0x01000100"); a(f"s_mov_b32 s{sT2}, 0x03020302")
    wait_for(ix)
    xs = partA[0:4]
    for i in range(4): a(f"v_perm_b32 v{xs[i]}, v{10 + i // 2}, v{10 + i // 2}, s{sT2 if i & 1 else sT}")
    for i in range(4):
        s = SEL[i & 1]
        for k in range(4): a(f"v_and_b32 v{s[k]}, v{xs[i]}, v{MK[k]}")
        wait_for(iw[i])
        mfma(accX, s, wr[i], i == 0)
    free.extend(wsl)
    issue_upto(early)
    a("v_cmp_gt_u32 vcc, 8, v6")
    for k in range(4): a(f"v_cndmask_b32 v{MK[k]}, 0, v{MK[k]}, vcc")
    a(f"ds_write_b128 v{vPW}, {R(accX)} offset:{L_QP}")
    a(f"s_bfe_u32 s{sT}, s{sW}, 0x10001"); a(f"s_lshl_b32 s{sT}, s{sT}, 12"); a(f"s_and_b32 s{sT2}, s{sW}, 1"); a(f"s_lshl_b32 s{sT2}, s{sT2}, 8")
    a(f"s_add_u32 s{sT}, s{sT}, s{sT2}")
    a("v_lshlrev_b32 v7, 2, v0"); a(f"v_add_u32 v7, s{sT}, v7")
    barrier()
    t = partB
    for w in range(4): a(f"ds_read2st64_b32 v[{t[2*w]}:{t[2*w+1]}], v7 offset0:{L_QP//256 + 4*w} offset1:{L_QP//256 + 4*w+2}")
    a(f"s_mul_i32 s{sTAG}, s{sTAG}, 0x9e3779b1"); a(f"s_add_u32 s{sTAG}, s{sTAG}, 0x7f4a7c15")
    a(f"v_mov_b32 v{vTAG}, s{sTAG}")
    a(f"s_bfe_u32 s{sT}, s{sW}, 0x10001"); a(f"s_lshl_b32 s{sT}, s{sT}, 5"); a(f"s_add_u32 s{sT}, s{sT}, s{sJ}")
    a(f"s_lshl_b32 s{sT}, s{sT}, 1"); a(f"s_and_b32 s{sOFF}, s{sX}, 1"); a(f"s_add_u32 s{sT}, s{sT}, s{sOFF}")
    a(f"s_lshl_b32 s{sT}, s{sT}, 2"); a(f"s_lshr_b32 s{sOFF}, s{sX}, 1"); a(f"s_add_u32 s{sT}, s{sT}, s{sOFF}")
    a(f"s_lshl_b32 s{sT}, s{sT}, 10")
    a(f"s_lshl_b32 s{sT2}, s{sT2}, 1"); a(f"s_add_u32 s{sT}, s{sT}, s{sT2}"); a(f"s_add_u32 s{sT}, s{sT}, {WS_Q}")
    a(f"s_cmp_lt_u32 s{sW}, 4"); a(f"s_cselect_b32 s{sT}, s{sT}, {OOB}")
    a("v_lshlrev_b32 v7, 3, v0")
    a("s_waitcnt lgkmcnt(0)")
    tree(t, 8)
    a(f"v_mov_b32 v{t[1]}, v{vTAG}")
    last_store["i"] = vmem(f"buffer_store_dwordx2 v[{t[0]}:{t[1]}], v7, {SRD('ws')}, s{sT} offen sc1")
    a(f"s_lshl_b32 s{sWQ}, s{sB}, 5"); a(f"s_add_u32 s{sWQ}, s{sWQ}, s{sH}"); a(f"s_lshl_b32 s{sWQ}, s{sWQ}, 3")
    a(f"s_add_u32 s{sWQ}, s{sWQ}, s{sW}"); a(f"s_lshl_b32 s{sWQ}, s{sWQ}, 10"); a(f"s_add_u32 s{sWQ}, s{sWQ}, {WS_Q}")
    stamp()
    issue_upto(qpos + dmin)
    eQ = ("q", 0); rQ = RING0 + 4 * slot[eQ]
    wait_for(vidx[eQ])
    a(f"s_mov_b32 s{sCNT}, 0")
    a.label("L_qchk")
    a(f"v_cmp_ne_u32 vcc, v{rQ+1}, v{vTAG}"); a(f"v_cmp_ne_u32 s[{sMY}:{sMY+1}], v{rQ+3}, v{vTAG}")
    a(f"s_or_b64 vcc, vcc, s[{sMY}:{sMY+1}]")
    a("s_cbranch_scc0 L_qok")
    a(qload(rQ))
    a(f"s_add_u32 s{sCNT}, s{sCNT}, 1")
    a(f"s_cmp_lt_u32 s{sCNT}, 0x20000")
    a("s_waitcnt vmcnt(0)")
    a("s_cbranch_scc1 L_qchk")
    a.label("L_qok")
    a(f"v_mov_b32 v{rQ+1}, v{rQ+2}")
    a("v_lshlrev_b32 v7, 3, v0"); a(f"s_lshl_b32 s{sT}, s{sW}, 9"); a(f"v_add_u32 v7, s{sT}, v7")
    a(f"ds_write_b64 v7, v[{rQ}:{rQ+1}] offset:{L_Q}")
    a("v_lshlrev_b32 v7, 5, v6"); a("v_lshl_add_u32 v7, v5, 3, v7")
    barrier()
    release(eQ)
    for w in range(4): a(f"ds_read_b64 v[{partB[2*w]}:{partB[2*w+1]}], v7 offset:{L_Q + (4 + w)*512}")
    for w in range(4): a(f"ds_read_b64 v[{partA[2*w]}:{partA[2*w+1]}], v7 offset:{L_Q + w*512}")
    st["tgt"] = float(st["ip"] - 1) + 1
    issue_upto(int(st["tgt"]))
    a("s_waitcnt lgkmcnt(0)")
    q_finish(partB, qB); q_finish(partA, qA)
    stamp()

    steps = []
    ready = {"kB": True, "kA": True, "vA": False, "vB": False, "woA": False, "woB": False}
    pending = []; cnt = {n: 0 for n in ready}; tot = {"kB": 64, "vB": 64}
    def push(e):
        steps.append(("c", e)); cnt[e[0]] += 1
        n, i = e
        if n in ("kB", "kA") and i % 16 == 15: steps.append(("rs", n, i // 16))
        if sub and e == ("vB", a_span): ready["woA"] = True
        if cnt[n] != tot.get(n, 16): return
        if n == "kA": steps.append(("op", "maxA")); ready["vA"] = True
        if n in ("vA", "kB") and cnt["vA"] == 16 and cnt["kB"] == 64:
            steps.append(("op", "mid")); ready["vB"] = True; ready["woA"] = not sub

        if n == "woA": steps.append(("op", "yA"))
        if n == "vB": steps.append(("op", "oB")); ready["woB"] = True
        if n == "woB": steps.append(("op", "yB"))
    def drain():
        again = True
        while again:
            again = False
            for e in list(pending):
                if ready[e[0]]:
                    pending.remove(e); push(e); again = True; break
    for e in issue:
        if e[0] == "q": continue
        if ready[e[0]] and not any(p[0] == e[0] for p in pending):
            push(e); drain()
        else: pending.append(e)
    drain(); assert not pending

    YA = qA; ML = qB; YD = partB[8:12]
    def y_exchange(lb, br, dst):
        part_write(accX, lb)
        a(f"s_lshl_b32 s{sRW}, s{sP}, 12"); a(f"s_add_u32 s{sRW}, s{sRW}, {WS_Y + br * 256 * 4096}")
        a(f"v_mov_b32 v{dst[1]}, v{vTAG}"); a(f"v_mov_b32 v{dst[3]}, v{vTAG}")
        barrier()
        a(f"ds_read_b64 v[6:7], v{vYR} offset:{lb}")
        a(f"ds_read_b64 v[8:9], v{vYR} offset:{lb + 2048}")
        if br == 0:
            t = partA
            a("v_mov_b32 v10, 0")
            for k in range(4): a(f"ds_read_b128 v[{t[4*k]}:{t[4*k+3]}], v10 offset:{L_LS + 16*k}")
            bump()
        a("s_waitcnt lgkmcnt(0)")
        a(f"v_add_f32 v{dst[0]}, v6, v8"); a(f"v_add_f32 v{dst[2]}, v7, v9")
        if br == 0:
            tree(t[0:8], 8); tree(t[8:16], 8)
            a("v_cmp_eq_u32 vcc, 0, v0")
            a(f"v_cndmask_b32 v{ML[0]}, v{vMB}, v{vMA}, vcc"); a(f"v_cndmask_b32 v{ML[2]}, v{t[8]}, v{t[0]}, vcc")
            a(f"v_mov_b32 v{ML[1]}, v{vTAG}"); a(f"v_mov_b32 v{ML[3]}, v{vTAG}")
    def y_store(br, src):
        last_store["i"] = vmem(f"buffer_store_dwordx4 {R(src)}, v{vY}, {SRD('ws')}, s{sRW} offen sc1")
        if br == 0:
            a(f"s_lshl_b32 s{sT}, s{sP}, 7"); a(f"s_add_u32 s{sT}, s{sT}, {WS_ML}")
            a(f"s_cmp_eq_u32 s{sW}, 0"); a(f"s_cselect_b32 s{sT}, s{sT}, {OOB}")
            a("v_lshlrev_b32 v5, 15, v0"); a(f"v_mov_b32 v6, {OOB}")
            a("v_cmp_gt_u32 vcc, 2, v0"); a("v_cndmask_b32 v5, v6, v5, vcc")
            vmem(f"buffer_store_dwordx4 {R(ML)}, v5, {SRD('ws')}, s{sT} offen sc1")
    apub = {"have": False, "done": False}
    nxt = {}

    for s in steps:
        if s[0] == "c":
            e = s[1]; n, i = e
            if not (sub and n in ("woA", "woB")):
                st["tgt"] = max(pos[e] + dmin, st["tgt"] + decay)
                issue_upto(int(st["tgt"]))
            assert e in slot, ("deadlock", e)
            if apub["have"] and not apub["done"] and st["ip"] >= len(issue) - apos:
                y_store(0, YA); apub["done"] = True
            if n == "kB": klike(e, qB, partB[i % 16])
            elif n == "kA": klike(e, qA, partA[i])
            elif n == "vA": vlike(e, accX, PA, i, i == 0)
            elif n == "vB": vlike(e, accB, PB[i // 16], i % 16, i == 0)
            elif sub and n in ("woA", "woB"):
                if i == 15:
                    if n == "woA":
                        st["tgt"] += subburst; issue_upto(int(st["tgt"]))
                    wait_for(vidx[e])
                    a(f"s_call_b64 s[{sRET}:{sRET+1}], L_proj")
                    a.hist = []
                    for k in range(16): release((n, k))
            elif n == "woB":
                if i == 0: nxt["s"] = sel_bcast(OX, 0)
                cur = nxt["s"]
                if i < 15: nxt["s"] = sel_bcast(OX, i + 1)
                wait_for(vidx[e]); mfma(accX, cur, RING0 + 4 * slot[e], i == 0); release(e)
            else: vlike(e, accX, OX, i, i == 0)
        elif s[0] == "rs":
            if s[1] == "kB": reduce_scatter16(partB, PB[s[2]])
            else: reduce_scatter16(partA, PA)
        else:
            op = s[1]
            if op == "maxA":
                max_write(vMA, [PA], 0)
                barrier()
                max_read(partA, 0)
                bump()
                a("s_waitcnt lgkmcnt(0)")
                max_finish(vMA, partA, [PA], 0)
            elif op == "mid":
                max_write(vMB, PB, 32)
                part_write(accX, L_OA)
                barrier()
                max_read(partA, 32)
                if not sub: o_read(L_OA, partB)
                bump()
                a("s_waitcnt lgkmcnt(0)")
                max_finish(vMB, partA, PB, 32)
                if not sub: o_finish(partB)
                stamp()
            elif op == "yA":
                if sub:
                    a(f"v_mov_b32 v{YA[0]}, v{YD[0]}"); a(f"v_mov_b32 v{YA[2]}, v{YD[2]}")
                    a(f"v_mov_b32 v{YA[1]}, v{vTAG}"); a(f"v_mov_b32 v{YA[3]}, v{vTAG}")
                    a(f"s_lshl_b32 s{sRW}, s{sP}, 12")
                    t = partA
                    a("v_mov_b32 v10, 0")
                    for k in range(4): a(f"ds_read_b128 v[{t[4*k]}:{t[4*k+3]}], v10 offset:{L_LS + 16*k}")
                    a("s_waitcnt lgkmcnt(0)")
                    tree(t[0:8], 8); tree(t[8:16], 8)
                    a("v_cmp_eq_u32 vcc, 0, v0")
                    a(f"v_cndmask_b32 v{ML[0]}, v{vMB}, v{vMA}, vcc"); a(f"v_cndmask_b32 v{ML[2]}, v{t[8]}, v{t[0]}, vcc")
                    a(f"v_mov_b32 v{ML[1]}, v{vTAG}"); a(f"v_mov_b32 v{ML[3]}, v{vTAG}")
                else: y_exchange(L_YA, 0, YA)
                apub["have"] = True
            elif op == "oB":
                stamp()
                part_write(accB, L_OA if sub else L_OB)
                if sub:
                    a(f"s_add_u32 s{sRW}, s{sRW}, {256 * 4096}")
                    stamp()
                else:
                    barrier()
                    stamp()
                    o_read(L_OB, partB)
                    a("s_waitcnt lgkmcnt(0)")
                    o_finish(partB)
            elif op == "yB":
                if sub: y_store(1, YD)
                else:
                    y_exchange(L_YB, 1, accB); y_store(1, accB)
                stamp()
    assert st["ip"] == len(issue) and apub["done"]

    if "nored" in diag: a("s_branch L_fin")
    a("s_cmp_ge_u32 s2, 128")
    a("s_cbranch_scc1 L_fin")
    a("v_lshrrev_b32 v5, 2, v0")
    a(f"s_lshl_b32 s{sT}, s{sW}, 4"); a(f"v_add_u32 v5, s{sT}, v5")
    a("v_and_b32 v6, 3, v0")
    a("v_lshlrev_b32 v6, 5, v6"); a("v_lshl_add_u32 v6, v5, 12, v6")
    a("v_lshlrev_b32 v5, 7, v5")
    a(f"s_lshr_b32 s{sT}, s2, 5")
    a(f"s_lshl_b32 s{sOFF}, s{sT}, 19"); a(f"s_and_b32 s{sT2}, s2, 31"); a(f"s_lshl_b32 s{sT2}, s{sT2}, 7")
    a(f"s_add_u32 s{sOFF}, s{sOFF}, s{sT2}")
    a(f"s_lshl_b32 s{sT}, s{sT}, 14"); a(f"s_add_u32 s{sT}, s{sT}, {WS_ML}")
    a(f"s_mov_b32 s{sCNT}, 0")
    Y0, Y1, M0 = 24, 28, 36
    a("v_and_b32 v11, 3, v0"); a("v_lshlrev_b32 v11, 2, v11")
    a("v_bfe_u32 v7, v0, 3, 1"); a("v_lshl_add_u32 v11, v7, 1, v11")
    a("v_bfe_u32 v7, v0, 2, 1"); a("v_add_u32 v11, v7, v11"); a("v_lshlrev_b32 v11, 2, v11")
    a(f"s_lshl_b32 s{sT2}, s{sW}, 6"); a(f"v_add_u32 v11, s{sT2}, v11")
    a("v_and_b32 v16, 7, v0"); a("v_lshlrev_b32 v17, 3, v16"); a("v_lshlrev_b32 v16, 2, v16")
    a(f"s_bfe_u32 s{sKB}, s2, 0x10005"); a(f"s_lshl_b32 s{sKB}, s{sKB}, 11")
    a(f"s_lshr_b32 s{sT2}, s2, 6"); a(f"s_lshl_b32 s{sT2}, s{sT2}, 10"); a(f"s_add_u32 s{sKB}, s{sKB}, s{sT2}")
    a(f"s_and_b32 s{sT2}, s2, 31"); a(f"s_lshl_b32 s{sT2}, s{sT2}, 5"); a(f"s_add_u32 s{sKB}, s{sKB}, s{sT2}")
    a(f"s_mov_b64 s[{sMY}:{sMY+1}], -1"); a(f"s_mov_b64 s[{sMM}:{sMM+1}], -1")
    a.label("L_poll")
    a(f"s_mov_b64 exec, s[{sMY}:{sMY+1}]")
    a("s_cbranch_execz L_poll_m")
    a(f"buffer_load_dwordx4 v[{Y0}:{Y0+3}], v6, {SRD('ws')}, s{sOFF} offen sc1")
    a(f"buffer_load_dwordx4 v[{Y1}:{Y1+3}], v6, {SRD('ws')}, s{sOFF} offen offset:16 sc1")
    a.label("L_poll_m")
    a(f"s_mov_b64 exec, s[{sMM}:{sMM+1}]")
    a("s_cbranch_execz L_poll_w")
    a(f"buffer_load_dwordx4 v[{M0}:{M0+3}], v5, {SRD('ws')}, s{sT} offen sc1")
    a.label("L_poll_w")
    a("s_mov_b64 exec, -1")
    a(f"s_add_u32 s{sCNT}, s{sCNT}, 1")
    a("s_waitcnt vmcnt(0)")
    def red_compute():
        y = [Y0, Y0 + 2, Y1, Y1 + 2]; z = [56, 57, 58, 59]
        a(f"v_max_f32_dpp v7, v{M0}, v{M0} row_ror:4 {DPPF}")
        a(f"v_max_f32_dpp v7, v7, v7 row_ror:8 {DPPF}")
        a(f"v_sub_f32 v7, v{M0}, v7"); a(f"v_mul_f32 v7, s{sL2E}, v7"); a("v_exp_f32 v7, v7")
        a(f"v_mul_f32 v8, v7, v{M0+2}")
        a(f"v_add_f32_dpp v8, v8, v8 row_ror:4 {DPPF}")
        a(f"v_add_f32_dpp v8, v8, v8 row_ror:8 {DPPF}")
        a("v_rcp_f32 v8, v8"); a("v_mul_f32 v7, v7, v8")
        for k in range(4): a(f"v_mul_f32 v{z[k]}, v7, v{y[k]}")
        for k in range(2): a(f"v_add_f32_dpp v{z[k]}, v{z[k]}, v{z[k]} row_ror:8 row_mask:0xf bank_mask:0x3")
        for k in range(2): a(f"v_add_f32_dpp v{z[k]}, v{z[k+2]}, v{z[k+2]} row_ror:8 row_mask:0xf bank_mask:0xc")
        a(f"v_add_f32_dpp v{z[0]}, v{z[0]}, v{z[0]} row_shl:4 row_mask:0xf bank_mask:0x5")
        a(f"v_add_f32_dpp v{z[0]}, v{z[1]}, v{z[1]} row_shr:4 row_mask:0xf bank_mask:0xa")
        a(f"v_mov_b32 v9, v{z[0]}")
        a(f"v_permlane16_swap_b32 v{z[0]}, v9"); a(f"v_add_f32 v{z[0]}, v{z[0]}, v9")
        a(f"v_mov_b32 v9, v{z[0]}")
        a(f"v_permlane32_swap_b32 v{z[0]}, v9"); a(f"v_add_f32 v{z[0]}, v{z[0]}, v9")
        a(f"ds_write_b32 v11, v{z[0]} offset:{L_RED}")
    if warmred: red_compute()
    a(f"v_xor_b32 v7, v{Y0+1}, v{vTAG}"); a(f"v_xor_b32 v8, v{Y0+3}, v{vTAG}"); a(f"v_xor_b32 v9, v{Y1+1}, v{vTAG}")
    a("v_or3_b32 v7, v7, v8, v9")
    a(f"v_xor_b32 v8, v{Y1+3}, v{vTAG}"); a(f"v_xor_b32 v9, v{M0+1}, v{vTAG}"); a(f"v_xor_b32 v10, v{M0+3}, v{vTAG}")
    a("v_or_b32 v7, v7, v8"); a("v_or_b32 v9, v9, v10")
    a(f"v_cmp_ne_u32 s[{sMY}:{sMY+1}], 0, v7"); a(f"v_cmp_ne_u32 s[{sMM}:{sMM+1}], 0, v9")
    a("s_nop 0")
    a(f"s_or_b64 vcc, s[{sMY}:{sMY+1}], s[{sMM}:{sMM+1}]")
    a("s_cbranch_scc0 L_poll_ok")
    if slp:
        a(f"s_bcnt1_i32_b64 s{sT2}, vcc")
        a(f"s_cmp_le_u32 s{sT2}, {slpthr}")
        a("s_cbranch_scc1 L_poll_n")
        a(f"s_sleep {slp}")
        a.label("L_poll_n")
    a(f"s_cmp_lt_u32 s{sCNT}, 0x20000")
    a("s_cbranch_scc1 L_poll")
    a.label("L_poll_ok")
    if not warmred: red_compute()
    barrier()
    a(f"s_cmp_lg_u32 s{sW}, 0")
    a("s_cbranch_scc1 L_fin")
    t = partA
    for w in range(8): a(f"ds_read_b64 v[{t[2*w]}:{t[2*w+1]}], v17 offset:{L_RED + w*64}")
    a("s_waitcnt lgkmcnt(0)")
    tree(t, 16, 2)
    a(f"v_cvt_pk_bf16_f32 v7, v{t[0]}, v{t[1]}")
    a("s_mov_b64 exec, 0xff")
    a(f"buffer_store_dword v7, v16, {SRD('out')}, s{sKB} offen")
    a("s_cmp_lg_u32 s2, 64")
    a("s_cbranch_scc1 L_fin")
    a("s_mov_b64 exec, 1")
    a(f"s_mov_b32 s{sT}, {hex(WS_EP)}")
    a(f"buffer_store_dword v{vTAG}, v16, {SRD('ws')}, s{sT} offen sc1")
    a.label("L_fin")
    if stamps:
        a("s_mov_b64 exec, -1")
        stamp()
        if "tailprof" in diag:
            a("s_memtime s[88:89]"); a("s_waitcnt lgkmcnt(0)")
            for k in range(7): a(f"v_writelane_b32 v{vSTAMP}, s{76 + 2*k}, {k}")
            a(f"v_writelane_b32 v{vSTAMP}, s90, 7")
        assert stampn["n"] == 8, stampn
        a(f"s_lshl_b32 s{sT}, s2, 3"); a(f"s_add_u32 s{sT}, s{sT}, s{sW}"); a(f"s_lshl_b32 s{sT}, s{sT}, 5")
        a(f"s_add_u32 s{sT}, s{sT}, {WS_ST}")
        a("v_lshlrev_b32 v5, 2, v0")
        a("s_mov_b64 exec, 0xff")
        a(f"buffer_store_dword v{vSTAMP}, v5, {SRD('ws')}, s{sT} offen")
    a.label("L_end")
    a("s_endpgm")
    if sub:
        a.label("L_proj")
        a.hist = []
        tp = "tailprof" in diag
        if tp: a("s_memtime s[76:77]")
        barrier()
        if tp: a("s_memtime s[78:79]")
        o_read(L_OA, partB)
        a(f"v_mov_b32 v{YD[1]}, v{vTAG}"); a(f"v_mov_b32 v{YD[3]}, v{vTAG}")
        a("s_waitcnt lgkmcnt(0)")
        if tp: a("s_memtime s[80:81]")
        o_finish(partB)
        selk["k"] = 0
        cur = sel_bcast(OX, 0)
        for i in range(16):
            nx = sel_bcast(OX, i + 1) if i < 15 else None
            mfma(accX, cur, RING0 + 4 * (WB0 + i), i == 0); cur = nx
        if tp: a("s_memtime s[82:83]")
        part_write(accX, L_YA)
        barrier()
        if tp: a("s_memtime s[84:85]")
        a(f"ds_read_b64 v[6:7], v{vYR} offset:{L_YA}")
        a(f"ds_read_b64 v[8:9], v{vYR} offset:{L_YA + 2048}")
        a("s_waitcnt lgkmcnt(0)")
        a(f"v_add_f32 v{YD[0]}, v6, v8"); a(f"v_add_f32 v{YD[2]}, v7, v9")
        if tp: a("s_memtime s[86:87]")
        a(f"s_setpc_b64 s[{sRET}:{sRET+1}]")
    a.raw('.section .rodata,"a"'); a.raw(".p2align 6"); a.raw(f".amdhsa_kernel {NAME}")
    a.raw("  .amdhsa_next_free_vgpr 256"); a.raw(f"  .amdhsa_next_free_sgpr {NSGPR}"); a.raw("  .amdhsa_accum_offset 256")
    a.raw("  .amdhsa_group_segment_fixed_size 0"); a.raw("  .amdhsa_kernarg_size 104"); a.raw("  .amdhsa_user_sgpr_count 2")
    a.raw("  .amdhsa_user_sgpr_kernarg_segment_ptr 1"); a.raw("  .amdhsa_system_sgpr_workgroup_id_x 1"); a.raw(".end_amdhsa_kernel")
    return a.text()

if __name__ == "__main__":
    out = sys.argv[1]
    kw = json.loads(sys.argv[2]) if len(sys.argv) > 2 else {}
    open(out, "w").write(gen(**kw))
```

```python
import sys, json
from asmlib import Asm

NAME = "concat_heads__sliding_block_cached__mha_block_cached__decode_kernel"
HEADER = open("concat_heads__sliding_block_cached__mha_block_cached__decode.s.ref").read().split("; Override launch")[0]
DPPF = "row_mask:0xf bank_mask:0xf"

WS_Y = 0
WS_ML = 0x200000
WS_Q = 0x220000
WS_EP = 0x320000
WS_ST = 0x340000
WS_SIZE = 0x400000
OOB = 0x40000000

def gen(F=5, dmin=None, burst=0, stamps=False, pol="nt", shpol="", qpos=26, decay=0.5, rsh=2, diag="",
        relax=4, slp=8, slpthr=16, early=4, apos=0, sub=True, subburst=3, warmred=True, a_span=27, b_start=36):
    if dmin is None: dmin = F - 1
    a = Asm()
    names = ["xA", "kA", "vA", "wqA", "woA", "xB", "kB", "vB", "wqB", "woB", "out", "dbg", "ws"]
    sizes = {"x": 2048, "wq": 4 << 20, "kA": 32 << 20, "vA": 32 << 20, "woA": 4 << 20,
             "kB": 128 << 20, "vB": 128 << 20, "woB": 4 << 20, "out": 4096, "ws": WS_SIZE}
    srd = {n: 8 + 4 * i for i, n in enumerate(sizes)}
    def SRD(n): return f"s[{srd[n]}:{srd[n]+3}]"
    sW, sH, sB, sS, sT = 3, 4, 5, 6, 7
    sX, sJ, sT2, sKB, sKA, sWQ, sWO, sOFF, sP, sTAG, sSC, sL2E, sCNT, sRW = range(48, 62)
    sM1, sM0, sST, sMY, sMM = 62, 64, 66, 68, 70
    sRET = 72
    NSGPR = 96
    vL16, vWo, vPW, vOR = 1, 2, 3, 4
    vSTAMP, vMA, vMB, vTAG = 12, 13, 14, 15
    qB = list(range(16, 20)); qA = list(range(20, 24))
    accB = list(range(24, 28)); accX = list(range(28, 32))
    MK = list(range(32, 36))
    SEL = [list(range(36, 40)), list(range(40, 44))]
    partB = list(range(44, 60)); partA = list(range(60, 76))
    PB = list(range(76, 80)); PA = 80; OX = 81; vY = 82; vYR = 83
    RING0 = 84
    NS = (256 - RING0) // 4
    L_QP = 0
    L_Q, L_OA, L_OB, L_YA, L_YB = [8192 + 4096 * i for i in range(5)]
    L_MX = 8192 + 5 * 4096; L_LS = L_MX + 64; L_RED = L_MX + 256
    LDS = L_RED + 512

    a.raw(HEADER.rstrip("\n"))
    a.raw(f"; @launch grid=(256,1,1) block=(512,1,1) lds={LDS}")
    a.raw('.amdgcn_target "amdgcn-amd-amdhsa--gfx950"')
    a.raw(".text"); a.raw(f".globl {NAME}"); a.raw(".p2align 8"); a.raw(f".type {NAME},@function")
    a.label(NAME)
    a("s_cmp_ge_u32 s2, 256")
    a("s_cbranch_scc1 L_end")
    a(f"s_and_b32 s{sT}, s2, 1"); a(f"s_mul_i32 s{sT}, s{sT}, 40"); a(f"s_add_u32 s{sT2}, s{sT}, 24")
    a(f"s_load_dwordx2 s[{srd['wq']}:{srd['wq']+1}], s[0:1], s{sT2}")
    a(f"s_load_dwordx2 s[{srd['x']}:{srd['x']+1}], s[0:1], s{sT}")
    for n in ["kB", "ws", "kA", "vA", "vB"]:
        a(f"s_load_dwordx2 s[{srd[n]}:{srd[n]+1}], s[0:1], {8 * names.index(n)}")
    if stamps: a(f"s_memrealtime s[{sST}:{sST+1}]")
    if "tailprof" in diag: a("s_memtime s[90:91]")
    stampn = {"n": 1}
    def stamp():
        if not stamps: return
        a(f"s_memrealtime s[{sST}:{sST+1}]"); a("s_waitcnt lgkmcnt(0)")
        a(f"v_writelane_b32 v{vSTAMP}, s{sST}, {stampn['n']}"); stampn["n"] += 1
    a("v_lshrrev_b32 v1, 6, v0")
    a("v_and_b32 v0, 63, v0")
    a(f"v_readfirstlane_b32 s{sW}, v1")
    for n in srd:
        a(f"s_mov_b32 s{srd[n]+2}, {hex(sizes[n])}"); a(f"s_mov_b32 s{srd[n]+3}, 0x20000")
    a(f"s_and_b32 s{sX}, s2, 7"); a(f"s_lshr_b32 s{sJ}, s2, 3")
    a("v_lshrrev_b32 v5, 4, v0"); a("v_and_b32 v6, 15, v0")
    a(f"v_lshlrev_b32 v{vL16}, 4, v0")
    a("v_lshlrev_b32 v7, 4, v6")
    a("v_lshl_add_u32 v9, v5, 15, v7")
    a(f"v_lshl_add_u32 v{vWo}, v5, 10, v7")
    a("v_bfe_u32 v8, v0, 3, 1"); a("v_lshlrev_b32 v8, 10, v8"); a("v_lshl_add_u32 v8, v5, 3, v8")
    a(f"s_lshr_b32 s{sT}, s{sX}, 1"); a(f"s_lshl_b32 s{sT}, s{sT}, 3"); a(f"s_add_u32 s{sT}, s{sT}, s{sW}")
    a(f"s_lshl_b32 s{sRW}, s{sT}, 5")
    a(f"s_lshl_b32 s{sWQ}, s{sT}, 17"); a(f"s_lshl_b32 s{sT2}, s{sJ}, 8"); a(f"s_add_u32 s{sWQ}, s{sWQ}, s{sT2}")
    a(f"s_lshr_b32 s{sH}, s{sJ}, 3"); a(f"s_lshl_b32 s{sT}, s{sX}, 2"); a(f"s_add_u32 s{sH}, s{sH}, s{sT}")
    a(f"s_bfe_u32 s{sB}, s{sJ}, 0x10002"); a(f"s_and_b32 s{sS}, s{sJ}, 3")
    a(f"s_lshl_b32 s{sP}, s{sB}, 5"); a(f"s_add_u32 s{sP}, s{sP}, s{sH}")
    a(f"s_lshl_b32 s{sP}, s{sP}, 2"); a(f"s_add_u32 s{sP}, s{sP}, s{sS}")
    a(f"s_and_b32 s{sT2}, s{sW}, 3"); a(f"s_lshl_b32 s{sT2}, s{sT2}, 1"); a(f"s_lshr_b32 s{sT}, s{sW}, 2")
    a(f"s_add_u32 s{sT2}, s{sT2}, s{sT}"); a(f"s_lshl_b32 s{sT2}, s{sT2}, 10")
    a(f"s_lshl_b32 s{sKB}, s{sP}, 19"); a(f"s_add_u32 s{sKB}, s{sKB}, s{sT2}")
    a(f"s_lshr_b32 s{sT}, s2, {rsh}"); a(f"s_and_b32 s{sT}, s{sT}, 63"); a(f"s_lshl_b32 s{sT}, s{sT}, 13")
    a(f"s_or_b32 s{sKB}, s{sKB}, s{sT}")
    a(f"s_lshl_b32 s{sKA}, s{sB}, 3"); a(f"s_add_u32 s{sKA}, s{sKA}, s{sX}")
    a(f"s_lshl_b32 s{sKA}, s{sKA}, 4"); a(f"s_add_u32 s{sKA}, s{sKA}, s{sS}"); a(f"s_add_u32 s{sKA}, s{sKA}, 12")
    a(f"s_lshl_b32 s{sKA}, s{sKA}, 17"); a(f"s_add_u32 s{sKA}, s{sKA}, s{sT2}")
    a(f"s_bfe_u32 s{sT}, s2, 0x40002"); a(f"s_lshl_b32 s{sT}, s{sT}, 13")
    a(f"s_or_b32 s{sKA}, s{sKA}, s{sT}")
    a(f"s_mov_b32 s{sCNT}, {hex(WS_EP)}")
    a("s_waitcnt lgkmcnt(0)")
    if stamps: a(f"v_writelane_b32 v{vSTAMP}, s{sST}, 0")

    vm = {"n": 0}; done = {"upto": 0}; last_store = {"i": -100}
    def vmem(text):
        a(text); vm["n"] += 1; return vm["n"] - 1
    def wait_for(idx):
        if idx < done["upto"]: return
        n = vm["n"] - 1 - idx
        assert n <= 63
        a(f"s_waitcnt vmcnt({n})"); done["upto"] = idx + 1
    def limit(f):
        tgt = vm["n"] - f
        if tgt >= last_store["i"] and vm["n"] - last_store["i"] <= f + relax - 1: tgt = last_store["i"] - 1
        if tgt >= 0: wait_for(tgt)

    free = list(range(NS))
    wsl = [free.pop(0) for _ in range(4)]
    wr = [RING0 + 4 * s for s in wsl]
    ix = vmem(f"buffer_load_dwordx2 v[10:11], v8, {SRD('x')}, s{sRW} offen")
    iw = []
    for i in range(4):
        if i: a(f"s_add_u32 s{sOFF}, s{sWQ}, {i * 8192}")
        iw.append(vmem(f"buffer_load_dwordx4 v[{wr[i]}:{wr[i]+3}], v9, {SRD('wq')}, s{sOFF if i else sWQ} offen {pol}"))

    P = [("kB", i) for i in range(64)] + [("vB", i) for i in range(64)]
    issue = []
    after = {}
    for i in range(16):
        after.setdefault(2 * i, []).append(("kA", i))
        after.setdefault(32 + 2 * i, []).append(("vA", i))
        if sub:
            after.setdefault(64 + (i * a_span) // 16, []).append(("woA", i))
            after.setdefault(64 + b_start + (i * (63 - b_start)) // 16, []).append(("woB", i))
        else:
            after.setdefault(64 + 2 * i, []).append(("woA", i))
            after.setdefault(96 + 2 * i, []).append(("woB", i))
    for i, e in enumerate(P):
        issue.append(e); issue += after.get(i, [])
    assert issue[-1][0] == "vB"
    issue.insert(qpos, ("q", 0))
    pos = {e: i for i, e in enumerate(issue)}
    slot = {}; vidx = {}
    st = {"ip": 0, "tgt": 0.0}
    def qload(r):
        return f"buffer_load_dwordx4 v[{r}:{r+3}], v{vL16}, {SRD('ws')}, s{sWQ} offen sc1"
    WB0 = NS - 16
    def pick(n, i):
        if sub:
            if n in ("woA", "woB"):
                return WB0 + i if (WB0 + i) in free else None
            cand = [s for s in free if s < WB0 or st["ip"] < 56]
            return cand[0] if cand else None
        return free[0] if free else None
    def issue_one(lim=True):
        e = issue[st["ip"]]; n, i = e
        s = pick(n, i); free.remove(s); slot[e] = s
        r = RING0 + 4 * s
        if n == "q":
            if lim: limit(F)
            vidx[e] = vmem(qload(r))
        else:
            if n in ("kB", "vB"): base, off, va, pl = sKB, i * 8192, vL16, pol
            elif n in ("kA", "vA"): base, off, va, pl = sKA, i * 8192, vL16, shpol
            else: base, off, va, pl = sWO, i * 4096, vWo, shpol
            if off:
                a(f"s_xor_b32 s{sOFF}, s{base}, {off}"); so = sOFF
            else: so = base
            if lim: limit(F)
            vidx[e] = vmem(f"buffer_load_dwordx4 v[{r}:{r+3}], v{va}, {SRD(n)}, s{so} offen {pl}")
        st["ip"] += 1
    def issue_upto(t):
        while st["ip"] <= t and st["ip"] < len(issue) and pick(*issue[st["ip"]]) is not None:
            issue_one()
    def release(e): free.append(slot.pop(e))
    for _ in range(early): issue_one(False)
    a(f"s_load_dword s{sTAG}, s[{srd['ws']}:{srd['ws']+1}], s{sCNT}")
    for n in ["woA", "woB", "out"]:
        a(f"s_load_dwordx2 s[{srd[n]}:{srd[n]+1}], s[0:1], {8 * names.index(n)}")

    selk = {"k": 0}
    def R(regs): return f"v[{regs[0]}:{regs[-1]}]"
    def sel_bcast(p, lane):
        s = SEL[selk["k"]]; selk["k"] ^= 1
        for k in range(4): a(f"v_and_b32_dpp v{s[k]}, v{p}, v{MK[k]} row_newbcast:{lane} {DPPF}")
        return s
    def mfma(acc, s, r, first):
        a(f"v_mfma_f32_16x16x32_bf16 {R(acc)}, {R(s)}, v[{r}:{r+3}], {'0' if first else R(acc)}")
    def vlike(e, acc, p, lane, first):
        s = sel_bcast(p, lane)
        wait_for(vidx[e]); mfma(acc, s, RING0 + 4 * slot[e], first); release(e)
    def klike(e, q, dst):
        r = RING0 + 4 * slot[e]
        wait_for(vidx[e])
        a(f"v_dot2_f32_bf16 v{dst}, v{r}, v{q[0]}, 0")
        for k in range(1, 4): a(f"v_dot2_f32_bf16 v{dst}, v{r+k}, v{q[k]}, v{dst}")
        release(e)
    def reduce_scatter16(r, dst):
        for i in range(8): a(f"v_add_f32_dpp v{r[i]}, v{r[i]}, v{r[i]} row_ror:8 row_mask:0xf bank_mask:0x3")
        for i in range(8): a(f"v_add_f32_dpp v{r[i]}, v{r[i+8]}, v{r[i+8]} row_ror:8 row_mask:0xf bank_mask:0xc")
        for i in range(4): a(f"v_add_f32_dpp v{r[i]}, v{r[i]}, v{r[i]} row_half_mirror row_mask:0xf bank_mask:0x5")
        for i in range(4): a(f"v_add_f32_dpp v{r[i]}, v{r[i+4]}, v{r[i+4]} row_half_mirror row_mask:0xf bank_mask:0xa")
        for i in range(4): a(f"v_add_f32_dpp v{r[i]}, v{r[i]}, v{r[i]} quad_perm:[2,3,0,1] {DPPF}")
        a(f"v_cndmask_b32 v{r[0]}, v{r[0]}, v{r[2]}, s[{sM1}:{sM1+1}]")
        a(f"v_cndmask_b32 v{r[1]}, v{r[1]}, v{r[3]}, s[{sM1}:{sM1+1}]")
        for i in range(2): a(f"v_add_f32_dpp v{r[i]}, v{r[i]}, v{r[i]} quad_perm:[1,0,3,2] {DPPF}")
        a(f"v_cndmask_b32 v{dst}, v{r[0]}, v{r[1]}, s[{sM0}:{sM0+1}]")
        a(f"v_cvt_pk_bf16_f32 v{dst}, 0, v{dst}")
        a(f"v_mul_f32 v{dst}, s{sSC}, v{dst}")
        a(f"v_cvt_pk_bf16_f32 v{dst}, 0, v{dst}")
    def allreduce(op, regs, tmps):
        for sh in (8, 4, 2, 1):
            for r in regs: a(f"{op}_dpp v{r}, v{r}, v{r} row_ror:{sh} {DPPF}")
        for pl in ("v_permlane16_swap_b32", "v_permlane32_swap_b32"):
            for r, t in zip(regs, tmps): a(f"v_mov_b32 v{t}, v{r}")
            for r, t in zip(regs, tmps): a(f"{pl} v{r}, v{t}")
            for r, t in zip(regs, tmps): a(f"{op} v{r}, v{r}, v{t}")
    def barrier():
        a("s_waitcnt lgkmcnt(0)"); a("s_barrier")
    def tree(t, n, stop=1):
        st_ = n // 2
        while st_ >= stop:
            for k in range(st_): a(f"v_add_f32 v{t[k]}, v{t[k]}, v{t[k+st_]}")
            st_ //= 2
    def part_write(acc, lb):
        a("s_mov_b64 exec, 0xffffffff")
        a(f"ds_write_b128 v{vPW}, {R(acc)} offset:{lb}")
        a("s_mov_b64 exec, -1")
    def q_finish(tmp, q):
        tree(tmp, 8, 2)
        a(f"v_cvt_pk_bf16_f32 v{q[0]}, v{tmp[0]}, v{tmp[1]}")
        a(f"v_mov_b32 v{q[1]}, v{q[0]}")
        a(f"v_permlane16_swap_b32 v{q[0]}, v{q[1]}")
        a(f"v_mov_b32 v{q[2]}, v{q[0]}"); a(f"v_mov_b32 v{q[3]}, v{q[1]}")
        a(f"v_permlane32_swap_b32 v{q[0]}, v{q[2]}")
        a(f"v_permlane32_swap_b32 v{q[1]}, v{q[3]}")
    def o_read(lb, tmp):
        for w in range(4): a(f"ds_read2st64_b32 v[{tmp[2*w]}:{tmp[2*w+1]}], v{vOR} offset0:{lb//256 + 4*w} offset1:{lb//256 + 4*w+2}")
    def o_finish(tmp):
        tree(tmp, 8)
        a(f"v_cvt_pk_bf16_f32 v{OX}, v{tmp[0]}, v{tmp[0]}")
    def bump():
        st["tgt"] += burst; issue_upto(int(st["tgt"]))
    def max_write(m, srcs, off):
        if len(srcs) == 1: a(f"v_mov_b32 v{m}, v{srcs[0]}")
        else:
            a(f"v_max3_f32 v{m}, v{srcs[0]}, v{srcs[1]}, v{srcs[2]}"); a(f"v_max_f32 v{m}, v{m}, v{srcs[3]}")
        allreduce("v_max_f32", [m], [5])
        a(f"s_lshl_b32 s{sT}, s{sW}, 2"); a(f"v_mov_b32 v5, s{sT}")
        a(f"ds_write_b32 v5, v{m} offset:{L_MX + off}")
    def max_read(t, off):
        a("v_mov_b32 v6, 0")
        for k in range(2): a(f"ds_read_b128 v[{t[4*k]}:{t[4*k+3]}], v6 offset:{L_MX + off + 16*k}")
    def max_finish(m, t, ps, off):
        a(f"v_max3_f32 v{m}, v{t[0]}, v{t[1]}, v{t[2]}"); a(f"v_max3_f32 v{m}, v{m}, v{t[3]}, v{t[4]}")
        a(f"v_max3_f32 v{m}, v{m}, v{t[5]}, v{t[6]}"); a(f"v_max_f32 v{m}, v{m}, v{t[7]}")
        for p in ps: a(f"v_sub_f32 v{p}, v{p}, v{m}")
        for p in ps: a(f"v_mul_f32 v{p}, s{sL2E}, v{p}")
        for p in ps: a(f"v_exp_f32 v{p}, v{p}")
        if len(ps) == 1: a(f"v_mov_b32 v7, v{ps[0]}")
        else:
            a(f"v_add_f32 v7, v{ps[0]}, v{ps[1]}"); a(f"v_add_f32 v8, v{ps[2]}, v{ps[3]}"); a("v_add_f32 v7, v7, v8")
        for p in ps: a(f"v_cvt_pk_bf16_f32 v{p}, v{p}, v{p}")
        allreduce("v_add_f32", [7], [8])
        a(f"s_lshl_b32 s{sT}, s{sW}, 2"); a(f"v_mov_b32 v5, s{sT}")
        a(f"ds_write_b32 v5, v7 offset:{L_LS + off}")

    a("v_and_b32 v7, 1, v0"); a("v_lshlrev_b32 v7, 4, v7"); a("v_mov_b32 v8, 0xffff"); a("v_lshlrev_b32 v7, v7, v8")
    a("v_bfe_u32 v8, v0, 1, 2")
    for k in range(4):
        a(f"v_cmp_eq_u32 vcc, {k}, v8"); a(f"v_cndmask_b32 v{MK[k]}, 0, v7, vcc")
    a("v_and_b32 v7, 1, v5"); a("v_lshlrev_b32 v7, 4, v7"); a("v_lshl_add_u32 v7, v6, 5, v7")
    a("v_lshrrev_b32 v8, 1, v5"); a("v_lshl_add_u32 v7, v8, 12, v7")
    a(f"s_lshl_b32 s{sT}, s{sW}, 9"); a(f"v_add_u32 v{vPW}, s{sT}, v7")
    a("v_lshl_add_u32 v7, v6, 2, v5"); a("v_lshlrev_b32 v7, 2, v7")
    a(f"s_lshr_b32 s{sT}, s{sW}, 2"); a(f"s_lshl_b32 s{sT}, s{sT}, 8"); a(f"v_add_u32 v{vOR}, s{sT}, v7")
    a(f"s_and_b32 s{sT}, s{sW}, 3"); a(f"s_lshl_b32 s{sT}, s{sT}, 9")
    a("v_lshlrev_b32 v7, 3, v0"); a(f"v_add_u32 v{vYR}, s{sT}, v7")
    a(f"s_lshl_b32 s{sT}, s{sW}, 10"); a(f"s_cmp_lt_u32 s{sW}, 4"); a(f"s_cselect_b32 s{sT}, s{sT}, {OOB}")
    a(f"v_add_u32 v{vY}, s{sT}, v{vL16}")
    a(f"s_lshl_b32 s{sWO}, s{sH}, 17"); a(f"s_lshr_b32 s{sT}, s{sW}, 2"); a(f"s_lshl_b32 s{sT}, s{sT}, 16")
    a(f"s_add_u32 s{sWO}, s{sWO}, s{sT}"); a(f"s_and_b32 s{sT}, s{sW}, 3"); a(f"s_lshl_b32 s{sT}, s{sT}, 8")
    a(f"s_add_u32 s{sWO}, s{sWO}, s{sT}")
    a(f"s_mov_b32 s{sM1}, 0xcccccccc"); a(f"s_mov_b32 s{sM1+1}, 0xcccccccc")
    a(f"s_mov_b32 s{sM0}, 0xaaaaaaaa"); a(f"s_mov_b32 s{sM0+1}, 0xaaaaaaaa")
    a(f"s_mov_b32 s{sSC}, 0x3db504f3"); a(f"s_mov_b32 s{sL2E}, 0x3fb8aa3b")
    a(f"s_mov_b32 s{sT}, 0x01000100"); a(f"s_mov_b32 s{sT2}, 0x03020302")
    wait_for(ix)
    xs = partA[0:4]
    for i in range(4): a(f"v_perm_b32 v{xs[i]}, v{10 + i // 2}, v{10 + i // 2}, s{sT2 if i & 1 else sT}")
    for i in range(4):
        s = SEL[i & 1]
        for k in range(4): a(f"v_and_b32 v{s[k]}, v{xs[i]}, v{MK[k]}")
        wait_for(iw[i])
        mfma(accX, s, wr[i], i == 0)
    free.extend(wsl)
    issue_upto(early)
    a("v_cmp_gt_u32 vcc, 8, v6")
    for k in range(4): a(f"v_cndmask_b32 v{MK[k]}, 0, v{MK[k]}, vcc")
    a(f"ds_write_b128 v{vPW}, {R(accX)} offset:{L_QP}")
    a(f"s_bfe_u32 s{sT}, s{sW}, 0x10001"); a(f"s_lshl_b32 s{sT}, s{sT}, 12"); a(f"s_and_b32 s{sT2}, s{sW}, 1"); a(f"s_lshl_b32 s{sT2}, s{sT2}, 8")
    a(f"s_add_u32 s{sT}, s{sT}, s{sT2}")
    a("v_lshlrev_b32 v7, 2, v0"); a(f"v_add_u32 v7, s{sT}, v7")
    barrier()
    t = partB
    for w in range(4): a(f"ds_read2st64_b32 v[{t[2*w]}:{t[2*w+1]}], v7 offset0:{L_QP//256 + 4*w} offset1:{L_QP//256 + 4*w+2}")
    a(f"s_mul_i32 s{sTAG}, s{sTAG}, 0x9e3779b1"); a(f"s_add_u32 s{sTAG}, s{sTAG}, 0x7f4a7c15")
    a(f"v_mov_b32 v{vTAG}, s{sTAG}")
    a(f"s_bfe_u32 s{sT}, s{sW}, 0x10001"); a(f"s_lshl_b32 s{sT}, s{sT}, 5"); a(f"s_add_u32 s{sT}, s{sT}, s{sJ}")
    a(f"s_lshl_b32 s{sT}, s{sT}, 1"); a(f"s_and_b32 s{sOFF}, s{sX}, 1"); a(f"s_add_u32 s{sT}, s{sT}, s{sOFF}")
    a(f"s_lshl_b32 s{sT}, s{sT}, 2"); a(f"s_lshr_b32 s{sOFF}, s{sX}, 1"); a(f"s_add_u32 s{sT}, s{sT}, s{sOFF}")
    a(f"s_lshl_b32 s{sT}, s{sT}, 10")
    a(f"s_lshl_b32 s{sT2}, s{sT2}, 1"); a(f"s_add_u32 s{sT}, s{sT}, s{sT2}"); a(f"s_add_u32 s{sT}, s{sT}, {WS_Q}")
    a(f"s_cmp_lt_u32 s{sW}, 4"); a(f"s_cselect_b32 s{sT}, s{sT}, {OOB}")
    a("v_lshlrev_b32 v7, 3, v0")
    a("s_waitcnt lgkmcnt(0)")
    tree(t, 8)
    a(f"v_mov_b32 v{t[1]}, v{vTAG}")
    last_store["i"] = vmem(f"buffer_store_dwordx2 v[{t[0]}:{t[1]}], v7, {SRD('ws')}, s{sT} offen sc1")
    a(f"s_lshl_b32 s{sWQ}, s{sB}, 5"); a(f"s_add_u32 s{sWQ}, s{sWQ}, s{sH}"); a(f"s_lshl_b32 s{sWQ}, s{sWQ}, 3")
    a(f"s_add_u32 s{sWQ}, s{sWQ}, s{sW}"); a(f"s_lshl_b32 s{sWQ}, s{sWQ}, 10"); a(f"s_add_u32 s{sWQ}, s{sWQ}, {WS_Q}")
    stamp()
    issue_upto(qpos + dmin)
    eQ = ("q", 0); rQ = RING0 + 4 * slot[eQ]
    wait_for(vidx[eQ])
    a(f"s_mov_b32 s{sCNT}, 0")
    a.label("L_qchk")
    a(f"v_cmp_ne_u32 vcc, v{rQ+1}, v{vTAG}"); a(f"v_cmp_ne_u32 s[{sMY}:{sMY+1}], v{rQ+3}, v{vTAG}")
    a(f"s_or_b64 vcc, vcc, s[{sMY}:{sMY+1}]")
    a("s_cbranch_scc0 L_qok")
    a(qload(rQ))
    a(f"s_add_u32 s{sCNT}, s{sCNT}, 1")
    a(f"s_cmp_lt_u32 s{sCNT}, 0x20000")
    a("s_waitcnt vmcnt(0)")
    a("s_cbranch_scc1 L_qchk")
    a.label("L_qok")
    a(f"v_mov_b32 v{rQ+1}, v{rQ+2}")
    a("v_lshlrev_b32 v7, 3, v0"); a(f"s_lshl_b32 s{sT}, s{sW}, 9"); a(f"v_add_u32 v7, s{sT}, v7")
    a(f"ds_write_b64 v7, v[{rQ}:{rQ+1}] offset:{L_Q}")
    a("v_lshlrev_b32 v7, 5, v6"); a("v_lshl_add_u32 v7, v5, 3, v7")
    barrier()
    release(eQ)
    for w in range(4): a(f"ds_read_b64 v[{partB[2*w]}:{partB[2*w+1]}], v7 offset:{L_Q + (4 + w)*512}")
    for w in range(4): a(f"ds_read_b64 v[{partA[2*w]}:{partA[2*w+1]}], v7 offset:{L_Q + w*512}")
    st["tgt"] = float(st["ip"] - 1) + 1
    issue_upto(int(st["tgt"]))
    a("s_waitcnt lgkmcnt(0)")
    q_finish(partB, qB); q_finish(partA, qA)
    stamp()

    steps = []
    ready = {"kB": True, "kA": True, "vA": False, "vB": False, "woA": False, "woB": False}
    pending = []; cnt = {n: 0 for n in ready}; tot = {"kB": 64, "vB": 64}
    def push(e):
        steps.append(("c", e)); cnt[e[0]] += 1
        n, i = e
        if n in ("kB", "kA") and i % 16 == 15: steps.append(("rs", n, i // 16))
        if sub and e == ("vB", a_span): ready["woA"] = True
        if cnt[n] != tot.get(n, 16): return
        if n == "kA": steps.append(("op", "maxA")); ready["vA"] = True
        if n in ("vA", "kB") and cnt["vA"] == 16 and cnt["kB"] == 64:
            steps.append(("op", "mid")); ready["vB"] = True; ready["woA"] = not sub

        if n == "woA": steps.append(("op", "yA"))
        if n == "vB": steps.append(("op", "oB")); ready["woB"] = True
        if n == "woB": steps.append(("op", "yB"))
    def drain():
        again = True
        while again:
            again = False
            for e in list(pending):
                if ready[e[0]]:
                    pending.remove(e); push(e); again = True; break
    for e in issue:
        if e[0] == "q": continue
        if ready[e[0]] and not any(p[0] == e[0] for p in pending):
            push(e); drain()
        else: pending.append(e)
    drain(); assert not pending

    YA = qA; ML = qB; YD = partB[8:12]
    def y_exchange(lb, br, dst):
        part_write(accX, lb)
        a(f"s_lshl_b32 s{sRW}, s{sP}, 12"); a(f"s_add_u32 s{sRW}, s{sRW}, {WS_Y + br * 256 * 4096}")
        a(f"v_mov_b32 v{dst[1]}, v{vTAG}"); a(f"v_mov_b32 v{dst[3]}, v{vTAG}")
        barrier()
        a(f"ds_read_b64 v[6:7], v{vYR} offset:{lb}")
        a(f"ds_read_b64 v[8:9], v{vYR} offset:{lb + 2048}")
        if br == 0:
            t = partA
            a("v_mov_b32 v10, 0")
            for k in range(4): a(f"ds_read_b128 v[{t[4*k]}:{t[4*k+3]}], v10 offset:{L_LS + 16*k}")
            bump()
        a("s_waitcnt lgkmcnt(0)")
        a(f"v_add_f32 v{dst[0]}, v6, v8"); a(f"v_add_f32 v{dst[2]}, v7, v9")
        if br == 0:
            tree(t[0:8], 8); tree(t[8:16], 8)
            a("v_cmp_eq_u32 vcc, 0, v0")
            a(f"v_cndmask_b32 v{ML[0]}, v{vMB}, v{vMA}, vcc"); a(f"v_cndmask_b32 v{ML[2]}, v{t[8]}, v{t[0]}, vcc")
            a(f"v_mov_b32 v{ML[1]}, v{vTAG}"); a(f"v_mov_b32 v{ML[3]}, v{vTAG}")
    def y_store(br, src):
        last_store["i"] = vmem(f"buffer_store_dwordx4 {R(src)}, v{vY}, {SRD('ws')}, s{sRW} offen sc1")
        if br == 0:
            a(f"s_lshl_b32 s{sT}, s{sP}, 7"); a(f"s_add_u32 s{sT}, s{sT}, {WS_ML}")
            a(f"s_cmp_eq_u32 s{sW}, 0"); a(f"s_cselect_b32 s{sT}, s{sT}, {OOB}")
            a("v_lshlrev_b32 v5, 15, v0"); a(f"v_mov_b32 v6, {OOB}")
            a("v_cmp_gt_u32 vcc, 2, v0"); a("v_cndmask_b32 v5, v6, v5, vcc")
            vmem(f"buffer_store_dwordx4 {R(ML)}, v5, {SRD('ws')}, s{sT} offen sc1")
    apub = {"have": False, "done": False}
    nxt = {}

    for s in steps:
        if s[0] == "c":
            e = s[1]; n, i = e
            if not (sub and n in ("woA", "woB")):
                st["tgt"] = max(pos[e] + dmin, st["tgt"] + decay)
                issue_upto(int(st["tgt"]))
            assert e in slot, ("deadlock", e)
            if apub["have"] and not apub["done"] and st["ip"] >= len(issue) - apos:
                y_store(0, YA); apub["done"] = True
            if n == "kB": klike(e, qB, partB[i % 16])
            elif n == "kA": klike(e, qA, partA[i])
            elif n == "vA": vlike(e, accX, PA, i, i == 0)
            elif n == "vB": vlike(e, accB, PB[i // 16], i % 16, i == 0)
            elif sub and n in ("woA", "woB"):
                if i == 15:
                    if n == "woA":
                        st["tgt"] += subburst; issue_upto(int(st["tgt"]))
                    wait_for(vidx[e])
                    a(f"s_call_b64 s[{sRET}:{sRET+1}], L_proj")
                    a.hist = []
                    for k in range(16): release((n, k))
            elif n == "woB":
                if i == 0: nxt["s"] = sel_bcast(OX, 0)
                cur = nxt["s"]
                if i < 15: nxt["s"] = sel_bcast(OX, i + 1)
                wait_for(vidx[e]); mfma(accX, cur, RING0 + 4 * slot[e], i == 0); release(e)
            else: vlike(e, accX, OX, i, i == 0)
        elif s[0] == "rs":
            if s[1] == "kB": reduce_scatter16(partB, PB[s[2]])
            else: reduce_scatter16(partA, PA)
        else:
            op = s[1]
            if op == "maxA":
                max_write(vMA, [PA], 0)
                barrier()
                max_read(partA, 0)
                bump()
                a("s_waitcnt lgkmcnt(0)")
                max_finish(vMA, partA, [PA], 0)
            elif op == "mid":
                max_write(vMB, PB, 32)
                part_write(accX, L_OA)
                barrier()
                max_read(partA, 32)
                if not sub: o_read(L_OA, partB)
                bump()
                a("s_waitcnt lgkmcnt(0)")
                max_finish(vMB, partA, PB, 32)
                if not sub: o_finish(partB)
                stamp()
            elif op == "yA":
                if sub:
                    a(f"v_mov_b32 v{YA[0]}, v{YD[0]}"); a(f"v_mov_b32 v{YA[2]}, v{YD[2]}")
                    a(f"v_mov_b32 v{YA[1]}, v{vTAG}"); a(f"v_mov_b32 v{YA[3]}, v{vTAG}")
                    a(f"s_lshl_b32 s{sRW}, s{sP}, 12")
                    t = partA
                    a("v_mov_b32 v10, 0")
                    for k in range(4): a(f"ds_read_b128 v[{t[4*k]}:{t[4*k+3]}], v10 offset:{L_LS + 16*k}")
                    a("s_waitcnt lgkmcnt(0)")
                    tree(t[0:8], 8); tree(t[8:16], 8)
                    a("v_cmp_eq_u32 vcc, 0, v0")
                    a(f"v_cndmask_b32 v{ML[0]}, v{vMB}, v{vMA}, vcc"); a(f"v_cndmask_b32 v{ML[2]}, v{t[8]}, v{t[0]}, vcc")
                    a(f"v_mov_b32 v{ML[1]}, v{vTAG}"); a(f"v_mov_b32 v{ML[3]}, v{vTAG}")
                else: y_exchange(L_YA, 0, YA)
                apub["have"] = True
            elif op == "oB":
                stamp()
                part_write(accB, L_OA if sub else L_OB)
                if sub:
                    a(f"s_add_u32 s{sRW}, s{sRW}, {256 * 4096}")
                    stamp()
                else:
                    barrier()
                    stamp()
                    o_read(L_OB, partB)
                    a("s_waitcnt lgkmcnt(0)")
                    o_finish(partB)
            elif op == "yB":
                if sub: y_store(1, YD)
                else:
                    y_exchange(L_YB, 1, accB); y_store(1, accB)
                stamp()
    assert st["ip"] == len(issue) and apub["done"]

    if "nored" in diag: a("s_branch L_fin")
    a("s_cmp_ge_u32 s2, 128")
    a("s_cbranch_scc1 L_fin")
    a("v_lshrrev_b32 v5, 2, v0")
    a(f"s_lshl_b32 s{sT}, s{sW}, 4"); a(f"v_add_u32 v5, s{sT}, v5")
    a("v_and_b32 v6, 3, v0")
    a("v_lshlrev_b32 v6, 5, v6"); a("v_lshl_add_u32 v6, v5, 12, v6")
    a("v_lshlrev_b32 v5, 7, v5")
    a(f"s_lshr_b32 s{sT}, s2, 5")
    a(f"s_lshl_b32 s{sOFF}, s{sT}, 19"); a(f"s_and_b32 s{sT2}, s2, 31"); a(f"s_lshl_b32 s{sT2}, s{sT2}, 7")
    a(f"s_add_u32 s{sOFF}, s{sOFF}, s{sT2}")
    a(f"s_lshl_b32 s{sT}, s{sT}, 14"); a(f"s_add_u32 s{sT}, s{sT}, {WS_ML}")
    a(f"s_mov_b32 s{sCNT}, 0")
    Y0, Y1, M0 = 24, 28, 36
    a("v_and_b32 v11, 3, v0"); a("v_lshlrev_b32 v11, 2, v11")
    a("v_bfe_u32 v7, v0, 3, 1"); a("v_lshl_add_u32 v11, v7, 1, v11")
    a("v_bfe_u32 v7, v0, 2, 1"); a("v_add_u32 v11, v7, v11"); a("v_lshlrev_b32 v11, 2, v11")
    a(f"s_lshl_b32 s{sT2}, s{sW}, 6"); a(f"v_add_u32 v11, s{sT2}, v11")
    a("v_and_b32 v16, 7, v0"); a("v_lshlrev_b32 v17, 3, v16"); a("v_lshlrev_b32 v16, 2, v16")
    a(f"s_bfe_u32 s{sKB}, s2, 0x10005"); a(f"s_lshl_b32 s{sKB}, s{sKB}, 11")
    a(f"s_lshr_b32 s{sT2}, s2, 6"); a(f"s_lshl_b32 s{sT2}, s{sT2}, 10"); a(f"s_add_u32 s{sKB}, s{sKB}, s{sT2}")
    a(f"s_and_b32 s{sT2}, s2, 31"); a(f"s_lshl_b32 s{sT2}, s{sT2}, 5"); a(f"s_add_u32 s{sKB}, s{sKB}, s{sT2}")
    a(f"s_mov_b64 s[{sMY}:{sMY+1}], -1"); a(f"s_mov_b64 s[{sMM}:{sMM+1}], -1")
    a.label("L_poll")
    a(f"s_mov_b64 exec, s[{sMY}:{sMY+1}]")
    a("s_cbranch_execz L_poll_m")
    a(f"buffer_load_dwordx4 v[{Y0}:{Y0+3}], v6, {SRD('ws')}, s{sOFF} offen sc1")
    a(f"buffer_load_dwordx4 v[{Y1}:{Y1+3}], v6, {SRD('ws')}, s{sOFF} offen offset:16 sc1")
    a.label("L_poll_m")
    a(f"s_mov_b64 exec, s[{sMM}:{sMM+1}]")
    a("s_cbranch_execz L_poll_w")
    a(f"buffer_load_dwordx4 v[{M0}:{M0+3}], v5, {SRD('ws')}, s{sT} offen sc1")
    a.label("L_poll_w")
    a("s_mov_b64 exec, -1")
    a(f"s_add_u32 s{sCNT}, s{sCNT}, 1")
    a("s_waitcnt vmcnt(0)")
    def red_compute():
        y = [Y0, Y0 + 2, Y1, Y1 + 2]; z = [56, 57, 58, 59]
        a(f"v_max_f32_dpp v7, v{M0}, v{M0} row_ror:4 {DPPF}")
        a(f"v_max_f32_dpp v7, v7, v7 row_ror:8 {DPPF}")
        a(f"v_sub_f32 v7, v{M0}, v7"); a(f"v_mul_f32 v7, s{sL2E}, v7"); a("v_exp_f32 v7, v7")
        a(f"v_mul_f32 v8, v7, v{M0+2}")
        a(f"v_add_f32_dpp v8, v8, v8 row_ror:4 {DPPF}")
        a(f"v_add_f32_dpp v8, v8, v8 row_ror:8 {DPPF}")
        a("v_rcp_f32 v8, v8"); a("v_mul_f32 v7, v7, v8")
        for k in range(4): a(f"v_mul_f32 v{z[k]}, v7, v{y[k]}")
        for k in range(2): a(f"v_add_f32_dpp v{z[k]}, v{z[k]}, v{z[k]} row_ror:8 row_mask:0xf bank_mask:0x3")
        for k in range(2): a(f"v_add_f32_dpp v{z[k]}, v{z[k+2]}, v{z[k+2]} row_ror:8 row_mask:0xf bank_mask:0xc")
        a(f"v_add_f32_dpp v{z[0]}, v{z[0]}, v{z[0]} row_shl:4 row_mask:0xf bank_mask:0x5")
        a(f"v_add_f32_dpp v{z[0]}, v{z[1]}, v{z[1]} row_shr:4 row_mask:0xf bank_mask:0xa")
        a(f"v_mov_b32 v9, v{z[0]}")
        a(f"v_permlane16_swap_b32 v{z[0]}, v9"); a(f"v_add_f32 v{z[0]}, v{z[0]}, v9")
        a(f"v_mov_b32 v9, v{z[0]}")
        a(f"v_permlane32_swap_b32 v{z[0]}, v9"); a(f"v_add_f32 v{z[0]}, v{z[0]}, v9")
        a(f"ds_write_b32 v11, v{z[0]} offset:{L_RED}")
    if warmred: red_compute()
    a(f"v_xor_b32 v7, v{Y0+1}, v{vTAG}"); a(f"v_xor_b32 v8, v{Y0+3}, v{vTAG}"); a(f"v_xor_b32 v9, v{Y1+1}, v{vTAG}")
    a("v_or3_b32 v7, v7, v8, v9")
    a(f"v_xor_b32 v8, v{Y1+3}, v{vTAG}"); a(f"v_xor_b32 v9, v{M0+1}, v{vTAG}"); a(f"v_xor_b32 v10, v{M0+3}, v{vTAG}")
    a("v_or_b32 v7, v7, v8"); a("v_or_b32 v9, v9, v10")
    a(f"v_cmp_ne_u32 s[{sMY}:{sMY+1}], 0, v7"); a(f"v_cmp_ne_u32 s[{sMM}:{sMM+1}], 0, v9")
    a("s_nop 0")
    a(f"s_or_b64 vcc, s[{sMY}:{sMY+1}], s[{sMM}:{sMM+1}]")
    a("s_cbranch_scc0 L_poll_ok")
    if slp:
        a(f"s_bcnt1_i32_b64 s{sT2}, vcc")
        a(f"s_cmp_le_u32 s{sT2}, {slpthr}")
        a("s_cbranch_scc1 L_poll_n")
        a(f"s_sleep {slp}")
        a.label("L_poll_n")
    a(f"s_cmp_lt_u32 s{sCNT}, 0x20000")
    a("s_cbranch_scc1 L_poll")
    a.label("L_poll_ok")
    if not warmred: red_compute()
    barrier()
    a(f"s_cmp_lg_u32 s{sW}, 0")
    a("s_cbranch_scc1 L_fin")
    t = partA
    for w in range(8): a(f"ds_read_b64 v[{t[2*w]}:{t[2*w+1]}], v17 offset:{L_RED + w*64}")
    a("s_waitcnt lgkmcnt(0)")
    tree(t, 16, 2)
    a(f"v_cvt_pk_bf16_f32 v7, v{t[0]}, v{t[1]}")
    a("s_mov_b64 exec, 0xff")
    a(f"buffer_store_dword v7, v16, {SRD('out')}, s{sKB} offen")
    a("s_cmp_lg_u32 s2, 64")
    a("s_cbranch_scc1 L_fin")
    a("s_mov_b64 exec, 1")
    a(f"s_mov_b32 s{sT}, {hex(WS_EP)}")
    a(f"buffer_store_dword v{vTAG}, v16, {SRD('ws')}, s{sT} offen sc1")
    a.label("L_fin")
    if stamps:
        a("s_mov_b64 exec, -1")
        stamp()
        if "tailprof" in diag:
            a("s_memtime s[88:89]"); a("s_waitcnt lgkmcnt(0)")
            for k in range(7): a(f"v_writelane_b32 v{vSTAMP}, s{76 + 2*k}, {k}")
            a(f"v_writelane_b32 v{vSTAMP}, s90, 7")
        assert stampn["n"] == 8, stampn
        a(f"s_lshl_b32 s{sT}, s2, 3"); a(f"s_add_u32 s{sT}, s{sT}, s{sW}"); a(f"s_lshl_b32 s{sT}, s{sT}, 5")
        a(f"s_add_u32 s{sT}, s{sT}, {WS_ST}")
        a("v_lshlrev_b32 v5, 2, v0")
        a("s_mov_b64 exec, 0xff")
        a(f"buffer_store_dword v{vSTAMP}, v5, {SRD('ws')}, s{sT} offen")
        if "dbgst" in diag:
            a("s_load_dwordx2 s[76:77], s[0:1], 88"); a("s_mov_b32 s78, 256"); a("s_mov_b32 s79, 0x20000")
            a(f"s_cmp_eq_u32 s2, 64"); a(f"s_cselect_b32 s{sT}, 0, {OOB}")
            a(f"s_cmp_eq_u32 s2, 205"); a(f"s_cselect_b32 s{sT}, 32, s{sT}")
            a(f"s_cmp_eq_u32 s{sW}, 0"); a(f"s_cselect_b32 s{sT}, s{sT}, {OOB}")
            a(f"v_readlane_b32 s{sT2}, v{vSTAMP}, 0")
            a(f"v_subrev_u32 v{vSTAMP}, s{sT2}, v{vSTAMP}")
            a("s_waitcnt lgkmcnt(0)")
            a(f"buffer_store_dword v{vSTAMP}, v5, s[76:79], s{sT} offen")
    a.label("L_end")
    a("s_endpgm")
    if sub:
        a.label("L_proj")
        a.hist = []
        tp = "tailprof" in diag
        if tp: a("s_memtime s[76:77]")
        barrier()
        if tp: a("s_memtime s[78:79]")
        o_read(L_OA, partB)
        a(f"v_mov_b32 v{YD[1]}, v{vTAG}"); a(f"v_mov_b32 v{YD[3]}, v{vTAG}")
        a("s_waitcnt lgkmcnt(0)")
        if tp: a("s_memtime s[80:81]")
        o_finish(partB)
        selk["k"] = 0
        cur = sel_bcast(OX, 0)
        for i in range(16):
            nx = sel_bcast(OX, i + 1) if i < 15 else None
            mfma(accX, cur, RING0 + 4 * (WB0 + i), i == 0); cur = nx
        if tp: a("s_memtime s[82:83]")
        part_write(accX, L_YA)
        barrier()
        if tp: a("s_memtime s[84:85]")
        a(f"ds_read_b64 v[6:7], v{vYR} offset:{L_YA}")
        a(f"ds_read_b64 v[8:9], v{vYR} offset:{L_YA + 2048}")
        a("s_waitcnt lgkmcnt(0)")
        a(f"v_add_f32 v{YD[0]}, v6, v8"); a(f"v_add_f32 v{YD[2]}, v7, v9")
        if tp: a("s_memtime s[86:87]")
        a(f"s_setpc_b64 s[{sRET}:{sRET+1}]")
    a.raw('.section .rodata,"a"'); a.raw(".p2align 6"); a.raw(f".amdhsa_kernel {NAME}")
    a.raw("  .amdhsa_next_free_vgpr 256"); a.raw(f"  .amdhsa_next_free_sgpr {NSGPR}"); a.raw("  .amdhsa_accum_offset 256")
    a.raw("  .amdhsa_group_segment_fixed_size 0"); a.raw("  .amdhsa_kernarg_size 104"); a.raw("  .amdhsa_user_sgpr_count 2")
    a.raw("  .amdhsa_user_sgpr_kernarg_segment_ptr 1"); a.raw("  .amdhsa_system_sgpr_workgroup_id_x 1"); a.raw(".end_amdhsa_kernel")
    return a.text()

if __name__ == "__main__":
    out = sys.argv[1]
    kw = json.loads(sys.argv[2]) if len(sys.argv) > 2 else {}
    open(out, "w").write(gen(**kw))
```

```python
import sys, json
from asmlib import Asm

NAME = "concat_heads__sliding_block_cached__mha_block_cached__decode_kernel"
HEADER = open("concat_heads__sliding_block_cached__mha_block_cached__decode.s.ref").read().split("; Override launch")[0]
DPPF = "row_mask:0xf bank_mask:0xf"

WS_Y = 0
WS_ML = 0x200000
WS_Q = 0x220000
WS_EP = 0x320000
WS_ST = 0x340000
WS_SIZE = 0x400000
OOB = 0x40000000

def gen(F=5, dmin=None, burst=0, stamps=False, pol="nt", shpol="", qpos=22, decay=0.5, rsh=2, diag="",
        relax=4, slp=8, slpthr=16, early=1, apos=0, sub=False, subburst=3, warmred=True, a_span=27, b_start=36, pre=6, post=2, wb=(12,13,16), ib=(11,15,14,10,17,18), preb=0, rota=(2,3,4,5), rotw=(2,0,1,3), wba=(12,13,16), iba=(11,15,14,10), nb=3, gap=5):
    if dmin is None: dmin = F - 1
    a = Asm()
    names = ["xA", "kA", "vA", "wqA", "woA", "xB", "kB", "vB", "wqB", "woB", "out", "dbg", "ws"]
    sizes = {"x": 2048, "wq": 4 << 20, "kA": 32 << 20, "vA": 32 << 20, "woA": 4 << 20,
             "kB": 128 << 20, "vB": 128 << 20, "woB": 4 << 20, "out": 4096, "ws": WS_SIZE}
    srd = {n: 8 + 4 * i for i, n in enumerate(sizes)}
    def SRD(n): return f"s[{srd[n]}:{srd[n]+3}]"
    sW, sH, sB, sS, sT = 3, 4, 5, 6, 7
    sX, sJ, sT2, sKB, sKA, sWQ, sWO, sOFF, sP, sTAG, sSC, sL2E, sCNT, sRW = range(48, 62)
    sM1, sM0, sST, sMY, sMM = 62, 64, 66, 68, 70
    sRET = 72; sTM = 74
    NSGPR = 96
    vL16, vWo, vPW, vOR = 1, 2, 3, 4
    vSTAMP, vMA, vMB, vTAG = 12, 13, 14, 15
    qB = list(range(16, 20)); qA = list(range(20, 24))
    accB = list(range(24, 28)); accX = list(range(28, 32))
    MK = list(range(32, 36))
    SEL = [list(range(36, 40)), list(range(40, 44))]
    partB = list(range(44, 60)); partA = list(range(60, 76))
    PB = list(range(76, 80)); PA = 80; OX = 81; vY = 82; vYR = 83
    RING0 = 84
    NS = (256 - RING0) // 4
    L_QP = 0
    L_Q, L_OA, L_OB, L_YA, L_YB = [8192 + 4096 * i for i in range(5)]
    L_MX = 8192 + 5 * 4096; L_LS = L_MX + 64; L_RED = L_MX + 256
    LDS = L_RED + 1024

    a.raw(HEADER.rstrip("\n"))
    a.raw(f"; @launch grid=(256,1,1) block=(512,1,1) lds={LDS}")
    a.raw('.amdgcn_target "amdgcn-amd-amdhsa--gfx950"')
    a.raw(".text"); a.raw(f".globl {NAME}"); a.raw(".p2align 8"); a.raw(f".type {NAME},@function")
    a.label(NAME)
    a("s_cmp_ge_u32 s2, 256")
    a("s_cbranch_scc1 L_end")
    a(f"s_and_b32 s{sT}, s2, 1"); a(f"s_mul_i32 s{sT}, s{sT}, 40"); a(f"s_add_u32 s{sT2}, s{sT}, 24")
    a(f"s_load_dwordx2 s[{srd['wq']}:{srd['wq']+1}], s[0:1], s{sT2}")
    a(f"s_load_dwordx2 s[{srd['x']}:{srd['x']+1}], s[0:1], s{sT}")
    for n in ["kB", "ws", "kA", "vA", "vB"]:
        a(f"s_load_dwordx2 s[{srd[n]}:{srd[n]+1}], s[0:1], {8 * names.index(n)}")
    if stamps: a(f"s_memrealtime s[{sST}:{sST+1}]")
    if "tailprof" in diag: a("s_memtime s[90:91]")
    if "pad" in diag: a("s_memrealtime s[92:93]")
    stampn = {"n": 1}
    def stamp():
        if not stamps: return
        a(f"s_memrealtime s[{sST}:{sST+1}]"); a("s_waitcnt lgkmcnt(0)")
        a(f"v_writelane_b32 v{vSTAMP}, s{sST}, {stampn['n']}"); stampn["n"] += 1
    a("v_lshrrev_b32 v1, 6, v0")
    a("v_and_b32 v0, 63, v0")
    a(f"v_readfirstlane_b32 s{sW}, v1")
    for n in srd:
        a(f"s_mov_b32 s{srd[n]+2}, {hex(sizes[n])}"); a(f"s_mov_b32 s{srd[n]+3}, 0x20000")
    a(f"s_and_b32 s{sX}, s2, 7"); a(f"s_lshr_b32 s{sJ}, s2, 3")
    a("v_lshrrev_b32 v5, 4, v0"); a("v_and_b32 v6, 15, v0")
    a(f"v_lshlrev_b32 v{vL16}, 4, v0")
    a("v_lshlrev_b32 v7, 4, v6")
    a("v_lshl_add_u32 v9, v5, 15, v7")
    a(f"v_lshl_add_u32 v{vWo}, v5, 10, v7")
    a("v_bfe_u32 v8, v0, 3, 1"); a("v_lshlrev_b32 v8, 10, v8"); a("v_lshl_add_u32 v8, v5, 3, v8")
    a(f"s_lshr_b32 s{sT}, s{sX}, 1"); a(f"s_lshl_b32 s{sT}, s{sT}, 3"); a(f"s_add_u32 s{sT}, s{sT}, s{sW}")
    a(f"s_lshl_b32 s{sRW}, s{sT}, 5")
    a(f"s_lshl_b32 s{sWQ}, s{sT}, 17"); a(f"s_lshl_b32 s{sT2}, s{sJ}, 8"); a(f"s_add_u32 s{sWQ}, s{sWQ}, s{sT2}")
    a(f"s_lshr_b32 s{sH}, s{sJ}, 3"); a(f"s_lshl_b32 s{sT}, s{sX}, 2"); a(f"s_add_u32 s{sH}, s{sH}, s{sT}")
    a(f"s_bfe_u32 s{sB}, s{sJ}, 0x10002"); a(f"s_and_b32 s{sS}, s{sJ}, 3")
    a(f"s_lshl_b32 s{sP}, s{sB}, 5"); a(f"s_add_u32 s{sP}, s{sP}, s{sH}")
    a(f"s_lshl_b32 s{sP}, s{sP}, 2"); a(f"s_add_u32 s{sP}, s{sP}, s{sS}")
    a(f"s_and_b32 s{sT2}, s{sW}, 3"); a(f"s_lshl_b32 s{sT2}, s{sT2}, 1"); a(f"s_lshr_b32 s{sT}, s{sW}, 2")
    a(f"s_add_u32 s{sT2}, s{sT2}, s{sT}"); a(f"s_lshl_b32 s{sT2}, s{sT2}, 10")
    if ib is None: ib = [b for b in range(10, 19) if b not in wb]
    a(f"s_lshl_b32 s{sKB}, s{sP}, 19")
    if tuple(wb) == (10, 11, 12): a(f"s_add_u32 s{sKB}, s{sKB}, s{sT2}")
    else:
        for src, dst in ((2, wb[0]), (0, wb[1]), (1, wb[2])):
            a(f"s_bfe_u32 s{sT}, s{sW}, {hex(0x10000 | src)}"); a(f"s_lshl_b32 s{sT}, s{sT}, {dst}"); a(f"s_or_b32 s{sKB}, s{sKB}, s{sT}")
    if list(ib) == list(range(13, 19)):
        a(f"s_lshr_b32 s{sT}, s2, {rsh}"); a(f"s_and_b32 s{sT}, s{sT}, 63"); a(f"s_lshl_b32 s{sT}, s{sT}, 13")
        a(f"s_or_b32 s{sKB}, s{sKB}, s{sT}")
    else:
        for k, dst in enumerate(ib):
            a(f"s_bfe_u32 s{sT}, s2, {hex(0x10000 | (k + rsh))}"); a(f"s_lshl_b32 s{sT}, s{sT}, {dst}"); a(f"s_or_b32 s{sKB}, s{sKB}, s{sT}")
    a(f"s_lshl_b32 s{sKA}, s{sB}, 3"); a(f"s_add_u32 s{sKA}, s{sKA}, s{sX}")
    a(f"s_lshl_b32 s{sKA}, s{sKA}, 4"); a(f"s_add_u32 s{sKA}, s{sKA}, s{sS}"); a(f"s_add_u32 s{sKA}, s{sKA}, 12")
    a(f"s_lshl_b32 s{sKA}, s{sKA}, 17")
    if tuple(wba) == (10, 11, 12): a(f"s_add_u32 s{sKA}, s{sKA}, s{sT2}")
    else:
        for src, dst in ((2, wba[0]), (0, wba[1]), (1, wba[2])):
            a(f"s_bfe_u32 s{sT}, s{sW}, {hex(0x10000 | src)}"); a(f"s_lshl_b32 s{sT}, s{sT}, {dst}"); a(f"s_or_b32 s{sKA}, s{sKA}, s{sT}")
    for src, dst in zip(rota, iba):
        if src is None or src < 0: continue
        assert src <= 5
        a(f"s_bfe_u32 s{sT}, s2, {hex(0x10000 | src)}"); a(f"s_lshl_b32 s{sT}, s{sT}, {dst}"); a(f"s_or_b32 s{sKA}, s{sKA}, s{sT}")
    a(f"s_mov_b32 s{sCNT}, {hex(WS_EP)}")
    a("s_waitcnt lgkmcnt(0)")
    if stamps: a(f"v_writelane_b32 v{vSTAMP}, s{sST}, 0")

    vm = {"n": 0}; done = {"upto": 0}; last_store = {"i": -100}
    def vmem(text):
        a(text); vm["n"] += 1; return vm["n"] - 1
    def wait_for(idx):
        if idx < done["upto"]: return
        n = vm["n"] - 1 - idx
        assert n <= 63
        a(f"s_waitcnt vmcnt({n})"); done["upto"] = idx + 1
    def limit(f):
        tgt = vm["n"] - f
        if tgt >= last_store["i"] and vm["n"] - last_store["i"] <= f + relax - 1: tgt = last_store["i"] - 1
        if tgt >= 0: wait_for(tgt)

    free = list(range(NS))
    wsl = [free.pop(0) for _ in range(4)]
    wr = [RING0 + 4 * s for s in wsl]
    ix = vmem(f"buffer_load_dwordx2 v[10:11], v8, {SRD('x')}, s{sRW} offen")
    iw = []
    for i in range(4):
        if i: a(f"s_add_u32 s{sOFF}, s{sWQ}, {i * 8192}")
        iw.append(vmem(f"buffer_load_dwordx4 v[{wr[i]}:{wr[i]+3}], v9, {SRD('wq')}, s{sOFF if i else sWQ} offen {pol}"))

    P = [("kB", i) for i in range(64)] + [("vB", i) for i in range(64)]
    issue = []
    after = {}
    for i in range(16):
        after.setdefault(2 * i, []).append(("kA", i))
        after.setdefault(32 + 2 * i, []).append(("vA", i))
        if sub:
            after.setdefault(64 + (i * a_span) // 16, []).append(("woA", i))
            after.setdefault(64 + b_start + (i * (63 - b_start)) // 16, []).append(("woB", i))
        else:
            after.setdefault(64 + 2 * i, []).append(("woA", i))
            after.setdefault(96 + 2 * i, []).append(("woB", i))
    for i, e in enumerate(P):
        issue.append(e); issue += after.get(i, [])
    assert issue[-1][0] == "vB"
    issue.insert(qpos, ("q", 0))
    pos = {e: i for i, e in enumerate(issue)}
    slot = {}; vidx = {}
    st = {"ip": 0, "tgt": 0.0}
    def qload(r):
        return f"buffer_load_dwordx4 v[{r}:{r+3}], v{vL16}, {SRD('ws')}, s{sWQ} offen sc1"
    WB0 = NS - 16
    def pick(n, i):
        if sub:
            if n in ("woA", "woB"):
                return WB0 + i if (WB0 + i) in free else None
            cand = [s for s in free if s < WB0 or st["ip"] < 56]
            return cand[0] if cand else None
        return free[0] if free else None
    def issue_one(lim=True):
        e = issue[st["ip"]]; n, i = e
        s = pick(n, i); free.remove(s); slot[e] = s
        r = RING0 + 4 * s
        if n == "q":
            if lim: limit(F)
            vidx[e] = vmem(qload(r))
        else:
            if n in ("kB", "vB"): base, off, va, pl = sKB, sum(((i >> k) & 1) << b for k, b in enumerate(ib)), vL16, pol
            elif n in ("kA", "vA"): base, off, va, pl = sKA, sum(((i >> k) & 1) << b for k, b in enumerate(iba)), vL16, shpol
            else: base, off, va, pl = sWO, i * 4096, vWo, shpol
            if off:
                a(f"s_xor_b32 s{sOFF}, s{base}, {off}"); so = sOFF
            else: so = base
            if lim: limit(F)
            vidx[e] = vmem(f"buffer_load_dwordx4 v[{r}:{r+3}], v{va}, {SRD(n)}, s{so} offen {pl}")
        st["ip"] += 1
    def issue_upto(t):
        while st["ip"] <= t and st["ip"] < len(issue) and pick(*issue[st["ip"]]) is not None:
            issue_one()
    def release(e): free.append(slot.pop(e))
    for _ in range(early): issue_one(False)
    a(f"s_load_dword s{sTAG}, s[{srd['ws']}:{srd['ws']+1}], s{sCNT}")
    for n in ["woA", "woB", "out"]:
        a(f"s_load_dwordx2 s[{srd[n]}:{srd[n]+1}], s[0:1], {8 * names.index(n)}")

    selk = {"k": 0}
    def R(regs): return f"v[{regs[0]}:{regs[-1]}]"
    def sel_bcast(p, lane):
        s = SEL[selk["k"]]; selk["k"] ^= 1
        for k in range(4): a(f"v_and_b32_dpp v{s[k]}, v{p}, v{MK[k]} row_newbcast:{lane} {DPPF}")
        return s
    def mfma(acc, s, r, first):
        a(f"v_mfma_f32_16x16x32_bf16 {R(acc)}, {R(s)}, v[{r}:{r+3}], {'0' if first else R(acc)}")
    def vlike(e, acc, p, lane, first):
        s = sel_bcast(p, lane)
        wait_for(vidx[e]); mfma(acc, s, RING0 + 4 * slot[e], first); release(e)
    def klike(e, q, dst):
        r = RING0 + 4 * slot[e]
        wait_for(vidx[e])
        a(f"v_dot2_f32_bf16 v{dst}, v{r}, v{q[0]}, 0")
        for k in range(1, 4): a(f"v_dot2_f32_bf16 v{dst}, v{r+k}, v{q[k]}, v{dst}")
        release(e)
    def reduce_scatter16(r, dst):
        for i in range(8): a(f"v_add_f32_dpp v{r[i]}, v{r[i]}, v{r[i]} row_ror:8 row_mask:0xf bank_mask:0x3")
        for i in range(8): a(f"v_add_f32_dpp v{r[i]}, v{r[i+8]}, v{r[i+8]} row_ror:8 row_mask:0xf bank_mask:0xc")
        for i in range(4): a(f"v_add_f32_dpp v{r[i]}, v{r[i]}, v{r[i]} row_half_mirror row_mask:0xf bank_mask:0x5")
        for i in range(4): a(f"v_add_f32_dpp v{r[i]}, v{r[i+4]}, v{r[i+4]} row_half_mirror row_mask:0xf bank_mask:0xa")
        for i in range(4): a(f"v_add_f32_dpp v{r[i]}, v{r[i]}, v{r[i]} quad_perm:[2,3,0,1] {DPPF}")
        a(f"v_cndmask_b32 v{r[0]}, v{r[0]}, v{r[2]}, s[{sM1}:{sM1+1}]")
        a(f"v_cndmask_b32 v{r[1]}, v{r[1]}, v{r[3]}, s[{sM1}:{sM1+1}]")
        for i in range(2): a(f"v_add_f32_dpp v{r[i]}, v{r[i]}, v{r[i]} quad_perm:[1,0,3,2] {DPPF}")
        a(f"v_cndmask_b32 v{dst}, v{r[0]}, v{r[1]}, s[{sM0}:{sM0+1}]")
        a(f"v_cvt_pk_bf16_f32 v{dst}, 0, v{dst}")
        a(f"v_mul_f32 v{dst}, s{sSC}, v{dst}")
        a(f"v_cvt_pk_bf16_f32 v{dst}, 0, v{dst}")
    def allreduce(op, regs, tmps):
        for sh in (8, 4, 2, 1):
            for r in regs: a(f"{op}_dpp v{r}, v{r}, v{r} row_ror:{sh} {DPPF}")
        for pl in ("v_permlane16_swap_b32", "v_permlane32_swap_b32"):
            for r, t in zip(regs, tmps): a(f"v_mov_b32 v{t}, v{r}")
            for r, t in zip(regs, tmps): a(f"{pl} v{r}, v{t}")
            for r, t in zip(regs, tmps): a(f"{op} v{r}, v{r}, v{t}")
    inmain = {"v": False}
    def barrier():
        if inmain["v"] and preb:
            st["tgt"] += preb; issue_upto(int(st["tgt"]))
        a("s_waitcnt lgkmcnt(0)"); a("s_barrier")
    def tree(t, n, stop=1):
        st_ = n // 2
        while st_ >= stop:
            for k in range(st_): a(f"v_add_f32 v{t[k]}, v{t[k]}, v{t[k+st_]}")
            st_ //= 2
    def part_write(acc, lb):
        a("s_mov_b64 exec, 0xffffffff")
        a(f"ds_write_b128 v{vPW}, {R(acc)} offset:{lb}")
        a("s_mov_b64 exec, -1")
    def q_finish(tmp, q):
        tree(tmp, 8, 2)
        a(f"v_cvt_pk_bf16_f32 v{q[0]}, v{tmp[0]}, v{tmp[1]}")
        a(f"v_mov_b32 v{q[1]}, v{q[0]}")
        a(f"v_permlane16_swap_b32 v{q[0]}, v{q[1]}")
        a(f"v_mov_b32 v{q[2]}, v{q[0]}"); a(f"v_mov_b32 v{q[3]}, v{q[1]}")
        a(f"v_permlane32_swap_b32 v{q[0]}, v{q[2]}")
        a(f"v_permlane32_swap_b32 v{q[1]}, v{q[3]}")
    def o_read(lb, tmp):
        for w in range(4): a(f"ds_read2st64_b32 v[{tmp[2*w]}:{tmp[2*w+1]}], v{vOR} offset0:{lb//256 + 4*w} offset1:{lb//256 + 4*w+2}")
    def o_finish(tmp):
        tree(tmp, 8)
        a(f"v_cvt_pk_bf16_f32 v{OX}, v{tmp[0]}, v{tmp[0]}")
    def bump():
        st["tgt"] += burst; issue_upto(int(st["tgt"]))
    def max_write(m, srcs, off):
        if len(srcs) == 1: a(f"v_mov_b32 v{m}, v{srcs[0]}")
        else:
            a(f"v_max3_f32 v{m}, v{srcs[0]}, v{srcs[1]}, v{srcs[2]}"); a(f"v_max_f32 v{m}, v{m}, v{srcs[3]}")
        allreduce("v_max_f32", [m], [5])
        a(f"s_lshl_b32 s{sT}, s{sW}, 2"); a(f"v_mov_b32 v5, s{sT}")
        a(f"ds_write_b32 v5, v{m} offset:{L_MX + off}")
    def max_read(t, off):
        a("v_mov_b32 v6, 0")
        for k in range(2): a(f"ds_read_b128 v[{t[4*k]}:{t[4*k+3]}], v6 offset:{L_MX + off + 16*k}")
    def max_finish(m, t, ps, off):
        a(f"v_max3_f32 v{m}, v{t[0]}, v{t[1]}, v{t[2]}"); a(f"v_max3_f32 v{m}, v{m}, v{t[3]}, v{t[4]}")
        a(f"v_max3_f32 v{m}, v{m}, v{t[5]}, v{t[6]}"); a(f"v_max_f32 v{m}, v{m}, v{t[7]}")
        for p in ps: a(f"v_sub_f32 v{p}, v{p}, v{m}")
        for p in ps: a(f"v_mul_f32 v{p}, s{sL2E}, v{p}")
        for p in ps: a(f"v_exp_f32 v{p}, v{p}")
        if len(ps) == 1: a(f"v_mov_b32 v7, v{ps[0]}")
        else:
            a(f"v_add_f32 v7, v{ps[0]}, v{ps[1]}"); a(f"v_add_f32 v8, v{ps[2]}, v{ps[3]}"); a("v_add_f32 v7, v7, v8")
        for p in ps: a(f"v_cvt_pk_bf16_f32 v{p}, v{p}, v{p}")
        allreduce("v_add_f32", [7], [8])
        a(f"s_lshl_b32 s{sT}, s{sW}, 2"); a(f"v_mov_b32 v5, s{sT}")
        a(f"ds_write_b32 v5, v7 offset:{L_LS + off}")

    a("v_and_b32 v7, 1, v0"); a("v_lshlrev_b32 v7, 4, v7"); a("v_mov_b32 v8, 0xffff"); a("v_lshlrev_b32 v7, v7, v8")
    a("v_bfe_u32 v8, v0, 1, 2")
    for k in range(4):
        a(f"v_cmp_eq_u32 vcc, {k}, v8"); a(f"v_cndmask_b32 v{MK[k]}, 0, v7, vcc")
    a("v_and_b32 v7, 1, v5"); a("v_lshlrev_b32 v7, 4, v7"); a("v_lshl_add_u32 v7, v6, 5, v7")
    a("v_lshrrev_b32 v8, 1, v5"); a("v_lshl_add_u32 v7, v8, 12, v7")
    a(f"s_lshl_b32 s{sT}, s{sW}, 9"); a(f"v_add_u32 v{vPW}, s{sT}, v7")
    if rotw:
        a(f"s_mov_b32 s{sT2}, 0")
        for k, src in enumerate(rotw):
            if src is None or src < 0: continue
            a(f"s_bfe_u32 s{sT}, s{sH}, {hex(0x10000 | src)}"); a(f"s_lshl_b32 s{sT}, s{sT}, {k}"); a(f"s_or_b32 s{sT2}, s{sT2}, s{sT}")
        a(f"v_xor_b32 v7, s{sT2}, v6"); a("v_lshl_add_u32 v7, v7, 2, v5"); a("v_lshlrev_b32 v7, 2, v7")
    else:
        a("v_lshl_add_u32 v7, v6, 2, v5"); a("v_lshlrev_b32 v7, 2, v7")
    a(f"s_lshr_b32 s{sT}, s{sW}, 2"); a(f"s_lshl_b32 s{sT}, s{sT}, 8"); a(f"v_add_u32 v{vOR}, s{sT}, v7")
    a(f"s_and_b32 s{sT}, s{sW}, 1"); a(f"s_lshl_b32 s{sT}, s{sT}, 10")
    a(f"v_add_u32 v{vYR}, s{sT}, v{vL16}")
    a(f"s_cmp_lt_u32 s{sW}, 2"); a(f"s_cselect_b32 s{sT}, s{sT}, {OOB}")
    a(f"v_add_u32 v{vY}, s{sT}, v{vL16}")
    a(f"s_movk_i32 s{sTM}, 0xfff")
    a(f"s_lshl_b32 s{sWO}, s{sH}, 17"); a(f"s_lshr_b32 s{sT}, s{sW}, 2"); a(f"s_lshl_b32 s{sT}, s{sT}, 16")
    a(f"s_add_u32 s{sWO}, s{sWO}, s{sT}"); a(f"s_and_b32 s{sT}, s{sW}, 3"); a(f"s_lshl_b32 s{sT}, s{sT}, 8")
    a(f"s_add_u32 s{sWO}, s{sWO}, s{sT}")
    if rotw:
        a(f"s_lshl_b32 s{sT2}, s{sT2}, 12"); a(f"s_or_b32 s{sWO}, s{sWO}, s{sT2}")
    a(f"s_mov_b32 s{sM1}, 0xcccccccc"); a(f"s_mov_b32 s{sM1+1}, 0xcccccccc")
    a(f"s_mov_b32 s{sM0}, 0xaaaaaaaa"); a(f"s_mov_b32 s{sM0+1}, 0xaaaaaaaa")
    a(f"s_mov_b32 s{sSC}, 0x3db504f3"); a(f"s_mov_b32 s{sL2E}, 0x3fb8aa3b")
    a(f"s_mov_b32 s{sT}, 0x01000100"); a(f"s_mov_b32 s{sT2}, 0x03020302")
    wait_for(ix)
    xs = partA[0:4]
    for i in range(4): a(f"v_perm_b32 v{xs[i]}, v{10 + i // 2}, v{10 + i // 2}, s{sT2 if i & 1 else sT}")
    for i in range(4):
        s = SEL[i & 1]
        for k in range(4): a(f"v_and_b32 v{s[k]}, v{xs[i]}, v{MK[k]}")
        wait_for(iw[i])
        mfma(accX, s, wr[i], i == 0)
    free.extend(wsl)
    issue_upto(early)
    a("v_cmp_gt_u32 vcc, 8, v6")
    for k in range(4): a(f"v_cndmask_b32 v{MK[k]}, 0, v{MK[k]}, vcc")
    a(f"ds_write_b128 v{vPW}, {R(accX)} offset:{L_QP}")
    a(f"s_bfe_u32 s{sT}, s{sW}, 0x10001"); a(f"s_lshl_b32 s{sT}, s{sT}, 12"); a(f"s_and_b32 s{sT2}, s{sW}, 1"); a(f"s_lshl_b32 s{sT2}, s{sT2}, 8")
    a(f"s_add_u32 s{sT}, s{sT}, s{sT2}")
    a("v_lshlrev_b32 v7, 2, v0"); a(f"v_add_u32 v7, s{sT}, v7")
    issue_upto(early + pre)
    barrier()
    t = partB
    for w in range(4): a(f"ds_read2st64_b32 v[{t[2*w]}:{t[2*w+1]}], v7 offset0:{L_QP//256 + 4*w} offset1:{L_QP//256 + 4*w+2}")
    issue_upto(early + pre + post)
    a(f"s_mul_i32 s{sTAG}, s{sTAG}, 0x9e3779b1"); a(f"s_add_u32 s{sTAG}, s{sTAG}, 0x7f4a7c15")
    a(f"v_mov_b32 v{vTAG}, s{sTAG}")
    a(f"s_bfe_u32 s{sT}, s{sW}, 0x10001"); a(f"s_lshl_b32 s{sT}, s{sT}, 5"); a(f"s_add_u32 s{sT}, s{sT}, s{sJ}")
    a(f"s_lshl_b32 s{sT}, s{sT}, 1"); a(f"s_and_b32 s{sOFF}, s{sX}, 1"); a(f"s_add_u32 s{sT}, s{sT}, s{sOFF}")
    a(f"s_lshl_b32 s{sT}, s{sT}, 2"); a(f"s_lshr_b32 s{sOFF}, s{sX}, 1"); a(f"s_add_u32 s{sT}, s{sT}, s{sOFF}")
    a(f"s_lshl_b32 s{sT}, s{sT}, 10")
    a(f"s_lshl_b32 s{sT2}, s{sT2}, 1"); a(f"s_add_u32 s{sT}, s{sT}, s{sT2}"); a(f"s_add_u32 s{sT}, s{sT}, {WS_Q}")
    a(f"s_cmp_lt_u32 s{sW}, 4"); a(f"s_cselect_b32 s{sT}, s{sT}, {OOB}")
    a("v_lshlrev_b32 v7, 3, v0")
    a("s_waitcnt lgkmcnt(0)")
    tree(t, 8)
    a(f"v_mov_b32 v{t[1]}, v{vTAG}")
    last_store["i"] = vmem(f"buffer_store_dwordx2 v[{t[0]}:{t[1]}], v7, {SRD('ws')}, s{sT} offen sc1")
    a(f"s_lshl_b32 s{sWQ}, s{sB}, 5"); a(f"s_add_u32 s{sWQ}, s{sWQ}, s{sH}"); a(f"s_lshl_b32 s{sWQ}, s{sWQ}, 3")
    a(f"s_add_u32 s{sWQ}, s{sWQ}, s{sW}"); a(f"s_lshl_b32 s{sWQ}, s{sWQ}, 10"); a(f"s_add_u32 s{sWQ}, s{sWQ}, {WS_Q}")
    stamp()
    issue_upto(qpos + dmin)
    eQ = ("q", 0); rQ = RING0 + 4 * slot[eQ]
    wait_for(vidx[eQ])
    a(f"s_mov_b32 s{sCNT}, 0")
    a.label("L_qchk")
    a(f"v_cmp_ne_u32 vcc, v{rQ+1}, v{vTAG}"); a(f"v_cmp_ne_u32 s[{sMY}:{sMY+1}], v{rQ+3}, v{vTAG}")
    a(f"s_or_b64 vcc, vcc, s[{sMY}:{sMY+1}]")
    a("s_cbranch_scc0 L_qok")
    a(qload(rQ))
    a(f"s_add_u32 s{sCNT}, s{sCNT}, 1")
    a(f"s_cmp_lt_u32 s{sCNT}, 0x20000")
    a("s_waitcnt vmcnt(0)")
    a("s_cbranch_scc1 L_qchk")
    a.label("L_qok")
    a(f"v_mov_b32 v{rQ+1}, v{rQ+2}")
    a("v_lshlrev_b32 v7, 3, v0"); a(f"s_lshl_b32 s{sT}, s{sW}, 9"); a(f"v_add_u32 v7, s{sT}, v7")
    a(f"ds_write_b64 v7, v[{rQ}:{rQ+1}] offset:{L_Q}")
    a("v_lshlrev_b32 v7, 5, v6"); a("v_lshl_add_u32 v7, v5, 3, v7")
    barrier()
    release(eQ)
    for w in range(4): a(f"ds_read_b64 v[{partB[2*w]}:{partB[2*w+1]}], v7 offset:{L_Q + (4 + w)*512}")
    for w in range(4): a(f"ds_read_b64 v[{partA[2*w]}:{partA[2*w+1]}], v7 offset:{L_Q + w*512}")
    st["tgt"] = float(st["ip"] - 1) + 1
    issue_upto(int(st["tgt"]))
    a("s_waitcnt lgkmcnt(0)")
    q_finish(partB, qB); q_finish(partA, qA)
    stamp()

    steps = []
    ready = {"kB": True, "kA": True, "vA": False, "vB": False, "woA": False, "woB": False}
    pending = []; cnt = {n: 0 for n in ready}; tot = {"kB": 64, "vB": 64}
    def push(e):
        steps.append(("c", e)); cnt[e[0]] += 1
        n, i = e
        if n in ("kB", "kA") and i % 16 == 15: steps.append(("rs", n, i // 16))
        if sub and e == ("vB", a_span): ready["woA"] = True
        if cnt[n] != tot.get(n, 16): return
        if n == "kA": steps.append(("op", "maxA")); ready["vA"] = True
        if n in ("vA", "kB") and cnt["vA"] == 16 and cnt["kB"] == 64:
            steps.append(("op", "mid")); ready["vB"] = True; ready["woA"] = not sub

        if n == "woA": steps.append(("op", "yA"))
        if n == "vB": steps.append(("op", "oB")); ready["woB"] = True
        if n == "woB": steps.append(("op", "yB"))
    def drain():
        again = True
        while again:
            again = False
            for e in list(pending):
                if ready[e[0]]:
                    pending.remove(e); push(e); again = True; break
    for e in issue:
        if e[0] == "q": continue
        if ready[e[0]] and not any(p[0] == e[0] for p in pending):
            push(e); drain()
        else: pending.append(e)
    drain(); assert not pending

    YA = qA; ML = qB; YD = partB[8:12]
    def y_exchange(lb, br, dst):
        part_write(accX, lb)
        a(f"s_lshl_b32 s{sRW}, s{sP}, 11"); a(f"s_add_u32 s{sRW}, s{sRW}, {WS_Y + br * 256 * 2048}")
        barrier()
        u = partB
        a(f"ds_read_b128 {R(u[0:4])}, v{vYR} offset:{lb}")
        a(f"ds_read_b128 {R(u[4:8])}, v{vYR} offset:{lb + 2048}")
        if br == 0:
            t = partA
            a("v_mov_b32 v10, 0")
            for k in range(4): a(f"ds_read_b128 v[{t[4*k]}:{t[4*k+3]}], v10 offset:{L_LS + 16*k}")
            bump()
        a("s_waitcnt lgkmcnt(0)")
        for k in range(4): a(f"v_add_f32 v{dst[k]}, v{u[k]}, v{u[4+k]}")
        for k in range(4): a(f"v_add_u32 v{dst[k]}, 0x800, v{dst[k]}")
        for k in range(4): a(f"v_bfi_b32 v{dst[k]}, s{sTM}, v{vTAG}, v{dst[k]}")
        if br == 0:
            tree(t[0:8], 8); tree(t[8:16], 8)
            a("v_cmp_eq_u32 vcc, 0, v0")
            a(f"v_cndmask_b32 v{ML[0]}, v{vMB}, v{vMA}, vcc"); a(f"v_cndmask_b32 v{ML[2]}, v{t[8]}, v{t[0]}, vcc")
            a(f"v_mov_b32 v{ML[1]}, v{vTAG}"); a(f"v_mov_b32 v{ML[3]}, v{vTAG}")
    def y_store(br, src):
        last_store["i"] = vmem(f"buffer_store_dwordx4 {R(src)}, v{vY}, {SRD('ws')}, s{sRW} offen sc1")
        if br == 0:
            a(f"s_lshl_b32 s{sT}, s{sP}, 7"); a(f"s_add_u32 s{sT}, s{sT}, {WS_ML}")
            a(f"s_cmp_eq_u32 s{sW}, 0"); a(f"s_cselect_b32 s{sT}, s{sT}, {OOB}")
            a("v_lshlrev_b32 v5, 15, v0"); a(f"v_mov_b32 v6, {OOB}")
            a("v_cmp_gt_u32 vcc, 2, v0"); a("v_cndmask_b32 v5, v6, v5, vcc")
            vmem(f"buffer_store_dwordx4 {R(ML)}, v5, {SRD('ws')}, s{sT} offen sc1")
    apub = {"have": False, "done": False}
    nxt = {}

    inmain["v"] = True
    for s in steps:
        if s[0] == "c":
            e = s[1]; n, i = e
            if not (sub and n in ("woA", "woB")):
                st["tgt"] = max(pos[e] + dmin, st["tgt"] + decay)
                issue_upto(int(st["tgt"]))
            assert e in slot, ("deadlock", e)
            if apub["have"] and not apub["done"] and st["ip"] >= len(issue) - apos:
                y_store(0, YA); apub["done"] = True
            if n == "kB": klike(e, qB, partB[i % 16])
            elif n == "kA": klike(e, qA, partA[i])
            elif n == "vA": vlike(e, accX, PA, i, i == 0)
            elif n == "vB": vlike(e, accB, PB[i // 16], i % 16, i == 0)
            elif sub and n in ("woA", "woB"):
                if i == 15:
                    if n == "woA":
                        st["tgt"] += subburst; issue_upto(int(st["tgt"]))
                    wait_for(vidx[e])
                    a(f"s_call_b64 s[{sRET}:{sRET+1}], L_proj")
                    a.hist = []
                    for k in range(16): release((n, k))
            elif n == "woB":
                if i == 0: nxt["s"] = sel_bcast(OX, 0)
                cur = nxt["s"]
                if i < 15: nxt["s"] = sel_bcast(OX, i + 1)
                wait_for(vidx[e]); mfma(accX, cur, RING0 + 4 * slot[e], i == 0); release(e)
            else: vlike(e, accX, OX, i, i == 0)
        elif s[0] == "rs":
            if s[1] == "kB": reduce_scatter16(partB, PB[s[2]])
            else: reduce_scatter16(partA, PA)
        else:
            op = s[1]
            if op == "maxA":
                max_write(vMA, [PA], 0)
                barrier()
                max_read(partA, 0)
                bump()
                a("s_waitcnt lgkmcnt(0)")
                max_finish(vMA, partA, [PA], 0)
            elif op == "mid":
                max_write(vMB, PB, 32)
                part_write(accX, L_OA)
                barrier()
                max_read(partA, 32)
                if not sub: o_read(L_OA, partB)
                bump()
                a("s_waitcnt lgkmcnt(0)")
                max_finish(vMB, partA, PB, 32)
                if not sub: o_finish(partB)
                stamp()
            elif op == "yA":
                if sub:
                    a(f"v_mov_b32 v{YA[0]}, v{YD[0]}"); a(f"v_mov_b32 v{YA[2]}, v{YD[2]}")
                    a(f"v_mov_b32 v{YA[1]}, v{vTAG}"); a(f"v_mov_b32 v{YA[3]}, v{vTAG}")
                    a(f"s_lshl_b32 s{sRW}, s{sP}, 12")
                    t = partA
                    a("v_mov_b32 v10, 0")
                    for k in range(4): a(f"ds_read_b128 v[{t[4*k]}:{t[4*k+3]}], v10 offset:{L_LS + 16*k}")
                    a("s_waitcnt lgkmcnt(0)")
                    tree(t[0:8], 8); tree(t[8:16], 8)
                    a("v_cmp_eq_u32 vcc, 0, v0")
                    a(f"v_cndmask_b32 v{ML[0]}, v{vMB}, v{vMA}, vcc"); a(f"v_cndmask_b32 v{ML[2]}, v{t[8]}, v{t[0]}, vcc")
                    a(f"v_mov_b32 v{ML[1]}, v{vTAG}"); a(f"v_mov_b32 v{ML[3]}, v{vTAG}")
                else: y_exchange(L_YA, 0, YA)
                apub["have"] = True
            elif op == "oB":
                stamp()
                part_write(accB, L_OA if sub else L_OB)
                if sub:
                    a(f"s_add_u32 s{sRW}, s{sRW}, {256 * 4096}")
                    stamp()
                else:
                    barrier()
                    stamp()
                    o_read(L_OB, partB)
                    a("s_waitcnt lgkmcnt(0)")
                    o_finish(partB)
            elif op == "yB":
                if sub: y_store(1, YD)
                else:
                    y_exchange(L_YB, 1, accB); y_store(1, accB)
                stamp()
    inmain["v"] = False
    assert st["ip"] == len(issue) and apub["done"]

    if "nored" in diag: a("s_branch L_fin")
    a("s_cmp_ge_u32 s2, 64")
    a("s_cbranch_scc1 L_fin")
    a("v_lshrrev_b32 v5, 2, v0")
    a(f"s_lshl_b32 s{sT}, s{sW}, 4"); a(f"v_add_u32 v5, s{sT}, v5")
    a("v_and_b32 v6, 3, v0")
    a("v_lshlrev_b32 v6, 5, v6"); a("v_lshl_add_u32 v6, v5, 11, v6")
    a("v_lshlrev_b32 v5, 7, v5")
    a(f"s_lshr_b32 s{sT}, s2, 4")
    a(f"s_lshl_b32 s{sOFF}, s{sT}, 18"); a(f"s_and_b32 s{sT2}, s2, 15"); a(f"s_lshl_b32 s{sT2}, s{sT2}, 7")
    a(f"s_add_u32 s{sOFF}, s{sOFF}, s{sT2}")
    a(f"s_lshl_b32 s{sT}, s{sT}, 14"); a(f"s_add_u32 s{sT}, s{sT}, {WS_ML}")
    M0 = 36; YF = list(range(44, 52)); BUF = [RING0 + 8 * k for k in range(nb)]
    def poll(k):
        a(f"buffer_load_dwordx4 v[{BUF[k]}:{BUF[k]+3}], v6, {SRD('ws')}, s{sOFF} offen sc1")
        a(f"buffer_load_dwordx4 v[{BUF[k]+4}:{BUF[k]+7}], v6, {SRD('ws')}, s{sOFF} offen offset:16 sc1")
    a(f"buffer_load_dwordx4 v[{M0}:{M0+3}], v5, {SRD('ws')}, s{sT} offen sc1")
    poll(0)
    a(f"s_mov_b32 s{sCNT}, 0")
    a("v_and_b32 v11, 3, v0"); a("v_lshlrev_b32 v11, 3, v11")
    a("v_bfe_u32 v7, v0, 3, 1"); a("v_lshl_add_u32 v11, v7, 2, v11")
    a("v_bfe_u32 v7, v0, 2, 1"); a("v_lshl_add_u32 v11, v7, 1, v11")
    a("v_bfe_u32 v7, v0, 4, 1"); a("v_add_u32 v11, v7, v11"); a("v_lshlrev_b32 v11, 2, v11")
    a(f"s_lshl_b32 s{sT2}, s{sW}, 7"); a(f"v_add_u32 v11, s{sT2}, v11")
    a("v_and_b32 v16, 15, v0"); a("v_lshlrev_b32 v17, 3, v16"); a("v_lshlrev_b32 v16, 2, v16")
    a(f"s_bfe_u32 s{sKB}, s2, 0x10004"); a(f"s_lshl_b32 s{sKB}, s{sKB}, 11")
    a(f"s_lshr_b32 s{sT2}, s2, 5"); a(f"s_lshl_b32 s{sT2}, s{sT2}, 10"); a(f"s_add_u32 s{sKB}, s{sKB}, s{sT2}")
    a(f"s_and_b32 s{sT2}, s2, 15"); a(f"s_lshl_b32 s{sT2}, s{sT2}, 6"); a(f"s_add_u32 s{sKB}, s{sKB}, s{sT2}")
    a(f"s_mov_b64 s[{sMY}:{sMY+1}], -1")
    a(f"s_not_b32 s{sKA}, s{sTM}")
    for k in range(1, nb):
        if gap: a(f"s_sleep {gap if k > 1 else max(gap - 2, 1)}")
        poll(k)
    a(f"s_waitcnt vmcnt({2 * nb})")
    a(f"v_cmp_ne_u32 vcc, v{M0+1}, v{vTAG}"); a(f"v_cmp_ne_u32 s[{sMM}:{sMM+1}], v{M0+3}, v{vTAG}")
    a(f"s_or_b64 vcc, vcc, s[{sMM}:{sMM+1}]")
    a("s_cbranch_scc0 L_mlok")
    a.label("L_mlchk")
    a("s_mov_b64 exec, vcc")
    a(f"buffer_load_dwordx4 v[{M0}:{M0+3}], v5, {SRD('ws')}, s{sT} offen sc1")
    a("s_mov_b64 exec, -1")
    a(f"s_add_u32 s{sCNT}, s{sCNT}, 1")
    a("s_waitcnt vmcnt(0)")
    a(f"s_cmp_ge_u32 s{sCNT}, 0x20000")
    a("s_cbranch_scc1 L_mlre")
    a(f"v_cmp_ne_u32 vcc, v{M0+1}, v{vTAG}"); a(f"v_cmp_ne_u32 s[{sMM}:{sMM+1}], v{M0+3}, v{vTAG}")
    a(f"s_or_b64 vcc, vcc, s[{sMM}:{sMM+1}]")
    a("s_cbranch_scc1 L_mlchk")
    a.label("L_mlre")
    for k in range(nb):
        if k and gap: a(f"s_sleep {gap}")
        poll(k)
    a.label("L_mlok")
    a(f"v_max_f32_dpp v7, v{M0}, v{M0} row_ror:4 {DPPF}")
    a(f"v_max_f32_dpp v7, v7, v7 row_ror:8 {DPPF}")
    a(f"v_sub_f32 v7, v{M0}, v7"); a(f"v_mul_f32 v7, s{sL2E}, v7"); a("v_exp_f32 v7, v7")
    a(f"v_mul_f32 v8, v7, v{M0+2}")
    a(f"v_add_f32_dpp v8, v8, v8 row_ror:4 {DPPF}")
    a(f"v_add_f32_dpp v8, v8, v8 row_ror:8 {DPPF}")
    a("v_rcp_f32 v8, v8"); a("v_mul_f32 v18, v7, v8")
    a(f"v_and_b32 v19, s{sTM}, v{vTAG}")
    a.label("L_poll")
    for k in range(nb):
        B = BUF[k]
        a(f"s_waitcnt vmcnt({2 * (nb - 1)})")
        a(f"v_or3_b32 v7, v{B}, v{B+1}, v{B+2}"); a(f"v_or3_b32 v7, v7, v{B+3}, v{B+4}"); a(f"v_or3_b32 v7, v7, v{B+5}, v{B+6}")
        a(f"v_bitop3_b32 v8, v{B}, v{B+1}, v{B+2} bitop3:0x80"); a(f"v_bitop3_b32 v8, v8, v{B+3}, v{B+4} bitop3:0x80"); a(f"v_bitop3_b32 v8, v8, v{B+5}, v{B+6} bitop3:0x80")
        a(f"v_or_b32 v7, v7, v{B+7}"); a(f"v_and_b32 v8, v8, v{B+7}")
        a(f"v_and_b32 v7, s{sTM}, v7"); a(f"v_and_b32 v8, s{sTM}, v8")
        a("v_cmp_eq_u32 vcc, v7, v19"); a(f"v_cmp_eq_u32 s[{sMM}:{sMM+1}], v8, v19")
        a(f"s_and_b64 vcc, vcc, s[{sMM}:{sMM+1}]")
        a(f"s_and_b64 exec, vcc, s[{sMY}:{sMY+1}]")
        for j in range(8): a(f"v_and_b32 v{YF[j]}, s{sKA}, v{B+j}")
        a(f"s_andn2_b64 s[{sMY}:{sMY+1}], s[{sMY}:{sMY+1}], vcc")
        a("s_cbranch_scc0 L_poll_ok")
        a(f"s_mov_b64 exec, s[{sMY}:{sMY+1}]")
        poll(k)
        a("s_mov_b64 exec, -1")
    a(f"s_add_u32 s{sCNT}, s{sCNT}, 1")
    a(f"s_cmp_lt_u32 s{sCNT}, 0x20000")
    a("s_cbranch_scc1 L_poll")
    a.label("L_poll_ok")
    a("s_mov_b64 exec, -1")
    if "redprof" in diag:
        a(f"s_memrealtime s[{sST}:{sST+1}]"); a("s_waitcnt lgkmcnt(0)")
        a(f"v_writelane_b32 v{vSTAMP}, s{sST}, 1")
        a(f"v_readlane_b32 s{sT2}, v{vSTAMP}, 0"); a(f"s_add_u32 s{sT2}, s{sT2}, s{sCNT}"); a(f"v_writelane_b32 v{vSTAMP}, s{sT2}, 2")
    y = YF
    for k in range(8): a(f"v_mul_f32 v{y[k]}, v18, v{y[k]}")
    for k in range(4): a(f"v_add_f32_dpp v{y[k]}, v{y[k]}, v{y[k]} row_ror:8 row_mask:0xf bank_mask:0x3")
    for k in range(4): a(f"v_add_f32_dpp v{y[k]}, v{y[k+4]}, v{y[k+4]} row_ror:8 row_mask:0xf bank_mask:0xc")
    for k in range(2): a(f"v_add_f32_dpp v{y[k]}, v{y[k]}, v{y[k]} row_shl:4 row_mask:0xf bank_mask:0x5")
    for k in range(2): a(f"v_add_f32_dpp v{y[k]}, v{y[k+2]}, v{y[k+2]} row_shr:4 row_mask:0xf bank_mask:0xa")
    a(f"v_permlane16_swap_b32 v{y[0]}, v{y[1]}")
    a(f"v_add_f32 v{y[0]}, v{y[0]}, v{y[1]}")
    a(f"v_mov_b32 v{y[1]}, v{y[0]}")
    a(f"v_permlane32_swap_b32 v{y[0]}, v{y[1]}")
    a(f"v_add_f32 v{y[0]}, v{y[0]}, v{y[1]}")
    a(f"ds_write_b32 v11, v{y[0]} offset:{L_RED}")
    barrier()
    a(f"s_cmp_lg_u32 s{sW}, 0")
    a("s_cbranch_scc1 L_fin")
    t = partA
    for w in range(8): a(f"ds_read_b64 v[{t[2*w]}:{t[2*w+1]}], v17 offset:{L_RED + w*128}")
    a("s_waitcnt lgkmcnt(0)")
    tree(t, 16, 2)
    a(f"v_cvt_pk_bf16_f32 v7, v{t[0]}, v{t[1]}")
    a("s_mov_b64 exec, 0xffff")
    a(f"buffer_store_dword v7, v16, {SRD('out')}, s{sKB} offen")
    a("s_cmp_lg_u32 s2, 32")
    a("s_cbranch_scc1 L_fin")
    a("s_mov_b64 exec, 1")
    a(f"s_mov_b32 s{sT}, {hex(WS_EP)}")
    a(f"buffer_store_dword v{vTAG}, v16, {SRD('ws')}, s{sT} offen sc1")
    a.label("L_fin")
    if "pad" in diag:
        if "padx" in diag:
            a("s_getreg_b32 s80, hwreg(HW_REG_XCC_ID)"); a("s_and_b32 s80, s80, 15"); a("s_and_b32 s81, s2, 7")
            a("s_cmp_eq_u32 s80, s81"); a("s_cbranch_scc1 L_padend")
        a.label("L_pad")
        a("s_memrealtime s[80:81]"); a("s_waitcnt lgkmcnt(0)")
        a("s_sub_u32 s80, s80, s92"); a("s_cmp_lt_u32 s80, 10000"); a("s_cbranch_scc1 L_pad")
        a.label("L_padend")
    if stamps:
        a("s_mov_b64 exec, -1")
        stamp()
        if "tailprof" in diag:
            a("s_memtime s[88:89]"); a("s_waitcnt lgkmcnt(0)")
            for k in range(7): a(f"v_writelane_b32 v{vSTAMP}, s{76 + 2*k}, {k}")
            a(f"v_writelane_b32 v{vSTAMP}, s90, 7")
        assert stampn["n"] == 8, stampn
        a(f"s_lshl_b32 s{sT}, s2, 3"); a(f"s_add_u32 s{sT}, s{sT}, s{sW}"); a(f"s_lshl_b32 s{sT}, s{sT}, 5")
        a(f"s_add_u32 s{sT}, s{sT}, {WS_ST}")
        a("v_lshlrev_b32 v5, 2, v0")
        a("s_mov_b64 exec, 0xff")
        a(f"buffer_store_dword v{vSTAMP}, v5, {SRD('ws')}, s{sT} offen")
        if "dbgst" in diag:
            a("s_load_dwordx2 s[76:77], s[0:1], 88"); a("s_mov_b32 s78, 256"); a("s_mov_b32 s79, 0x20000")
            a(f"s_cmp_eq_u32 s2, 64"); a(f"s_cselect_b32 s{sT}, 0, {OOB}")
            a(f"s_cmp_eq_u32 s2, 205"); a(f"s_cselect_b32 s{sT}, 32, s{sT}")
            a(f"s_cmp_eq_u32 s{sW}, 0"); a(f"s_cselect_b32 s{sT}, s{sT}, {OOB}")
            a(f"v_readlane_b32 s{sT2}, v{vSTAMP}, 0")
            a(f"v_subrev_u32 v{vSTAMP}, s{sT2}, v{vSTAMP}")
            a("s_waitcnt lgkmcnt(0)")
            a(f"buffer_store_dword v{vSTAMP}, v5, s[76:79], s{sT} offen")
    a.label("L_end")
    a("s_endpgm")
    if sub:
        a.label("L_proj")
        a.hist = []
        tp = "tailprof" in diag
        if tp: a("s_memtime s[76:77]")
        barrier()
        if tp: a("s_memtime s[78:79]")
        o_read(L_OA, partB)
        a(f"v_mov_b32 v{YD[1]}, v{vTAG}"); a(f"v_mov_b32 v{YD[3]}, v{vTAG}")
        a("s_waitcnt lgkmcnt(0)")
        if tp: a("s_memtime s[80:81]")
        o_finish(partB)
        selk["k"] = 0
        cur = sel_bcast(OX, 0)
        for i in range(16):
            nx = sel_bcast(OX, i + 1) if i < 15 else None
            mfma(accX, cur, RING0 + 4 * (WB0 + i), i == 0); cur = nx
        if tp: a("s_memtime s[82:83]")
        part_write(accX, L_YA)
        barrier()
        if tp: a("s_memtime s[84:85]")
        a(f"ds_read_b64 v[6:7], v{vYR} offset:{L_YA}")
        a(f"ds_read_b64 v[8:9], v{vYR} offset:{L_YA + 2048}")
        a("s_waitcnt lgkmcnt(0)")
        a(f"v_add_f32 v{YD[0]}, v6, v8"); a(f"v_add_f32 v{YD[2]}, v7, v9")
        if tp: a("s_memtime s[86:87]")
        a(f"s_setpc_b64 s[{sRET}:{sRET+1}]")
    a.raw('.section .rodata,"a"'); a.raw(".p2align 6"); a.raw(f".amdhsa_kernel {NAME}")
    a.raw("  .amdhsa_next_free_vgpr 256"); a.raw(f"  .amdhsa_next_free_sgpr {NSGPR}"); a.raw("  .amdhsa_accum_offset 256")
    a.raw("  .amdhsa_group_segment_fixed_size 0"); a.raw("  .amdhsa_kernarg_size 104"); a.raw("  .amdhsa_user_sgpr_count 2")
    a.raw("  .amdhsa_user_sgpr_kernarg_segment_ptr 1"); a.raw("  .amdhsa_system_sgpr_workgroup_id_x 1"); a.raw(".end_amdhsa_kernel")
    return a.text()

if __name__ == "__main__":
    out = sys.argv[1]
    kw = json.loads(sys.argv[2]) if len(sys.argv) > 2 else {}
    open(out, "w").write(gen(**kw))
```

```python
import sys, json
from asmlib import Asm

NAME = "concat_heads__sliding_block_cached__mha_block_cached__decode_kernel"
HEADER = open("concat_heads__sliding_block_cached__mha_block_cached__decode.s.ref").read().split("; Override launch")[0]
DPPF = "row_mask:0xf bank_mask:0xf"

WS_Y = 0
WS_ML = 0x100000
WS_Q = 0x120000
WS_EP = 0x1b0000
WS_ST = 0x340000
WS_SIZE = 0x400000
OOB = 0x40000000

def gen(F=5, dmin=None, burst=2, stamps=False, pol="nt", shpol="", qpos=22, decay=0.5, rsh=2, diag="",
        relax=4, slp=8, slpthr=16, early=1, apos=6, sub=False, subburst=3, warmred=True, a_span=27, b_start=36, pre=6, post=2, wb=(12,13,16), ib=(11,15,14,10,17,18), preb=1, rota=(2,3,4,5), rotw=(2,0,1,3), wba=(12,13,16), iba=(11,15,14,10), nb=2, gap=6, mlpos=12, warm=True, rsb=0, redsel=0):
    if dmin is None: dmin = F - 1
    a = Asm()
    names = ["xA", "kA", "vA", "wqA", "woA", "xB", "kB", "vB", "wqB", "woB", "out", "dbg", "ws"]
    sizes = {"x": 2048, "wq": 4 << 20, "kA": 32 << 20, "vA": 32 << 20, "woA": 4 << 20,
             "kB": 128 << 20, "vB": 128 << 20, "woB": 4 << 20, "out": 4096, "ws": WS_SIZE}
    srd = {n: 8 + 4 * i for i, n in enumerate(sizes)}
    def SRD(n): return f"s[{srd[n]}:{srd[n]+3}]"
    sW, sH, sB, sS, sT = 3, 4, 5, 6, 7
    sX, sJ, sT2, sKB, sKA, sWQ, sWO, sOFF, sP, sTAG, sSC, sL2E, sCNT, sRW = range(48, 62)
    sM1, sM0, sST, sMY, sMM = 62, 64, 66, 68, 70
    sRET = 72; sTM = 74; sRO = 75
    NSGPR = 96
    vL16, vWo, vPW, vOR = 1, 2, 3, 4
    vSTAMP, vMA, vMB, vTAG = 12, 13, 14, 15
    qB = list(range(16, 20)); qA = list(range(20, 24))
    accB = list(range(24, 28)); accX = list(range(28, 32))
    MK = list(range(32, 36))
    SEL = [list(range(36, 40)), list(range(40, 44))]
    partB = list(range(44, 60)); partA = list(range(60, 76))
    PB = list(range(76, 80)); PA = 80; OX = 81; vY = 82; vYR = 83; vDUM = 84
    RING0 = 88
    NS = (256 - RING0) // 4
    L_QP = 0
    L_Q, L_OA, L_OB, L_YA, L_YB = [8192 + 4096 * i for i in range(5)]
    L_MX = 8192 + 5 * 4096; L_LS = L_MX + 64; L_RED = L_MX + 256
    LDS = L_RED + 1024

    a.raw(HEADER.rstrip("\n"))
    a.raw(f"; @launch grid=(256,1,1) block=(512,1,1) lds={LDS}")
    a.raw('.amdgcn_target "amdgcn-amd-amdhsa--gfx950"')
    a.raw(".text"); a.raw(f".globl {NAME}"); a.raw(".p2align 8"); a.raw(f".type {NAME},@function")
    a.label(NAME)
    a("s_cmp_ge_u32 s2, 256")
    a("s_cbranch_scc1 L_end")
    a(f"s_and_b32 s{sT}, s2, 1"); a(f"s_mul_i32 s{sT}, s{sT}, 40"); a(f"s_add_u32 s{sT2}, s{sT}, 24")
    a(f"s_load_dwordx2 s[{srd['wq']}:{srd['wq']+1}], s[0:1], s{sT2}")
    a(f"s_load_dwordx2 s[{srd['x']}:{srd['x']+1}], s[0:1], s{sT}")
    for n in ["kB", "ws", "kA"]:
        a(f"s_load_dwordx2 s[{srd[n]}:{srd[n]+1}], s[0:1], {8 * names.index(n)}")
    if stamps: a(f"s_memrealtime s[{sST}:{sST+1}]")
    if "tailprof" in diag: a("s_memtime s[90:91]")
    if "pad" in diag: a("s_memrealtime s[92:93]")
    stampn = {"n": 1}
    def stamp():
        if not stamps: return
        a(f"s_memrealtime s[{sST}:{sST+1}]"); a("s_waitcnt lgkmcnt(0)")
        a(f"v_writelane_b32 v{vSTAMP}, s{sST}, {stampn['n']}"); stampn["n"] += 1
    def srdw(n):
        a(f"s_mov_b32 s{srd[n]+2}, {hex(sizes[n])}"); a(f"s_mov_b32 s{srd[n]+3}, 0x20000")
    a("v_lshrrev_b32 v1, 6, v0")
    a("v_and_b32 v0, 63, v0")
    a(f"v_readfirstlane_b32 s{sW}, v1")
    srdw("wq"); srdw("x")
    a("v_lshrrev_b32 v5, 4, v0"); a("v_and_b32 v6, 15, v0")
    a("v_lshlrev_b32 v7, 4, v6")
    a("v_lshl_add_u32 v9, v5, 15, v7")
    a("v_bfe_u32 v8, v0, 3, 1"); a("v_lshlrev_b32 v8, 10, v8"); a("v_lshl_add_u32 v8, v5, 3, v8")
    a(f"s_lshr_b32 s{sJ}, s2, 3")
    a(f"s_and_b32 s{sT}, s2, 6"); a(f"s_lshl_b32 s{sT}, s{sT}, 2"); a(f"s_add_u32 s{sT}, s{sT}, s{sW}")
    a(f"s_lshl_b32 s{sRW}, s{sT}, 5")
    a(f"s_lshl_b32 s{sWQ}, s{sT}, 17"); a(f"s_lshl_b32 s{sT2}, s{sJ}, 8"); a(f"s_add_u32 s{sWQ}, s{sWQ}, s{sT2}")
    a("s_waitcnt lgkmcnt(0)")
    if stamps: a(f"v_writelane_b32 v{vSTAMP}, s{sST}, 0")
    if "startprof" in diag: stamp()

    vm = {"n": 0}; done = {"upto": 0}; last_store = {"i": -100}
    def vmem(text):
        a(text); vm["n"] += 1; return vm["n"] - 1
    def wait_for(idx):
        if idx < done["upto"]: return
        n = vm["n"] - 1 - idx
        assert n <= 63
        a(f"s_waitcnt vmcnt({n})"); done["upto"] = idx + 1
    def limit(f):
        tgt = vm["n"] - f
        if tgt >= last_store["i"] and vm["n"] - last_store["i"] <= f + relax - 1: tgt = last_store["i"] - 1
        if tgt >= 0: wait_for(tgt)

    free = list(range(NS))
    wsl = [free.pop(0) for _ in range(4)]
    wr = [RING0 + 4 * s for s in wsl]
    ix = vmem(f"buffer_load_dwordx2 v[10:11], v8, {SRD('x')}, s{sRW} offen")
    iw = []
    for i in range(4):
        if i: a(f"s_add_u32 s{sOFF}, s{sWQ}, {i * 8192}")
        iw.append(vmem(f"buffer_load_dwordx4 v[{wr[i]}:{wr[i]+3}], v9, {SRD('wq')}, s{sOFF if i else sWQ} offen {pol}"))

    srdw("kB")
    a(f"v_lshlrev_b32 v{vL16}, 4, v0")
    a(f"s_and_b32 s{sX}, s2, 7")
    a(f"s_lshr_b32 s{sH}, s{sJ}, 3"); a(f"s_lshl_b32 s{sT}, s{sX}, 2"); a(f"s_add_u32 s{sH}, s{sH}, s{sT}")
    a(f"s_bfe_u32 s{sB}, s{sJ}, 0x10002"); a(f"s_and_b32 s{sS}, s{sJ}, 3")
    a(f"s_lshl_b32 s{sP}, s{sB}, 5"); a(f"s_add_u32 s{sP}, s{sP}, s{sH}")
    a(f"s_lshl_b32 s{sP}, s{sP}, 2"); a(f"s_add_u32 s{sP}, s{sP}, s{sS}")
    def scatter(dst, pairs, first=False):
        for reg, src, bit in pairs:
            a(f"s_bfe_u32 s{sT}, s{reg}, {hex(0x10000 | src)}")
            if first: a(f"s_lshl_b32 s{dst}, s{sT}, {bit}"); first = False
            else: a(f"s_lshl_b32 s{sT}, s{sT}, {bit}"); a(f"s_or_b32 s{dst}, s{dst}, s{sT}")
    pb = [(sW, 2, wb[0]), (sW, 0, wb[1]), (sW, 1, wb[2])] + [(2, k + rsh, d) for k, d in enumerate(ib)]
    pa = [(sW, 2, wba[0]), (sW, 0, wba[1]), (sW, 1, wba[2])] + [(2, sr, d) for sr, d in zip(rota, iba) if sr is not None and sr >= 0]
    assert all(sr <= 5 for r_, sr, d in pa[3:])
    common = [p for p in pb if p in pa]
    scatter(sKA, common, True)
    a(f"s_lshl_b32 s{sKB}, s{sP}, 19"); a(f"s_or_b32 s{sKB}, s{sKB}, s{sKA}")
    scatter(sKB, [p for p in pb if p not in common])
    def late_setup():
        scatter(sKA, [p for p in pa if p not in common])
        a(f"s_lshl_b32 s{sT}, s{sB}, 3"); a(f"s_add_u32 s{sT}, s{sT}, s{sX}")
        a(f"s_lshl_b32 s{sT}, s{sT}, 4"); a(f"s_add_u32 s{sT}, s{sT}, s{sS}"); a(f"s_add_u32 s{sT}, s{sT}, 12")
        a(f"s_lshl_b32 s{sT}, s{sT}, 17"); a(f"s_or_b32 s{sKA}, s{sKA}, s{sT}")
        for n in srd:
            if n not in ("wq", "x", "kB"): srdw(n)
        a(f"s_mov_b32 s{sCNT}, {hex(WS_EP)}")
        a(f"v_lshl_add_u32 v{vWo}, v5, 10, v7")

    P = [("kB", i) for i in range(64)] + [("vB", i) for i in range(64)]
    issue = []
    after = {}
    for i in range(16):
        after.setdefault(2 * i, []).append(("kA", i))
        after.setdefault(32 + 2 * i, []).append(("vA", i))
        if sub:
            after.setdefault(64 + (i * a_span) // 16, []).append(("woA", i))
            after.setdefault(64 + b_start + (i * (63 - b_start)) // 16, []).append(("woB", i))
        else:
            after.setdefault(64 + 2 * i, []).append(("woA", i))
            after.setdefault(96 + 2 * i, []).append(("woB", i))
    for i, e in enumerate(P):
        issue.append(e); issue += after.get(i, [])
    assert issue[-1][0] == "vB"
    issue.insert(qpos, ("q", 0))
    pos = {e: i for i, e in enumerate(issue)}
    slot = {}; vidx = {}
    st = {"ip": 0, "tgt": 0.0}
    def qload(r):
        return f"buffer_load_dwordx4 v[{r}:{r+3}], v{vL16}, {SRD('ws')}, s{sWQ} offen sc1"
    WB0 = NS - 16
    def pick(n, i):
        if sub:
            if n in ("woA", "woB"):
                return WB0 + i if (WB0 + i) in free else None
            cand = [s for s in free if s < WB0 or st["ip"] < 56]
            return cand[0] if cand else None
        return free[0] if free else None
    def issue_one(lim=True):
        e = issue[st["ip"]]; n, i = e
        s = pick(n, i); free.remove(s); slot[e] = s
        r = RING0 + 4 * s
        if n == "q":
            if lim: limit(F)
            vidx[e] = vmem(qload(r))
        else:
            if n in ("kB", "vB"): base, off, va, pl = sKB, sum(((i >> k) & 1) << b for k, b in enumerate(ib)), vL16, pol
            elif n in ("kA", "vA"): base, off, va, pl = sKA, sum(((i >> k) & 1) << b for k, b in enumerate(iba)), vL16, shpol
            else: base, off, va, pl = sWO, i * 4096, vWo, shpol
            if off:
                a(f"s_xor_b32 s{sOFF}, s{base}, {off}"); so = sOFF
            else: so = base
            if lim: limit(F)
            vidx[e] = vmem(f"buffer_load_dwordx4 v[{r}:{r+3}], v{va}, {SRD(n)}, s{so} offen {pl}")
        st["ip"] += 1
    def issue_upto(t):
        while st["ip"] <= t and st["ip"] < len(issue) and pick(*issue[st["ip"]]) is not None:
            issue_one()
    def release(e): free.append(slot.pop(e))
    issue_one(False)
    late_setup()
    for _ in range(early - 1): issue_one(False)
    itag = vmem(f"buffer_load_dword v{vTAG}, off, {SRD('ws')}, s{sCNT} sc1")
    for n in ["vA", "vB", "woA", "woB", "out"]:
        a(f"s_load_dwordx2 s[{srd[n]}:{srd[n]+1}], s[0:1], {8 * names.index(n)}")

    selk = {"k": 0}
    def R(regs): return f"v[{regs[0]}:{regs[-1]}]"
    def sel_bcast(p, lane):
        s = SEL[selk["k"]]; selk["k"] ^= 1
        for k in range(4): a(f"v_and_b32_dpp v{s[k]}, v{p}, v{MK[k]} row_newbcast:{lane} {DPPF}")
        return s
    def mfma(acc, s, r, first):
        a(f"v_mfma_f32_16x16x32_bf16 {R(acc)}, {R(s)}, v[{r}:{r+3}], {'0' if first else R(acc)}")
    def vlike(e, acc, p, lane, first):
        s = sel_bcast(p, lane)
        wait_for(vidx[e]); mfma(acc, s, RING0 + 4 * slot[e], first); release(e)
    def klike(e, q, dst):
        r = RING0 + 4 * slot[e]
        wait_for(vidx[e])
        a(f"v_dot2_f32_bf16 v{dst}, v{r}, v{q[0]}, 0")
        for k in range(1, 4): a(f"v_dot2_f32_bf16 v{dst}, v{r+k}, v{q[k]}, v{dst}")
        release(e)
    def reduce_scatter16(r, dst):
        for i in range(8): a(f"v_add_f32_dpp v{r[i]}, v{r[i]}, v{r[i]} row_ror:8 row_mask:0xf bank_mask:0x3")
        for i in range(8): a(f"v_add_f32_dpp v{r[i]}, v{r[i+8]}, v{r[i+8]} row_ror:8 row_mask:0xf bank_mask:0xc")
        for i in range(4): a(f"v_add_f32_dpp v{r[i]}, v{r[i]}, v{r[i]} row_half_mirror row_mask:0xf bank_mask:0x5")
        for i in range(4): a(f"v_add_f32_dpp v{r[i]}, v{r[i+4]}, v{r[i+4]} row_half_mirror row_mask:0xf bank_mask:0xa")
        for i in range(4): a(f"v_add_f32_dpp v{r[i]}, v{r[i]}, v{r[i]} quad_perm:[2,3,0,1] {DPPF}")
        a(f"v_cndmask_b32 v{r[0]}, v{r[0]}, v{r[2]}, s[{sM1}:{sM1+1}]")
        a(f"v_cndmask_b32 v{r[1]}, v{r[1]}, v{r[3]}, s[{sM1}:{sM1+1}]")
        for i in range(2): a(f"v_add_f32_dpp v{r[i]}, v{r[i]}, v{r[i]} quad_perm:[1,0,3,2] {DPPF}")
        a(f"v_cndmask_b32 v{dst}, v{r[0]}, v{r[1]}, s[{sM0}:{sM0+1}]")
        a(f"v_cvt_pk_bf16_f32 v{dst}, 0, v{dst}")
        a(f"v_mul_f32 v{dst}, s{sSC}, v{dst}")
        a(f"v_cvt_pk_bf16_f32 v{dst}, 0, v{dst}")
    def allreduce(op, regs, tmps):
        for sh in (8, 4, 2, 1):
            for r in regs: a(f"{op}_dpp v{r}, v{r}, v{r} row_ror:{sh} {DPPF}")
        for pl in ("v_permlane16_swap_b32", "v_permlane32_swap_b32"):
            for r, t in zip(regs, tmps): a(f"v_mov_b32 v{t}, v{r}")
            for r, t in zip(regs, tmps): a(f"{pl} v{r}, v{t}")
            for r, t in zip(regs, tmps): a(f"{op} v{r}, v{r}, v{t}")
    inmain = {"v": False}
    def barrier():
        if inmain["v"] and preb:
            st["tgt"] += preb; issue_upto(int(st["tgt"]))
        a("s_waitcnt lgkmcnt(0)"); a("s_barrier")
    def tree(t, n, stop=1):
        st_ = n // 2
        while st_ >= stop:
            for k in range(st_): a(f"v_add_f32 v{t[k]}, v{t[k]}, v{t[k+st_]}")
            st_ //= 2
    def part_write(acc, lb):
        a("s_mov_b64 exec, 0xffffffff")
        a(f"ds_write_b128 v{vPW}, {R(acc)} offset:{lb}")
        a("s_mov_b64 exec, -1")
    def q_finish(tmp, q):
        tree(tmp, 8, 2)
        a(f"v_cvt_pk_bf16_f32 v{q[0]}, v{tmp[0]}, v{tmp[1]}")
        a(f"v_mov_b32 v{q[1]}, v{q[0]}")
        a(f"v_permlane16_swap_b32 v{q[0]}, v{q[1]}")
        a(f"v_mov_b32 v{q[2]}, v{q[0]}"); a(f"v_mov_b32 v{q[3]}, v{q[1]}")
        a(f"v_permlane32_swap_b32 v{q[0]}, v{q[2]}")
        a(f"v_permlane32_swap_b32 v{q[1]}, v{q[3]}")
    def o_read(lb, tmp):
        for w in range(4): a(f"ds_read2st64_b32 v[{tmp[2*w]}:{tmp[2*w+1]}], v{vOR} offset0:{lb//256 + 4*w} offset1:{lb//256 + 4*w+2}")
    def o_finish(tmp):
        tree(tmp, 8)
        a(f"v_cvt_pk_bf16_f32 v{OX}, v{tmp[0]}, v{tmp[0]}")
    def bump():
        st["tgt"] += burst; issue_upto(int(st["tgt"]))
    def max_write(m, srcs, off):
        if len(srcs) == 1: a(f"v_mov_b32 v{m}, v{srcs[0]}")
        else:
            a(f"v_max3_f32 v{m}, v{srcs[0]}, v{srcs[1]}, v{srcs[2]}"); a(f"v_max_f32 v{m}, v{m}, v{srcs[3]}")
        allreduce("v_max_f32", [m], [5])
        a(f"s_lshl_b32 s{sT}, s{sW}, 2"); a(f"v_mov_b32 v5, s{sT}")
        a(f"ds_write_b32 v5, v{m} offset:{L_MX + off}")
    def max_read(t, off):
        a("v_mov_b32 v6, 0")
        for k in range(2): a(f"ds_read_b128 v[{t[4*k]}:{t[4*k+3]}], v6 offset:{L_MX + off + 16*k}")
    def max_finish(m, t, ps, off):
        a(f"v_max3_f32 v{m}, v{t[0]}, v{t[1]}, v{t[2]}"); a(f"v_max3_f32 v{m}, v{m}, v{t[3]}, v{t[4]}")
        a(f"v_max3_f32 v{m}, v{m}, v{t[5]}, v{t[6]}"); a(f"v_max_f32 v{m}, v{m}, v{t[7]}")
        for p in ps: a(f"v_sub_f32 v{p}, v{p}, v{m}")
        for p in ps: a(f"v_mul_f32 v{p}, s{sL2E}, v{p}")
        for p in ps: a(f"v_exp_f32 v{p}, v{p}")
        if len(ps) == 1: a(f"v_mov_b32 v7, v{ps[0]}")
        else:
            a(f"v_add_f32 v7, v{ps[0]}, v{ps[1]}"); a(f"v_add_f32 v8, v{ps[2]}, v{ps[3]}"); a("v_add_f32 v7, v7, v8")
        for p in ps: a(f"v_cvt_pk_bf16_f32 v{p}, v{p}, v{p}")
        allreduce("v_add_f32", [7], [8])
        a(f"s_lshl_b32 s{sT}, s{sW}, 2"); a(f"v_mov_b32 v5, s{sT}")
        a(f"ds_write_b32 v5, v7 offset:{L_LS + off}")

    a("v_and_b32 v7, 1, v0"); a("v_lshlrev_b32 v7, 4, v7"); a("v_mov_b32 v8, 0xffff"); a("v_lshlrev_b32 v7, v7, v8")
    a("v_bfe_u32 v8, v0, 1, 2")
    for k in range(4):
        a(f"v_cmp_eq_u32 vcc, {k}, v8"); a(f"v_cndmask_b32 v{MK[k]}, 0, v7, vcc")
    a("v_and_b32 v7, 1, v5"); a("v_lshlrev_b32 v7, 4, v7"); a("v_lshl_add_u32 v7, v6, 5, v7")
    a("v_lshrrev_b32 v8, 1, v5"); a("v_lshl_add_u32 v7, v8, 12, v7")
    a(f"s_lshl_b32 s{sT}, s{sW}, 9"); a(f"v_add_u32 v{vPW}, s{sT}, v7")
    if rotw:
        a(f"s_mov_b32 s{sT2}, 0")
        for k, src in enumerate(rotw):
            if src is None or src < 0: continue
            a(f"s_bfe_u32 s{sT}, s{sH}, {hex(0x10000 | src)}"); a(f"s_lshl_b32 s{sT}, s{sT}, {k}"); a(f"s_or_b32 s{sT2}, s{sT2}, s{sT}")
        a(f"v_xor_b32 v7, s{sT2}, v6"); a("v_lshl_add_u32 v7, v7, 2, v5"); a("v_lshlrev_b32 v7, 2, v7")
    else:
        a("v_lshl_add_u32 v7, v6, 2, v5"); a("v_lshlrev_b32 v7, 2, v7")
    a(f"s_lshr_b32 s{sT}, s{sW}, 2"); a(f"s_lshl_b32 s{sT}, s{sT}, 8"); a(f"v_add_u32 v{vOR}, s{sT}, v7")
    a(f"s_and_b32 s{sT}, s{sW}, 1"); a(f"s_lshl_b32 s{sT}, s{sT}, 10")
    a(f"v_add_u32 v{vYR}, s{sT}, v{vL16}")
    a(f"s_cmp_lt_u32 s{sW}, 2"); a(f"s_cselect_b32 s{sT}, s{sT}, {OOB}")
    a(f"v_add_u32 v{vY}, s{sT}, v{vL16}")
    a(f"s_movk_i32 s{sTM}, 0xfff")
    a(f"s_lshl_b32 s{sWO}, s{sH}, 17"); a(f"s_lshr_b32 s{sT}, s{sW}, 2"); a(f"s_lshl_b32 s{sT}, s{sT}, 16")
    a(f"s_add_u32 s{sWO}, s{sWO}, s{sT}"); a(f"s_and_b32 s{sT}, s{sW}, 3"); a(f"s_lshl_b32 s{sT}, s{sT}, 8")
    a(f"s_add_u32 s{sWO}, s{sWO}, s{sT}")
    if rotw:
        a(f"s_lshl_b32 s{sT2}, s{sT2}, 12"); a(f"s_or_b32 s{sWO}, s{sWO}, s{sT2}")
    a(f"s_mov_b32 s{sM1}, 0xcccccccc"); a(f"s_mov_b32 s{sM1+1}, 0xcccccccc")
    a(f"s_mov_b32 s{sM0}, 0xaaaaaaaa"); a(f"s_mov_b32 s{sM0+1}, 0xaaaaaaaa")
    a(f"s_mov_b32 s{sSC}, 0x3db504f3"); a(f"s_mov_b32 s{sL2E}, 0x3fb8aa3b")
    a(f"s_mov_b32 s{sT}, 0x01000100"); a(f"s_mov_b32 s{sT2}, 0x03020302")
    wait_for(ix)
    if "startprof" in diag: stamp()
    xs = partA[0:4]
    for i in range(4): a(f"v_perm_b32 v{xs[i]}, v{10 + i // 2}, v{10 + i // 2}, s{sT2 if i & 1 else sT}")
    for i in range(4):
        s = SEL[i & 1]
        for k in range(4): a(f"v_and_b32 v{s[k]}, v{xs[i]}, v{MK[k]}")
        wait_for(iw[i])
        mfma(accX, s, wr[i], i == 0)
    free.extend(wsl)
    issue_upto(early)
    a("v_cmp_gt_u32 vcc, 8, v6")
    for k in range(4): a(f"v_cndmask_b32 v{MK[k]}, 0, v{MK[k]}, vcc")
    a(f"ds_write_b128 v{vPW}, {R(accX)} offset:{L_QP}")
    a(f"s_bfe_u32 s{sT}, s{sW}, 0x10001"); a(f"s_lshl_b32 s{sT}, s{sT}, 12"); a(f"s_and_b32 s{sT2}, s{sW}, 1"); a(f"s_lshl_b32 s{sT2}, s{sT2}, 8")
    a(f"s_add_u32 s{sT}, s{sT}, s{sT2}")
    a("v_lshlrev_b32 v7, 2, v0"); a(f"v_add_u32 v7, s{sT}, v7")
    issue_upto(early + pre)
    barrier()
    t = partB
    for w in range(4): a(f"ds_read2st64_b32 v[{t[2*w]}:{t[2*w+1]}], v7 offset0:{L_QP//256 + 4*w} offset1:{L_QP//256 + 4*w+2}")
    issue_upto(early + pre + post)
    wait_for(itag)
    a(f"s_mov_b32 s{sTAG}, 0x9e3779b1")
    a(f"v_mul_lo_u32 v{vTAG}, v{vTAG}, s{sTAG}"); a(f"v_add_u32 v{vTAG}, 0x7f4a7c15, v{vTAG}")
    a(f"s_bfe_u32 s{sT}, s{sW}, 0x10001"); a(f"s_lshl_b32 s{sT}, s{sT}, 5"); a(f"s_add_u32 s{sT}, s{sT}, s{sJ}")
    a(f"s_lshl_b32 s{sT}, s{sT}, 1"); a(f"s_and_b32 s{sOFF}, s{sX}, 1"); a(f"s_add_u32 s{sT}, s{sT}, s{sOFF}")
    a(f"s_lshl_b32 s{sT}, s{sT}, 2"); a(f"s_lshr_b32 s{sOFF}, s{sX}, 1"); a(f"s_add_u32 s{sT}, s{sT}, s{sOFF}")
    a(f"s_lshl_b32 s{sT}, s{sT}, 10")
    a(f"s_lshl_b32 s{sT2}, s{sT2}, 1"); a(f"s_add_u32 s{sT}, s{sT}, s{sT2}"); a(f"s_add_u32 s{sT}, s{sT}, {WS_Q}")
    a(f"s_cmp_lt_u32 s{sW}, 4"); a(f"s_cselect_b32 s{sT}, s{sT}, {OOB}")
    a("v_lshlrev_b32 v7, 3, v0")
    a("s_waitcnt lgkmcnt(0)")
    tree(t, 8)
    a(f"v_mov_b32 v{t[1]}, v{vTAG}")
    last_store["i"] = vmem(f"buffer_store_dwordx2 v[{t[0]}:{t[1]}], v7, {SRD('ws')}, s{sT} offen sc1")
    a(f"s_lshl_b32 s{sWQ}, s{sB}, 5"); a(f"s_add_u32 s{sWQ}, s{sWQ}, s{sH}"); a(f"s_lshl_b32 s{sWQ}, s{sWQ}, 3")
    a(f"s_add_u32 s{sWQ}, s{sWQ}, s{sW}"); a(f"s_lshl_b32 s{sWQ}, s{sWQ}, 10"); a(f"s_add_u32 s{sWQ}, s{sWQ}, {WS_Q}")
    if "startprof" not in diag: stamp()
    if warm:
        for n, sb in (("vA", sKA), ("vB", sKB), ("woA", sWO), ("woB", sWO)):
            issue_upto(st["ip"])
            vmem(f"buffer_load_dword v{vDUM}, off, {SRD(n)}, s{sb}")
    issue_upto(qpos + dmin)
    eQ = ("q", 0); rQ = RING0 + 4 * slot[eQ]
    wait_for(vidx[eQ])
    a(f"s_mov_b32 s{sCNT}, 0")
    a.label("L_qchk")
    a(f"v_cmp_ne_u32 vcc, v{rQ+1}, v{vTAG}"); a(f"v_cmp_ne_u32 s[{sMY}:{sMY+1}], v{rQ+3}, v{vTAG}")
    a(f"s_or_b64 vcc, vcc, s[{sMY}:{sMY+1}]")
    a("s_cbranch_scc0 L_qok")
    a(qload(rQ))
    a(f"s_add_u32 s{sCNT}, s{sCNT}, 1")
    a(f"s_cmp_lt_u32 s{sCNT}, 0x20000")
    a("s_waitcnt vmcnt(0)")
    a("s_cbranch_scc1 L_qchk")
    a.label("L_qok")
    a(f"v_mov_b32 v{rQ+1}, v{rQ+2}")
    a("v_lshlrev_b32 v7, 3, v0"); a(f"s_lshl_b32 s{sT}, s{sW}, 9"); a(f"v_add_u32 v7, s{sT}, v7")
    a(f"ds_write_b64 v7, v[{rQ}:{rQ+1}] offset:{L_Q}")
    a("v_lshlrev_b32 v7, 5, v6"); a("v_lshl_add_u32 v7, v5, 3, v7")
    barrier()
    release(eQ)
    for w in range(4): a(f"ds_read_b64 v[{partB[2*w]}:{partB[2*w+1]}], v7 offset:{L_Q + (4 + w)*512}")
    for w in range(4): a(f"ds_read_b64 v[{partA[2*w]}:{partA[2*w+1]}], v7 offset:{L_Q + w*512}")
    st["tgt"] = float(st["ip"] - 1) + 1
    issue_upto(int(st["tgt"]))
    a("s_waitcnt lgkmcnt(0)")
    q_finish(partB, qB); q_finish(partA, qA)
    if "startprof" not in diag: stamp()

    steps = []
    ready = {"kB": True, "kA": True, "vA": False, "vB": False, "woA": False, "woB": False}
    pending = []; cnt = {n: 0 for n in ready}; tot = {"kB": 64, "vB": 64}
    def push(e):
        steps.append(("c", e)); cnt[e[0]] += 1
        n, i = e
        if n in ("kB", "kA") and i % 16 == 15: steps.append(("rs", n, i // 16))
        if sub and e == ("vB", a_span): ready["woA"] = True
        if cnt[n] != tot.get(n, 16): return
        if n == "kA": steps.append(("op", "maxA")); ready["vA"] = True
        if n in ("vA", "kB") and cnt["vA"] == 16 and cnt["kB"] == 64:
            steps.append(("op", "mid")); ready["vB"] = True; ready["woA"] = not sub

        if n == "woA": steps.append(("op", "yA"))
        if n == "vB": steps.append(("op", "oB")); ready["woB"] = True
        if n == "woB": steps.append(("op", "yB"))
    def drain():
        again = True
        while again:
            again = False
            for e in list(pending):
                if ready[e[0]]:
                    pending.remove(e); push(e); again = True; break
    for e in issue:
        if e[0] == "q": continue
        if ready[e[0]] and not any(p[0] == e[0] for p in pending):
            push(e); drain()
        else: pending.append(e)
    drain(); assert not pending

    YA = qA; ML = qB; YD = partB[8:12]
    def y_exchange(lb, br, dst):
        part_write(accX, lb)
        a(f"s_lshl_b32 s{sRW}, s{sP}, 11"); a(f"s_add_u32 s{sRW}, s{sRW}, {WS_Y + br * 256 * 2048}")
        barrier()
        u = partB
        a(f"ds_read_b128 {R(u[0:4])}, v{vYR} offset:{lb}")
        a(f"ds_read_b128 {R(u[4:8])}, v{vYR} offset:{lb + 2048}")
        if br == 0:
            t = partA
            a("v_mov_b32 v10, 0")
            for k in range(4): a(f"ds_read_b128 v[{t[4*k]}:{t[4*k+3]}], v10 offset:{L_LS + 16*k}")
            bump()
        a("s_waitcnt lgkmcnt(0)")
        for k in range(4): a(f"v_add_f32 v{dst[k]}, v{u[k]}, v{u[4+k]}")
        for k in range(4): a(f"v_add_u32 v{dst[k]}, 0x800, v{dst[k]}")
        for k in range(4): a(f"v_bfi_b32 v{dst[k]}, s{sTM}, v{vTAG}, v{dst[k]}")
        if br == 0:
            tree(t[0:8], 8); tree(t[8:16], 8)
            a("v_cmp_eq_u32 vcc, 0, v0")
            a(f"v_cndmask_b32 v{ML[0]}, v{vMB}, v{vMA}, vcc"); a(f"v_cndmask_b32 v{ML[2]}, v{t[8]}, v{t[0]}, vcc")
            a(f"v_mov_b32 v{ML[1]}, v{vTAG}"); a(f"v_mov_b32 v{ML[3]}, v{vTAG}")
    def ml_store():
        a(f"s_lshl_b32 s{sT}, s{sP}, 7"); a(f"s_add_u32 s{sT}, s{sT}, {WS_ML}")
        a(f"s_cmp_eq_u32 s{sW}, 0"); a(f"s_cselect_b32 s{sT}, s{sT}, {OOB}")
        a("v_lshlrev_b32 v5, 15, v0"); a(f"v_mov_b32 v6, {OOB}")
        a("v_cmp_gt_u32 vcc, 2, v0"); a("v_cndmask_b32 v5, v6, v5, vcc")
        last_store["i"] = vmem(f"buffer_store_dwordx4 {R(ML)}, v5, {SRD('ws')}, s{sT} offen sc1")
        st["tgt"] += 2; issue_upto(int(st["tgt"]))
    def y_store(br, src):
        last_store["i"] = vmem(f"buffer_store_dwordx4 {R(src)}, v{vY}, {SRD('ws')}, s{sRW} offen sc1")
    MLR = [partA[0:4], partA[4:8]]; vRM, vRY = partA[8], partA[9]
    sRM, sRY = sKA, sWQ
    mli = {}
    def ml_loads():
        for i in range(2):
            mli[i] = vmem(f"buffer_load_dwordx4 {R(MLR[i])}, v{vRM}, {SRD('ws')}, s{sRM} offen offset:{1024 * i} sc1")
    def red_setup():
        if redsel == 0: a(f"s_mov_b32 s{sRO}, s2")
        else:
            a(f"s_and_b32 s{sRO}, s2, 31"); a(f"s_bfe_u32 s{sT}, s2, 0x10006"); a(f"s_lshl_b32 s{sT}, s{sT}, 5"); a(f"s_or_b32 s{sRO}, s{sRO}, s{sT}")
            a(f"s_and_b32 s{sT}, s{sJ}, 0x15"); a(f"s_bcnt1_i32_b32 s{sT}, s{sT}"); a(f"s_and_b32 s{sT}, s{sT}, 1"); a(f"s_lshl_b32 s{sT}, s{sT}, 6")
            a(f"s_or_b32 s{sRO}, s{sRO}, s{sT}")
            a(f"s_bfe_u32 s{sT}, s{sJ}, 0x10004"); a(f"s_xor_b32 s{sT}, s{sT}, {redsel - 1}"); a(f"s_lshl_b32 s{sT}, s{sT}, 6")
            a(f"s_or_b32 s{sRO}, s{sRO}, s{sT}")
        a("v_lshrrev_b32 v5, 3, v0")
        a(f"s_lshl_b32 s{sT}, s{sW}, 4"); a(f"v_add_u32 v5, s{sT}, v5")
        a("v_and_b32 v6, 7, v0"); a("v_lshlrev_b32 v6, 4, v6")
        a(f"v_lshl_add_u32 v{vRY}, v5, 11, v6")
        a(f"v_lshlrev_b32 v{vRM}, 7, v5")
        a(f"s_lshr_b32 s{sT}, s{sRO}, 4")
        a(f"s_lshl_b32 s{sRY}, s{sT}, 18"); a(f"s_and_b32 s{sT2}, s{sRO}, 15"); a(f"s_lshl_b32 s{sT2}, s{sT2}, 7")
        a(f"s_add_u32 s{sRY}, s{sRY}, s{sT2}")
        a(f"s_lshl_b32 s{sRM}, s{sT}, 14"); a(f"s_add_u32 s{sRM}, s{sRM}, {WS_ML}")
        a(f"s_cmp_lt_u32 s{sRO}, 64"); a(f"s_cselect_b32 s{sRM}, s{sRM}, {OOB}")
        if warm:
            a(f"s_cselect_b32 s{sT}, 0, {OOB}")
            vmem(f"buffer_load_dword v{vDUM}, off, {SRD('out')}, s{sT}")
        ml_loads()
    apub = {"have": False, "done": False}
    nxt = {}

    inmain["v"] = True
    for s in steps:
        if s[0] == "c":
            e = s[1]; n, i = e
            if not (sub and n in ("woA", "woB")):
                st["tgt"] = max(pos[e] + dmin, st["tgt"] + decay)
                issue_upto(int(st["tgt"]))
            assert e in slot, ("deadlock", e)
            if apub["have"] and not mli and st["ip"] >= len(issue) - mlpos: red_setup()
            if apub["have"] and not apub["done"] and st["ip"] >= len(issue) - apos:
                y_store(0, YA); apub["done"] = True
            if n == "kB": klike(e, qB, partB[i % 16])
            elif n == "kA": klike(e, qA, partA[i])
            elif n == "vA": vlike(e, accX, PA, i, i == 0)
            elif n == "vB": vlike(e, accB, PB[i // 16], i % 16, i == 0)
            elif sub and n in ("woA", "woB"):
                if i == 15:
                    if n == "woA":
                        st["tgt"] += subburst; issue_upto(int(st["tgt"]))
                    wait_for(vidx[e])
                    a(f"s_call_b64 s[{sRET}:{sRET+1}], L_proj")
                    a.hist = []
                    for k in range(16): release((n, k))
            elif n == "woB":
                if i == 0: nxt["s"] = sel_bcast(OX, 0)
                cur = nxt["s"]
                if i < 15: nxt["s"] = sel_bcast(OX, i + 1)
                wait_for(vidx[e]); mfma(accX, cur, RING0 + 4 * slot[e], i == 0); release(e)
            else: vlike(e, accX, OX, i, i == 0)
        elif s[0] == "rs":
            if rsb:
                st["tgt"] += rsb; issue_upto(int(st["tgt"]))
            if s[1] == "kB": reduce_scatter16(partB, PB[s[2]])
            else: reduce_scatter16(partA, PA)
        else:
            op = s[1]
            if op == "maxA":
                max_write(vMA, [PA], 0)
                barrier()
                max_read(partA, 0)
                bump()
                a("s_waitcnt lgkmcnt(0)")
                max_finish(vMA, partA, [PA], 0)
            elif op == "mid":
                max_write(vMB, PB, 32)
                part_write(accX, L_OA)
                barrier()
                max_read(partA, 32)
                if not sub: o_read(L_OA, partB)
                bump()
                a("s_waitcnt lgkmcnt(0)")
                max_finish(vMB, partA, PB, 32)
                if not sub: o_finish(partB)
                stamp()
            elif op == "yA":
                if sub:
                    a(f"v_mov_b32 v{YA[0]}, v{YD[0]}"); a(f"v_mov_b32 v{YA[2]}, v{YD[2]}")
                    a(f"v_mov_b32 v{YA[1]}, v{vTAG}"); a(f"v_mov_b32 v{YA[3]}, v{vTAG}")
                    a(f"s_lshl_b32 s{sRW}, s{sP}, 12")
                    t = partA
                    a("v_mov_b32 v10, 0")
                    for k in range(4): a(f"ds_read_b128 v[{t[4*k]}:{t[4*k+3]}], v10 offset:{L_LS + 16*k}")
                    a("s_waitcnt lgkmcnt(0)")
                    tree(t[0:8], 8); tree(t[8:16], 8)
                    a("v_cmp_eq_u32 vcc, 0, v0")
                    a(f"v_cndmask_b32 v{ML[0]}, v{vMB}, v{vMA}, vcc"); a(f"v_cndmask_b32 v{ML[2]}, v{t[8]}, v{t[0]}, vcc")
                    a(f"v_mov_b32 v{ML[1]}, v{vTAG}"); a(f"v_mov_b32 v{ML[3]}, v{vTAG}")
                else: y_exchange(L_YA, 0, YA)
                ml_store()
                apub["have"] = True
            elif op == "oB":
                stamp()
                part_write(accB, L_OA if sub else L_OB)
                if sub:
                    a(f"s_add_u32 s{sRW}, s{sRW}, {256 * 4096}")
                    stamp()
                else:
                    barrier()
                    stamp()
                    o_read(L_OB, partB)
                    a("s_waitcnt lgkmcnt(0)")
                    o_finish(partB)
            elif op == "yB":
                if sub: y_store(1, YD)
                else:
                    y_exchange(L_YB, 1, accB); y_store(1, accB)
                stamp()
    inmain["v"] = False
    assert st["ip"] == len(issue) and apub["done"]

    if "nored" in diag: a("s_branch L_fin")
    a(f"s_cmp_ge_u32 s{sRO}, 64")
    a("s_cbranch_scc1 L_fin")
    YF = list(range(44, 52)); BUF = [RING0 + 8 * k for k in range(nb)]
    a(f"s_add_u32 s{sOFF}, s{sRY}, {8 * 2048}")
    def poll(k):
        a(f"buffer_load_dwordx4 v[{BUF[k]}:{BUF[k]+3}], v{vRY}, {SRD('ws')}, s{sRY} offen sc1")
        a(f"buffer_load_dwordx4 v[{BUF[k]+4}:{BUF[k]+7}], v{vRY}, {SRD('ws')}, s{sOFF} offen sc1")
    poll(0)
    a(f"s_mov_b32 s{sCNT}, 0")
    def mlcmp():
        a(f"v_xor_b32 v7, v{MLR[0][1]}, v{vTAG}"); a(f"v_xor_b32 v8, v{MLR[0][3]}, v{vTAG}")
        a(f"v_xor_b32 v9, v{MLR[1][1]}, v{vTAG}"); a(f"v_xor_b32 v10, v{MLR[1][3]}, v{vTAG}")
        a("v_or3_b32 v7, v7, v8, v9"); a("v_or_b32 v7, v7, v10")
        a("v_cmp_ne_u32 vcc, 0, v7"); a("s_cmp_lg_u64 vcc, 0")
    assert mli[1] < done["upto"]
    mlcmp()
    a("s_cbranch_scc0 L_mlok")
    a.label("L_mlchk")
    for i in range(2): a(f"buffer_load_dwordx4 {R(MLR[i])}, v{vRM}, {SRD('ws')}, s{sRM} offen offset:{1024 * i} sc1")
    a(f"s_add_u32 s{sCNT}, s{sCNT}, 1")
    a("s_waitcnt vmcnt(0)")
    a(f"s_cmp_ge_u32 s{sCNT}, 0x20000")
    a("s_cbranch_scc1 L_mlre")
    mlcmp()
    a("s_cbranch_scc1 L_mlchk")
    a.label("L_mlre")
    poll(0)
    a.label("L_mlok")
    W = [18, 19]; T = [7, 8]; U = [9, 10]
    for i in range(2): a(f"v_max_f32_dpp v{T[i]}, v{MLR[i][0]}, v{MLR[i][0]} row_ror:8 {DPPF}")
    for i in range(2): a(f"v_mov_b32 v{U[i]}, v{T[i]}")
    for i in range(2): a(f"v_permlane16_swap_b32 v{T[i]}, v{U[i]}")
    for i in range(2): a(f"v_max_f32 v{T[i]}, v{T[i]}, v{U[i]}")
    for i in range(2): a(f"v_sub_f32 v{T[i]}, v{MLR[i][0]}, v{T[i]}")
    for i in range(2): a(f"v_mul_f32 v{T[i]}, s{sL2E}, v{T[i]}")
    for i in range(2): a(f"v_exp_f32 v{W[i]}, v{T[i]}")
    for i in range(2): a(f"v_mul_f32 v{T[i]}, v{W[i]}, v{MLR[i][2]}")
    for i in range(2): a(f"v_add_f32_dpp v{T[i]}, v{T[i]}, v{T[i]} row_ror:8 {DPPF}")
    for i in range(2): a(f"v_mov_b32 v{U[i]}, v{T[i]}")
    for i in range(2): a(f"v_permlane16_swap_b32 v{T[i]}, v{U[i]}")
    for i in range(2): a(f"v_add_f32 v{T[i]}, v{T[i]}, v{U[i]}")
    for i in range(2): a(f"v_rcp_f32 v{T[i]}, v{T[i]}")
    for i in range(2): a(f"v_mul_f32 v{W[i]}, v{W[i]}, v{T[i]}")
    a("v_and_b32 v11, 7, v0"); a("v_lshlrev_b32 v11, 2, v11")
    a("v_bfe_u32 v7, v0, 3, 1"); a("v_lshl_add_u32 v11, v7, 1, v11")
    a("v_bfe_u32 v7, v0, 4, 1"); a("v_add_u32 v11, v7, v11"); a("v_lshlrev_b32 v11, 2, v11")
    a(f"s_lshl_b32 s{sT2}, s{sW}, 7"); a(f"v_add_u32 v11, s{sT2}, v11")
    a("v_and_b32 v16, 15, v0"); a("v_lshlrev_b32 v17, 3, v16"); a("v_lshlrev_b32 v16, 2, v16")
    a(f"s_bfe_u32 s{sKB}, s{sRO}, 0x10004"); a(f"s_lshl_b32 s{sKB}, s{sKB}, 11")
    a(f"s_lshr_b32 s{sT2}, s{sRO}, 5"); a(f"s_lshl_b32 s{sT2}, s{sT2}, 10"); a(f"s_add_u32 s{sKB}, s{sKB}, s{sT2}")
    a(f"s_and_b32 s{sT2}, s{sRO}, 15"); a(f"s_lshl_b32 s{sT2}, s{sT2}, 6"); a(f"s_add_u32 s{sKB}, s{sKB}, s{sT2}")
    a(f"s_mov_b64 s[{sMY}:{sMY+1}], -1")
    a(f"s_not_b32 s{sWO}, s{sTM}")
    a(f"v_and_b32 v20, s{sTM}, v{vTAG}")
    for k in range(1, nb):
        if gap: a(f"s_sleep {gap if k > 1 else max(gap - 4, 1)}")
        poll(k)
    a.label("L_poll")
    for k in range(nb):
        B = BUF[k]
        a(f"s_waitcnt vmcnt({2 * (nb - 1)})")
        a(f"v_or3_b32 v7, v{B}, v{B+1}, v{B+2}"); a(f"v_or3_b32 v7, v7, v{B+3}, v{B+4}"); a(f"v_or3_b32 v7, v7, v{B+5}, v{B+6}")
        a(f"v_bitop3_b32 v8, v{B}, v{B+1}, v{B+2} bitop3:0x80"); a(f"v_bitop3_b32 v8, v8, v{B+3}, v{B+4} bitop3:0x80"); a(f"v_bitop3_b32 v8, v8, v{B+5}, v{B+6} bitop3:0x80")
        a(f"v_or_b32 v7, v7, v{B+7}"); a(f"v_and_b32 v8, v8, v{B+7}")
        a(f"v_and_b32 v7, s{sTM}, v7"); a(f"v_and_b32 v8, s{sTM}, v8")
        a("v_cmp_eq_u32 vcc, v7, v20"); a(f"v_cmp_eq_u32 s[{sMM}:{sMM+1}], v8, v20")
        a(f"s_and_b64 vcc, vcc, s[{sMM}:{sMM+1}]")
        a(f"s_and_b64 exec, vcc, s[{sMY}:{sMY+1}]")
        for j in range(8): a(f"v_and_b32 v{YF[j]}, s{sWO}, v{B+j}")
        a(f"s_andn2_b64 s[{sMY}:{sMY+1}], s[{sMY}:{sMY+1}], vcc")
        a("s_cbranch_scc0 L_poll_ok")
        a(f"s_mov_b64 exec, s[{sMY}:{sMY+1}]")
        poll(k)
        a("s_mov_b64 exec, -1")
    a(f"s_add_u32 s{sCNT}, s{sCNT}, 1")
    a(f"s_cmp_lt_u32 s{sCNT}, 0x20000")
    a("s_cbranch_scc1 L_poll")
    a.label("L_poll_ok")
    a("s_mov_b64 exec, -1")
    if "redprof" in diag:
        a(f"s_memrealtime s[{sST}:{sST+1}]"); a("s_waitcnt lgkmcnt(0)")
        a(f"v_writelane_b32 v{vSTAMP}, s{sST}, 1")
        a(f"v_readlane_b32 s{sT2}, v{vSTAMP}, 0"); a(f"s_add_u32 s{sT2}, s{sT2}, s{sCNT}"); a(f"v_writelane_b32 v{vSTAMP}, s{sT2}, 2")
    y = YF
    for k in range(4): a(f"v_mul_f32 v{y[k]}, v{W[0]}, v{y[k]}")
    for k in range(4): a(f"v_fmac_f32 v{y[k]}, v{W[1]}, v{y[k+4]}")
    for k in range(2): a(f"v_add_f32_dpp v{y[k]}, v{y[k]}, v{y[k]} row_ror:8 row_mask:0xf bank_mask:0x3")
    for k in range(2): a(f"v_add_f32_dpp v{y[k]}, v{y[k+2]}, v{y[k+2]} row_ror:8 row_mask:0xf bank_mask:0xc")
    a(f"v_permlane16_swap_b32 v{y[0]}, v{y[1]}")
    a(f"v_add_f32 v{y[0]}, v{y[0]}, v{y[1]}")
    a(f"v_mov_b32 v{y[1]}, v{y[0]}")
    a(f"v_permlane32_swap_b32 v{y[0]}, v{y[1]}")
    a(f"v_add_f32 v{y[0]}, v{y[0]}, v{y[1]}")
    a(f"ds_write_b32 v11, v{y[0]} offset:{L_RED}")
    barrier()
    a(f"s_cmp_lg_u32 s{sW}, 0")
    a("s_cbranch_scc1 L_fin")
    t = partA
    for w in range(8): a(f"ds_read_b64 v[{t[2*w]}:{t[2*w+1]}], v17 offset:{L_RED + w*128}")
    a("s_waitcnt lgkmcnt(0)")
    tree(t, 16, 2)
    a(f"v_cvt_pk_bf16_f32 v7, v{t[0]}, v{t[1]}")
    a("s_mov_b64 exec, 0xffff")
    a(f"buffer_store_dword v7, v16, {SRD('out')}, s{sKB} offen")
    a(f"s_cmp_lg_u32 s{sRO}, 32")
    a("s_cbranch_scc1 L_fin")
    a("s_mov_b64 exec, 1")
    a(f"s_mov_b32 s{sT}, {hex(WS_EP)}")
    a(f"buffer_store_dword v{vTAG}, v16, {SRD('ws')}, s{sT} offen sc1")
    a.label("L_fin")
    if "pad" in diag:
        if "padx" in diag:
            a("s_getreg_b32 s80, hwreg(HW_REG_XCC_ID)"); a("s_and_b32 s80, s80, 15"); a("s_and_b32 s81, s2, 7")
            a("s_cmp_eq_u32 s80, s81"); a("s_cbranch_scc1 L_padend")
        a.label("L_pad")
        a("s_memrealtime s[80:81]"); a("s_waitcnt lgkmcnt(0)")
        a("s_sub_u32 s80, s80, s92"); a("s_cmp_lt_u32 s80, 10000"); a("s_cbranch_scc1 L_pad")
        a.label("L_padend")
    if stamps:
        a("s_mov_b64 exec, -1")
        stamp()
        if "tailprof" in diag:
            a("s_memtime s[88:89]"); a("s_waitcnt lgkmcnt(0)")
            for k in range(7): a(f"v_writelane_b32 v{vSTAMP}, s{76 + 2*k}, {k}")
            a(f"v_writelane_b32 v{vSTAMP}, s90, 7")
        assert stampn["n"] == 8, stampn
        a(f"s_lshl_b32 s{sT}, s2, 3"); a(f"s_add_u32 s{sT}, s{sT}, s{sW}"); a(f"s_lshl_b32 s{sT}, s{sT}, 5")
        a(f"s_add_u32 s{sT}, s{sT}, {WS_ST}")
        a("v_lshlrev_b32 v5, 2, v0")
        a("s_mov_b64 exec, 0xff")
        a(f"buffer_store_dword v{vSTAMP}, v5, {SRD('ws')}, s{sT} offen")
        if "dbgst" in diag:
            a("s_load_dwordx2 s[76:77], s[0:1], 88"); a("s_mov_b32 s78, 256"); a("s_mov_b32 s79, 0x20000")
            a(f"s_cmp_eq_u32 s2, 64"); a(f"s_cselect_b32 s{sT}, 0, {OOB}")
            a(f"s_cmp_eq_u32 s2, 205"); a(f"s_cselect_b32 s{sT}, 32, s{sT}")
            a(f"s_cmp_eq_u32 s{sW}, 0"); a(f"s_cselect_b32 s{sT}, s{sT}, {OOB}")
            a(f"v_readlane_b32 s{sT2}, v{vSTAMP}, 0")
            a(f"v_subrev_u32 v{vSTAMP}, s{sT2}, v{vSTAMP}")
            a("s_waitcnt lgkmcnt(0)")
            a(f"buffer_store_dword v{vSTAMP}, v5, s[76:79], s{sT} offen")
    a.label("L_end")
    a("s_endpgm")
    if sub:
        a.label("L_proj")
        a.hist = []
        tp = "tailprof" in diag
        if tp: a("s_memtime s[76:77]")
        barrier()
        if tp: a("s_memtime s[78:79]")
        o_read(L_OA, partB)
        a(f"v_mov_b32 v{YD[1]}, v{vTAG}"); a(f"v_mov_b32 v{YD[3]}, v{vTAG}")
        a("s_waitcnt lgkmcnt(0)")
        if tp: a("s_memtime s[80:81]")
        o_finish(partB)
        selk["k"] = 0
        cur = sel_bcast(OX, 0)
        for i in range(16):
            nx = sel_bcast(OX, i + 1) if i < 15 else None
            mfma(accX, cur, RING0 + 4 * (WB0 + i), i == 0); cur = nx
        if tp: a("s_memtime s[82:83]")
        part_write(accX, L_YA)
        barrier()
        if tp: a("s_memtime s[84:85]")
        a(f"ds_read_b64 v[6:7], v{vYR} offset:{L_YA}")
        a(f"ds_read_b64 v[8:9], v{vYR} offset:{L_YA + 2048}")
        a("s_waitcnt lgkmcnt(0)")
        a(f"v_add_f32 v{YD[0]}, v6, v8"); a(f"v_add_f32 v{YD[2]}, v7, v9")
        if tp: a("s_memtime s[86:87]")
        a(f"s_setpc_b64 s[{sRET}:{sRET+1}]")
    a.raw('.section .rodata,"a"'); a.raw(".p2align 6"); a.raw(f".amdhsa_kernel {NAME}")
    a.raw("  .amdhsa_next_free_vgpr 256"); a.raw(f"  .amdhsa_next_free_sgpr {NSGPR}"); a.raw("  .amdhsa_accum_offset 256")
    a.raw("  .amdhsa_group_segment_fixed_size 0"); a.raw("  .amdhsa_kernarg_size 104"); a.raw("  .amdhsa_user_sgpr_count 2")
    a.raw("  .amdhsa_user_sgpr_kernarg_segment_ptr 1"); a.raw("  .amdhsa_system_sgpr_workgroup_id_x 1"); a.raw(".end_amdhsa_kernel")
    return a.text()

if __name__ == "__main__":
    out = sys.argv[1]
    kw = json.loads(sys.argv[2]) if len(sys.argv) > 2 else {}
    open(out, "w").write(gen(**kw))
```

```python
import re

def _regs(tok, kind):
    tok = tok.strip()
    m = re.fullmatch(r'-?\|?%s(\d+)\|?' % kind, tok)
    if m: return [int(m.group(1))]
    m = re.fullmatch(r'%s\[(\d+):(\d+)\]' % kind, tok)
    if m: return list(range(int(m.group(1)), int(m.group(2)) + 1))
    return []

TRANS = ('v_exp_f32', 'v_rcp_f32', 'v_log_f32', 'v_rsq_f32', 'v_sqrt_f32')

class Ins:
    def __init__(self, text):
        self.text = text
        t = text.split(';')[0].strip()
        self.op = t.split()[0] if t else ''
        rest = t[len(self.op):].strip()
        ops = []; depth = 0; cur = ''
        for ch in rest:
            if ch == '[': depth += 1
            if ch == ']': depth -= 1
            if ch == ',' and depth == 0:
                ops.append(cur.strip()); cur = ''
            else: cur += ch
        if cur.strip(): ops.append(cur.strip())
        self.mods = ''
        if ops:
            parts = ops[-1].split(None, 1)
            ops[-1] = parts[0]
            if len(parts) > 1: self.mods = parts[1]
        self.ops = ops
        op = self.op
        self.is_valu = op.startswith('v_')
        self.is_vmem = op.startswith('buffer_') or op.startswith('global_')
        self.is_ds = op.startswith('ds_')
        self.is_salu = op.startswith('s_')
        self.dpp = op.endswith('_dpp')
        self.base = op[:-4] if self.dpp else op
        self.base = re.sub(r'_e(32|64)$', '', self.base)
        self.is_dot = self.base.startswith('v_dot')
        self.is_trans = self.base in TRANS
        self.is_perm = self.base.startswith('v_permlane')
        self.is_mfma = self.base.startswith('v_mfma')
        self.vw = set(); self.vr = set(); self.sw = set(); self.sr = set(); self.dppr = set(); self.srcc = set()
        def V(t): return set(_regs(t, 'v'))
        def S(t):
            if t == 'vcc': return {'vcc'}
            if t == 'exec': return {'exec'}
            return set(_regs(t, 's'))
        if self.is_valu:
            if self.base.startswith('v_cmp'):
                self.sw |= S(ops[0])
                for o in ops[1:]: self.vr |= V(o); self.sr |= S(o)
            elif self.base in ('v_readfirstlane_b32', 'v_readlane_b32'):
                self.sw |= S(ops[0])
                for o in ops[1:]: self.vr |= V(o); self.sr |= S(o)
            elif self.is_mfma:
                self.vw |= V(ops[0]); self.vr |= V(ops[1]) | V(ops[2]); self.srcc |= V(ops[3])
            elif self.is_perm:
                self.vw |= V(ops[0]) | V(ops[1]); self.vr |= V(ops[0]) | V(ops[1])
            else:
                self.vw |= V(ops[0])
                for o in ops[1:]: self.vr |= V(o); self.sr |= S(o)
                if self.base in ('v_dot2c_f32_bf16', 'v_fmac_f32'):
                    self.srcc |= V(ops[0])
                if self.base == 'v_dot2_f32_bf16':
                    self.srcc |= V(ops[3]); self.vr = V(ops[1]) | V(ops[2])
                if self.dpp:
                    self.dppr |= V(ops[1])
                    self.vr |= V(ops[0])
        elif self.is_vmem:
            if 'load' in op:
                self.vw |= V(ops[0])
                for o in ops[1:]: self.vr |= V(o); self.sr |= S(o)
            else:
                for o in ops: self.vr |= V(o); self.sr |= S(o)
            self.wide_store = ('store' in op) and (op.endswith('x4') or op.endswith('x3'))
            self.store_data = V(ops[0]) if 'store' in op else set()
        elif self.is_ds:
            if 'read' in op:
                self.vw |= V(ops[0])
                for o in ops[1:]: self.vr |= V(o)
            else:
                for o in ops: self.vr |= V(o)
    def states(self):
        if self.op == 's_nop': return int(self.ops[0]) + 1
        return 1

def need(prod, cons):
    n = 0
    if prod.is_mfma:
        two = '4x4x4' in prod.base
        if cons.is_mfma:
            if prod.vw & cons.vr: n = max(n, 5 if two else 8)
            if prod.vw & cons.srcc:
                if prod.vw != cons.srcc or prod.base != cons.base: n = max(n, 4 if two else 6)
                elif two: n = max(n, 2)
            if (prod.vw & cons.vw) and not (prod.vw == cons.srcc): n = max(n, 5 if two else 8)
        elif cons.is_valu or cons.is_vmem or cons.is_ds:
            if prod.vw & (cons.vr | cons.vw | cons.srcc): n = max(n, 5 if two else 8)
            if cons.is_valu and (prod.srcc & cons.vw): n = max(n, 1 if two else 3)
        return n
    if prod.is_valu and cons.is_mfma:
        if prod.vw & (cons.vr | cons.srcc): n = max(n, 3 if prod.is_dot else 2)
        return n
    if prod.is_valu:
        if cons.is_valu:
            if prod.vw & cons.dppr: n = max(n, 2)
            if cons.is_perm and (prod.vw & cons.vr): n = max(n, 2)
            if prod.is_trans and not cons.is_trans and (prod.vw & (cons.vr | cons.srcc)): n = max(n, 1)
            if cons.base in ('v_readfirstlane_b32', 'v_readlane_b32') and (prod.vw & cons.vr): n = max(n, 1)
            if prod.sw & cons.sr: n = max(n, 4 if cons.base == 'v_readlane_b32' else 2)
            if prod.is_dot:
                if cons.base == prod.base:
                    r = cons.vr - (cons.srcc if cons.base == 'v_dot2c_f32_bf16' else set())
                    if prod.vw & r: n = max(n, 3)
                elif prod.vw & (cons.vr | cons.vw | cons.srcc): n = max(n, 3)
        if (cons.is_vmem or cons.is_ds) and prod.is_dot and (prod.vw & (cons.vr | cons.vw)): n = max(n, 3)
        if cons.is_vmem and (prod.sw & cons.sr): n = max(n, 5)
        if cons.is_salu and prod.sw:
            for r in prod.sw:
                nm = r if isinstance(r, str) else None
                if nm and nm in cons.text: n = max(n, 1)
                elif not nm and any(r in _regs(o, 's') for o in cons.ops): n = max(n, 1)
    if prod.is_vmem and getattr(prod, 'wide_store', False):
        if cons.vw & prod.store_data: n = max(n, 2)
    return n

class Asm:
    def __init__(self):
        self.lines = []
        self.hist = []
        self.nops = 0
    def raw(self, s):
        self.lines.append(s)
    def label(self, name):
        self.lines.append(f"{name}:")
    def flush_hazards(self):
        self('s_nop 4')
    def __call__(self, text):
        ins = Ins(text)
        dist = 0; req = 0
        for p in reversed(self.hist[-14:]):
            n = need(p, ins)
            if n - dist > req: req = n - dist
            dist += p.states()
            if dist >= 10: break
        if req > 0:
            nop = Ins(f"s_nop {req - 1}")
            self.lines.append("  " + nop.text); self.hist.append(nop); self.nops += 1
        self.lines.append("  " + text)
        self.hist.append(ins)
    def text(self):
        return "\n".join(self.lines) + "\n"
```

```python
import sys, json
from asmlib import Asm

NAME = "concat_heads__sliding_block_cached__mha_block_cached__decode_kernel"
HEADER = open("concat_heads__sliding_block_cached__mha_block_cached__decode.s.ref").read().split("; Override launch")[0]
DPPF = "row_mask:0xf bank_mask:0xf"

WS_Y = 0
WS_ML = 0x100000
WS_Q = 0x120000
WS_EP = 0x1b0000
WS_ST = 0x340000
WS_SIZE = 0x400000
OOB = 0x40000000

def gen(F=5, dmin=5, burst=1, stamps=False, pol="nt", shpol="", qpos=22, decay=0.5, rsh=2, diag="",
        relax=4, slp=8, slpthr=16, early=1, apos=0, sub=False, subburst=3, warmred=True, a_span=27, b_start=36, pre=6, post=2, wb=(16,12,13), ib=(14,11,15,10,17,18), preb=0, rota=(1,2,4,3), rotw=(2,0,1,3), wba=(16,12,13), iba=(14,11,15,10), nb=2, gap=0, mlpos=12, warm=False, rsb=0, redsel=0, sync=6, mlfull=True, mllate=True, warmout=True, sync0=6, wtail=0, Fend=None, outpol='sc1', rb=(1,2,4,3,6,7)):
    if dmin is None: dmin = F - 1
    a = Asm()
    names = ["xA", "kA", "vA", "wqA", "woA", "xB", "kB", "vB", "wqB", "woB", "out", "dbg", "ws"]
    sizes = {"x": 2048, "wq": 4 << 20, "kA": 32 << 20, "vA": 32 << 20, "woA": 4 << 20,
             "kB": 128 << 20, "vB": 128 << 20, "woB": 4 << 20, "out": 4096, "ws": WS_SIZE}
    srd = {n: 8 + 4 * i for i, n in enumerate(sizes)}
    def SRD(n): return f"s[{srd[n]}:{srd[n]+3}]"
    sW, sH, sB, sS, sT = 3, 4, 5, 6, 7
    sX, sJ, sT2, sKB, sKA, sWQ, sWO, sOFF, sP, sTAG, sSC, sL2E, sCNT, sRW = range(48, 62)
    sM1, sM0, sST, sMY, sMM = 62, 64, 66, 68, 70
    sRET = 72; sTM = 74; sRO = 75
    NSGPR = 96
    vL16, vWo, vPW, vOR = 1, 2, 3, 4
    vSTAMP, vMA, vMB, vTAG = 12, 13, 14, 15
    qB = list(range(16, 20)); qA = list(range(20, 24))
    accB = list(range(24, 28)); accX = list(range(28, 32))
    MK = list(range(32, 36))
    SEL = [list(range(36, 40)), list(range(40, 44))]
    partB = list(range(44, 60)); partA = list(range(60, 76))
    PB = list(range(76, 80)); PA = 80; OX = 81; vY = 82; vYR = 83; vDUM = 84; vYW = 85; S2 = [86, 87]; M2 = [88, 89]
    accH = partA[12:16]
    RING0 = 92
    NS = (256 - RING0) // 4
    L_QP = 0
    L_Q = 8192; L_OA = L_OB = 12288
    L_YA = L_YB = 16896 // 256 * 256 + 256
    L_MX = L_YA + 16384; L_LS = L_MX + 64; L_RED = L_MX + 256
    LDS = L_RED + 1024

    a.raw(HEADER.rstrip("\n"))
    a.raw(f"; @launch grid=(256,1,1) block=(512,1,1) lds={LDS}")
    a.raw('.amdgcn_target "amdgcn-amd-amdhsa--gfx950"')
    a.raw(".text"); a.raw(f".globl {NAME}"); a.raw(".p2align 8"); a.raw(f".type {NAME},@function")
    a.label(NAME)
    a("s_cmp_ge_u32 s2, 256")
    a("s_cbranch_scc1 L_end")
    a(f"s_and_b32 s{sT}, s2, 1"); a(f"s_mul_i32 s{sT}, s{sT}, 40"); a(f"s_add_u32 s{sT2}, s{sT}, 24")
    a(f"s_load_dwordx2 s[{srd['wq']}:{srd['wq']+1}], s[0:1], s{sT2}")
    a(f"s_load_dwordx2 s[{srd['x']}:{srd['x']+1}], s[0:1], s{sT}")
    for n in ["kB", "ws", "kA"]:
        a(f"s_load_dwordx2 s[{srd[n]}:{srd[n]+1}], s[0:1], {8 * names.index(n)}")
    if stamps: a(f"s_memrealtime s[{sST}:{sST+1}]")
    if "tailprof" in diag: a("s_memtime s[90:91]")
    if "pad" in diag: a("s_memrealtime s[92:93]")
    stampn = {"n": 1}
    def stamp():
        if not stamps: return
        a(f"s_memrealtime s[{sST}:{sST+1}]"); a("s_waitcnt lgkmcnt(0)")
        a(f"v_writelane_b32 v{vSTAMP}, s{sST}, {stampn['n']}"); stampn["n"] += 1
    def srdw(n):
        a(f"s_mov_b32 s{srd[n]+2}, {hex(sizes[n])}"); a(f"s_mov_b32 s{srd[n]+3}, 0x20000")
    a("v_lshrrev_b32 v1, 6, v0")
    a("v_and_b32 v0, 63, v0")
    a(f"v_readfirstlane_b32 s{sW}, v1")
    srdw("wq"); srdw("x")
    a("v_lshrrev_b32 v5, 4, v0"); a("v_and_b32 v6, 15, v0")
    a("v_lshlrev_b32 v7, 4, v6")
    a("v_lshl_add_u32 v9, v5, 15, v7")
    a("v_bfe_u32 v8, v0, 3, 1"); a("v_lshlrev_b32 v8, 10, v8"); a("v_lshl_add_u32 v8, v5, 3, v8")
    a(f"s_lshr_b32 s{sJ}, s2, 3")
    a(f"s_and_b32 s{sT}, s2, 6"); a(f"s_lshl_b32 s{sT}, s{sT}, 2"); a(f"s_add_u32 s{sT}, s{sT}, s{sW}")
    a(f"s_lshl_b32 s{sRW}, s{sT}, 5")
    a(f"s_lshl_b32 s{sWQ}, s{sT}, 17"); a(f"s_lshl_b32 s{sT2}, s{sJ}, 8"); a(f"s_add_u32 s{sWQ}, s{sWQ}, s{sT2}")
    a("s_waitcnt lgkmcnt(0)")
    if stamps: a(f"v_writelane_b32 v{vSTAMP}, s{sST}, 0")
    if "startprof" in diag: stamp()

    vm = {"n": 0}; done = {"upto": 0}; last_store = {"i": -100}
    def vmem(text):
        a(text); vm["n"] += 1; return vm["n"] - 1
    def wait_for(idx):
        if idx < done["upto"]: return
        n = vm["n"] - 1 - idx
        assert n <= 63
        a(f"s_waitcnt vmcnt({n})"); done["upto"] = idx + 1
    def limit(f):
        tgt = vm["n"] - f
        if tgt >= last_store["i"] and vm["n"] - last_store["i"] <= f + relax - 1: tgt = last_store["i"] - 1
        if tgt >= 0: wait_for(tgt)

    free = list(range(NS))
    wsl = [free.pop(0) for _ in range(4)]
    wr = [RING0 + 4 * s for s in wsl]
    ix = vmem(f"buffer_load_dwordx2 v[10:11], v8, {SRD('x')}, s{sRW} offen")
    iw = []
    for i in range(4):
        if i: a(f"s_add_u32 s{sOFF}, s{sWQ}, {i * 8192}")
        iw.append(vmem(f"buffer_load_dwordx4 v[{wr[i]}:{wr[i]+3}], v9, {SRD('wq')}, s{sOFF if i else sWQ} offen {pol}"))

    srdw("kB")
    a(f"v_lshlrev_b32 v{vL16}, 4, v0")
    a(f"s_and_b32 s{sX}, s2, 7")
    a(f"s_lshr_b32 s{sH}, s{sJ}, 3"); a(f"s_lshl_b32 s{sT}, s{sX}, 2"); a(f"s_add_u32 s{sH}, s{sH}, s{sT}")
    a(f"s_bfe_u32 s{sB}, s{sJ}, 0x10002"); a(f"s_and_b32 s{sS}, s{sJ}, 3")
    a(f"s_lshl_b32 s{sP}, s{sB}, 5"); a(f"s_add_u32 s{sP}, s{sP}, s{sH}")
    a(f"s_lshl_b32 s{sP}, s{sP}, 2"); a(f"s_add_u32 s{sP}, s{sP}, s{sS}")
    def scatter(dst, pairs, first=False):
        for reg, src, bit in pairs:
            a(f"s_bfe_u32 s{sT}, s{reg}, {hex(0x10000 | src)}")
            if first: a(f"s_lshl_b32 s{dst}, s{sT}, {bit}"); first = False
            else: a(f"s_lshl_b32 s{sT}, s{sT}, {bit}"); a(f"s_or_b32 s{dst}, s{dst}, s{sT}")
    pb = [(sW, 2, wb[0]), (sW, 0, wb[1]), (sW, 1, wb[2])] + [(2, (rb[k] if rb else k + rsh), d) for k, d in enumerate(ib)]
    pa = [(sW, 2, wba[0]), (sW, 0, wba[1]), (sW, 1, wba[2])] + [(2, sr, d) for sr, d in zip(rota, iba) if sr is not None and sr >= 0]
    assert all(sr <= 5 for r_, sr, d in pa[3:])
    common = [p for p in pb if p in pa]
    scatter(sKA, common, True)
    a(f"s_lshl_b32 s{sKB}, s{sP}, 19"); a(f"s_or_b32 s{sKB}, s{sKB}, s{sKA}")
    scatter(sKB, [p for p in pb if p not in common])
    def late_setup():
        scatter(sKA, [p for p in pa if p not in common])
        a(f"s_lshl_b32 s{sT}, s{sB}, 3"); a(f"s_add_u32 s{sT}, s{sT}, s{sX}")
        a(f"s_lshl_b32 s{sT}, s{sT}, 4"); a(f"s_add_u32 s{sT}, s{sT}, s{sS}"); a(f"s_add_u32 s{sT}, s{sT}, 12")
        a(f"s_lshl_b32 s{sT}, s{sT}, 17"); a(f"s_or_b32 s{sKA}, s{sKA}, s{sT}")
        for n in srd:
            if n not in ("wq", "x", "kB"): srdw(n)
        a(f"s_mov_b32 s{sCNT}, {hex(WS_EP)}")

    P = [("kB", i) for i in range(64)] + [("vB", i) for i in range(64)]
    issue = []
    after = {}
    for i in range(16):
        after.setdefault(2 * i, []).append(("kA", i))
        after.setdefault(32 + 2 * i, []).append(("vA", i))
        if sub:
            after.setdefault(64 + (i * a_span) // 16, []).append(("woA", i))
            after.setdefault(64 + b_start + (i * (63 - b_start)) // 16, []).append(("woB", i))
        else:
            after.setdefault(64 + 2 * i, []).append(("woA", i))
            nw = 16 - wtail
            after.setdefault(96 + (i * 32) // nw if i < nw else 127, []).append(("woB", i))
    for i, e in enumerate(P):
        issue.append(e); issue += after.get(i, [])
    assert wtail or issue[-1][0] == "vB"
    issue.insert(qpos, ("q", 0))
    pos = {e: i for i, e in enumerate(issue)}
    slot = {}; vidx = {}; lastbar = {"ip": 0}; inmain0 = {"v": False}
    st = {"ip": 0, "tgt": 0.0}
    def qload(r):
        return f"buffer_load_dwordx4 v[{r}:{r+3}], v{vL16}, {SRD('ws')}, s{sWQ} offen sc1"
    WB0 = NS - 16
    def pick(n, i):
        if sub:
            if n in ("woA", "woB"):
                return WB0 + i if (WB0 + i) in free else None
            cand = [s for s in free if s < WB0 or st["ip"] < 56]
            return cand[0] if cand else None
        return free[0] if free else None
    def issue_one(lim=True):
        e = issue[st["ip"]]; n, i = e
        s = pick(n, i); free.remove(s); slot[e] = s
        r = RING0 + 4 * s
        if n == "q":
            if lim: limit(F)
            vidx[e] = vmem(qload(r))
        else:
            if n in ("kB", "vB"): base, off, va, pl = sKB, sum(((i >> k) & 1) << b for k, b in enumerate(ib)), vL16, pol
            elif n in ("kA", "vA"): base, off, va, pl = sKA, sum(((i >> k) & 1) << b for k, b in enumerate(iba)), vL16, shpol
            else: base, off, va, pl = sWO, i * 1024, vL16, shpol
            if off:
                a(f"s_xor_b32 s{sOFF}, s{base}, {off}"); so = sOFF
            else: so = base
            if lim: limit(Fend if (Fend and n == "woB" and i >= 16 - wtail) else F)
            vidx[e] = vmem(f"buffer_load_dwordx4 v[{r}:{r+3}], v{va}, {SRD(n)}, s{so} offen {pl}")
        st["ip"] += 1
        per = sync if inmain0["v"] else sync0
        if per and st["ip"] - lastbar["ip"] >= per and st["ip"] < len(issue) - 2 - wtail:
            a("s_barrier"); lastbar["ip"] = st["ip"]
    def issue_upto(t):
        while st["ip"] <= t and st["ip"] < len(issue) and pick(*issue[st["ip"]]) is not None:
            issue_one()
    def release(e): free.append(slot.pop(e))
    issue_one(False)
    late_setup()
    for _ in range(early - 1): issue_one(False)
    itag = vmem(f"buffer_load_dword v{vTAG}, off, {SRD('ws')}, s{sCNT} sc1")
    for n in ["vA", "vB", "woA", "woB", "out"]:
        a(f"s_load_dwordx2 s[{srd[n]}:{srd[n]+1}], s[0:1], {8 * names.index(n)}")

    selk = {"k": 0}
    def R(regs): return f"v[{regs[0]}:{regs[-1]}]"
    def sel_bcast(p, lane):
        s = SEL[selk["k"]]; selk["k"] ^= 1
        for k in range(4): a(f"v_and_b32_dpp v{s[k]}, v{p}, v{MK[k]} row_newbcast:{lane} {DPPF}")
        return s
    def mfma(acc, s, r, first):
        a(f"v_mfma_f32_16x16x32_bf16 {R(acc)}, {R(s)}, v[{r}:{r+3}], {'0' if first else R(acc)}")
    def vlike(e, acc, p, lane, first):
        s = sel_bcast(p, lane)
        wait_for(vidx[e]); mfma(acc, s, RING0 + 4 * slot[e], first); release(e)
    def klike(e, q, dst):
        r = RING0 + 4 * slot[e]
        wait_for(vidx[e])
        a(f"v_dot2_f32_bf16 v{dst}, v{r}, v{q[0]}, 0")
        for k in range(1, 4): a(f"v_dot2_f32_bf16 v{dst}, v{r+k}, v{q[k]}, v{dst}")
        release(e)
    def reduce_scatter16(r, dst):
        for i in range(8): a(f"v_add_f32_dpp v{r[i]}, v{r[i]}, v{r[i]} row_ror:8 row_mask:0xf bank_mask:0x3")
        for i in range(8): a(f"v_add_f32_dpp v{r[i]}, v{r[i+8]}, v{r[i+8]} row_ror:8 row_mask:0xf bank_mask:0xc")
        for i in range(4): a(f"v_add_f32_dpp v{r[i]}, v{r[i]}, v{r[i]} row_half_mirror row_mask:0xf bank_mask:0x5")
        for i in range(4): a(f"v_add_f32_dpp v{r[i]}, v{r[i+4]}, v{r[i+4]} row_half_mirror row_mask:0xf bank_mask:0xa")
        for i in range(4): a(f"v_add_f32_dpp v{r[i]}, v{r[i]}, v{r[i]} quad_perm:[2,3,0,1] {DPPF}")
        a(f"v_cndmask_b32 v{r[0]}, v{r[0]}, v{r[2]}, s[{sM1}:{sM1+1}]")
        a(f"v_cndmask_b32 v{r[1]}, v{r[1]}, v{r[3]}, s[{sM1}:{sM1+1}]")
        for i in range(2): a(f"v_add_f32_dpp v{r[i]}, v{r[i]}, v{r[i]} quad_perm:[1,0,3,2] {DPPF}")
        a(f"v_cndmask_b32 v{dst}, v{r[0]}, v{r[1]}, s[{sM0}:{sM0+1}]")
        a(f"v_cvt_pk_bf16_f32 v{dst}, 0, v{dst}")
        a(f"v_mul_f32 v{dst}, s{sSC}, v{dst}")
        a(f"v_cvt_pk_bf16_f32 v{dst}, 0, v{dst}")
    def allreduce(op, regs, tmps):
        for sh in (8, 4, 2, 1):
            for r in regs: a(f"{op}_dpp v{r}, v{r}, v{r} row_ror:{sh} {DPPF}")
        for pl in ("v_permlane16_swap_b32", "v_permlane32_swap_b32"):
            for r, t in zip(regs, tmps): a(f"v_mov_b32 v{t}, v{r}")
            for r, t in zip(regs, tmps): a(f"{pl} v{r}, v{t}")
            for r, t in zip(regs, tmps): a(f"{op} v{r}, v{r}, v{t}")
    inmain = {"v": False}
    def barrier():
        if inmain["v"] and preb:
            st["tgt"] += preb; issue_upto(int(st["tgt"]))
        a("s_waitcnt lgkmcnt(0)"); a("s_barrier"); lastbar["ip"] = st["ip"]
    def tree(t, n, stop=1):
        st_ = n // 2
        while st_ >= stop:
            for k in range(st_): a(f"v_add_f32 v{t[k]}, v{t[k]}, v{t[k+st_]}")
            st_ //= 2
    def part_write(acc, lb):
        a("s_mov_b64 exec, 0xffffffff")
        a(f"ds_write_b128 v{vPW}, {R(acc)} offset:{lb}")
        a("s_mov_b64 exec, -1")
    def q_finish(tmp, q):
        tree(tmp, 8, 2)
        a(f"v_cvt_pk_bf16_f32 v{q[0]}, v{tmp[0]}, v{tmp[1]}")
        a(f"v_mov_b32 v{q[1]}, v{q[0]}")
        a(f"v_permlane16_swap_b32 v{q[0]}, v{q[1]}")
        a(f"v_mov_b32 v{q[2]}, v{q[0]}"); a(f"v_mov_b32 v{q[3]}, v{q[1]}")
        a(f"v_permlane32_swap_b32 v{q[0]}, v{q[2]}")
        a(f"v_permlane32_swap_b32 v{q[1]}, v{q[3]}")
    def o_read(lb, tmp):
        a(f"ds_read2_b32 v[{tmp[0]}:{tmp[1]}], v{vOR} offset0:0 offset1:132")
    def o_finish(tmp):
        a(f"v_add_f32 v{tmp[0]}, v{tmp[0]}, v{tmp[1]}")
        a(f"v_add_f32_dpp v{tmp[0]}, v{tmp[0]}, v{tmp[0]} quad_perm:[1,0,3,2] {DPPF}")
        a(f"v_add_f32_dpp v{tmp[0]}, v{tmp[0]}, v{tmp[0]} quad_perm:[2,3,0,1] {DPPF}")
        a(f"v_cvt_pk_bf16_f32 v{OX}, v{tmp[0]}, v{tmp[0]}")
        a(f"v_and_b32 v{S2[0]}, v{OX}, v{M2[0]}"); a(f"v_and_b32 v{S2[1]}, v{OX}, v{M2[1]}")
    def wlike(e, i):
        r = RING0 + 4 * slot[e]
        wait_for(vidx[e])
        a(f"v_mfma_f32_4x4x4_16b_bf16 {R(accX)}, {R(S2)}, v[{r}:{r+1}], {'0' if i == 0 else R(accX)} cbsz:4 abid:{i}")
        a(f"v_mfma_f32_4x4x4_16b_bf16 {R(accH)}, {R(S2)}, v[{r+2}:{r+3}], {'0' if i == 0 else R(accH)} cbsz:4 abid:{i}")
        release(e)
    def bump():
        st["tgt"] += burst; issue_upto(int(st["tgt"]))
    def max_write(m, srcs, off):
        if len(srcs) == 1: a(f"v_mov_b32 v{m}, v{srcs[0]}")
        else:
            a(f"v_max3_f32 v{m}, v{srcs[0]}, v{srcs[1]}, v{srcs[2]}"); a(f"v_max_f32 v{m}, v{m}, v{srcs[3]}")
        allreduce("v_max_f32", [m], [5])
        a(f"s_lshl_b32 s{sT}, s{sW}, 2"); a(f"v_mov_b32 v5, s{sT}")
        a(f"ds_write_b32 v5, v{m} offset:{L_MX + off}")
    def max_read(t, off):
        a("v_mov_b32 v6, 0")
        for k in range(2): a(f"ds_read_b128 v[{t[4*k]}:{t[4*k+3]}], v6 offset:{L_MX + off + 16*k}")
    def max_finish(m, t, ps, off):
        a(f"v_max3_f32 v{m}, v{t[0]}, v{t[1]}, v{t[2]}"); a(f"v_max3_f32 v{m}, v{m}, v{t[3]}, v{t[4]}")
        a(f"v_max3_f32 v{m}, v{m}, v{t[5]}, v{t[6]}"); a(f"v_max_f32 v{m}, v{m}, v{t[7]}")
        for p in ps: a(f"v_sub_f32 v{p}, v{p}, v{m}")
        for p in ps: a(f"v_mul_f32 v{p}, s{sL2E}, v{p}")
        for p in ps: a(f"v_exp_f32 v{p}, v{p}")
        if len(ps) == 1: a(f"v_mov_b32 v7, v{ps[0]}")
        else:
            a(f"v_add_f32 v7, v{ps[0]}, v{ps[1]}"); a(f"v_add_f32 v8, v{ps[2]}, v{ps[3]}"); a("v_add_f32 v7, v7, v8")
        for p in ps: a(f"v_cvt_pk_bf16_f32 v{p}, v{p}, v{p}")
        allreduce("v_add_f32", [7], [8])
        a(f"s_lshl_b32 s{sT}, s{sW}, 2"); a(f"v_mov_b32 v5, s{sT}")
        a(f"ds_write_b32 v5, v7 offset:{L_LS + off}")

    a("v_and_b32 v7, 1, v0"); a("v_lshlrev_b32 v7, 4, v7"); a("v_mov_b32 v8, 0xffff"); a("v_lshlrev_b32 v7, v7, v8")
    a("v_bfe_u32 v8, v0, 1, 2")
    for k in range(4):
        a(f"v_cmp_eq_u32 vcc, {k}, v8"); a(f"v_cndmask_b32 v{MK[k]}, 0, v7, vcc")
    a("v_and_b32 v7, 1, v5"); a("v_lshlrev_b32 v7, 4, v7"); a("v_lshl_add_u32 v7, v6, 5, v7")
    a("v_lshrrev_b32 v8, 1, v5"); a("v_lshl_add_u32 v7, v8, 12, v7")
    a(f"s_lshl_b32 s{sT}, s{sW}, 9"); a(f"v_add_u32 v{vPW}, s{sT}, v7")
    a(f"s_mov_b32 s{sT2}, 0")
    for k, src in enumerate(rotw or ()):
        if src is None or src < 0: continue
        a(f"s_bfe_u32 s{sT}, s{sH}, {hex(0x10000 | src)}"); a(f"s_lshl_b32 s{sT}, s{sT}, {k}"); a(f"s_or_b32 s{sT2}, s{sT2}, s{sT}")
    a("v_lshrrev_b32 v7, 2, v0"); a(f"v_xor_b32 v7, s{sT2}, v7"); a("v_lshlrev_b32 v7, 2, v7")
    a("v_and_b32 v8, 3, v0"); a("v_mul_u32_u24 v8, 1056, v8"); a("v_add_u32 v7, v7, v8")
    a(f"s_lshl_b32 s{sT}, s{sW}, 6"); a(f"s_add_u32 s{sT}, s{sT}, {L_OA}"); a(f"v_add_u32 v{vOR}, s{sT}, v7")
    a(f"s_lshl_b32 s{sWO}, s{sH}, 17"); a(f"s_lshl_b32 s{sT}, s{sW}, 14"); a(f"s_or_b32 s{sWO}, s{sWO}, s{sT}")
    a(f"s_lshl_b32 s{sT2}, s{sT2}, 10"); a(f"s_or_b32 s{sWO}, s{sWO}, s{sT2}")
    a(f"v_or_b32 v{M2[0]}, v{MK[0]}, v{MK[2]}"); a(f"v_or_b32 v{M2[1]}, v{MK[1]}, v{MK[3]}")
    a(f"s_lshl_b32 s{sT}, s{sW}, 11"); a(f"v_add_u32 v{vYW}, s{sT}, v{vL16}")
    a(f"s_lshl_b32 s{sT}, s{sW}, 8"); a("v_lshlrev_b32 v7, 2, v0"); a(f"v_add_u32 v{vY}, s{sT}, v7")
    a(f"s_movk_i32 s{sTM}, 0xfff")
    a(f"s_mov_b32 s{sM1}, 0xcccccccc"); a(f"s_mov_b32 s{sM1+1}, 0xcccccccc")
    a(f"s_mov_b32 s{sM0}, 0xaaaaaaaa"); a(f"s_mov_b32 s{sM0+1}, 0xaaaaaaaa")
    a(f"s_mov_b32 s{sSC}, 0x3db504f3"); a(f"s_mov_b32 s{sL2E}, 0x3fb8aa3b")
    a(f"s_mov_b32 s{sT}, 0x01000100"); a(f"s_mov_b32 s{sT2}, 0x03020302")
    wait_for(ix)
    if "startprof" in diag: stamp()
    xs = partA[0:4]
    for i in range(4): a(f"v_perm_b32 v{xs[i]}, v{10 + i // 2}, v{10 + i // 2}, s{sT2 if i & 1 else sT}")
    for i in range(4):
        s = SEL[i & 1]
        for k in range(4): a(f"v_and_b32 v{s[k]}, v{xs[i]}, v{MK[k]}")
        wait_for(iw[i])
        mfma(accX, s, wr[i], i == 0)
    free.extend(wsl)
    issue_upto(early)
    a("v_cmp_gt_u32 vcc, 8, v6")
    for k in range(4): a(f"v_cndmask_b32 v{MK[k]}, 0, v{MK[k]}, vcc")
    a(f"ds_write_b128 v{vPW}, {R(accX)} offset:{L_QP}")
    a(f"s_lshl_b32 s{sT}, s{sW}, 4"); a(f"v_add_u32 v{vPW}, s{sT}, v{vPW}")
    a(f"s_bfe_u32 s{sT}, s{sW}, 0x10001"); a(f"s_lshl_b32 s{sT}, s{sT}, 12"); a(f"s_and_b32 s{sT2}, s{sW}, 1"); a(f"s_lshl_b32 s{sT2}, s{sT2}, 8")
    a(f"s_add_u32 s{sT}, s{sT}, s{sT2}")
    a("v_lshlrev_b32 v7, 2, v0"); a(f"v_add_u32 v7, s{sT}, v7")
    issue_upto(early + pre)
    barrier()
    t = partB
    for w in range(4): a(f"ds_read2st64_b32 v[{t[2*w]}:{t[2*w+1]}], v7 offset0:{L_QP//256 + 4*w} offset1:{L_QP//256 + 4*w+2}")
    issue_upto(early + pre + post)
    wait_for(itag)
    a(f"s_mov_b32 s{sTAG}, 0x9e3779b1")
    a(f"v_mul_lo_u32 v{vTAG}, v{vTAG}, s{sTAG}"); a(f"v_add_u32 v{vTAG}, 0x7f4a7c15, v{vTAG}")
    a(f"s_bfe_u32 s{sT}, s{sW}, 0x10001"); a(f"s_lshl_b32 s{sT}, s{sT}, 5"); a(f"s_add_u32 s{sT}, s{sT}, s{sJ}")
    a(f"s_lshl_b32 s{sT}, s{sT}, 1"); a(f"s_and_b32 s{sOFF}, s{sX}, 1"); a(f"s_add_u32 s{sT}, s{sT}, s{sOFF}")
    a(f"s_lshl_b32 s{sT}, s{sT}, 2"); a(f"s_lshr_b32 s{sOFF}, s{sX}, 1"); a(f"s_add_u32 s{sT}, s{sT}, s{sOFF}")
    a(f"s_lshl_b32 s{sT}, s{sT}, 10")
    a(f"s_lshl_b32 s{sT2}, s{sT2}, 1"); a(f"s_add_u32 s{sT}, s{sT}, s{sT2}"); a(f"s_add_u32 s{sT}, s{sT}, {WS_Q}")
    a(f"s_cmp_lt_u32 s{sW}, 4"); a(f"s_cselect_b32 s{sT}, s{sT}, {OOB}")
    a("v_lshlrev_b32 v7, 3, v0")
    a("s_waitcnt lgkmcnt(0)")
    tree(t, 8)
    a(f"v_mov_b32 v{t[1]}, v{vTAG}")
    if "noq" not in diag: last_store["i"] = vmem(f"buffer_store_dwordx2 v[{t[0]}:{t[1]}], v7, {SRD('ws')}, s{sT} offen sc1")
    a(f"s_lshl_b32 s{sWQ}, s{sB}, 5"); a(f"s_add_u32 s{sWQ}, s{sWQ}, s{sH}"); a(f"s_lshl_b32 s{sWQ}, s{sWQ}, 3")
    a(f"s_add_u32 s{sWQ}, s{sWQ}, s{sW}"); a(f"s_lshl_b32 s{sWQ}, s{sWQ}, 10"); a(f"s_add_u32 s{sWQ}, s{sWQ}, {WS_Q}")
    if "startprof" not in diag: stamp()
    if warm:
        for n, sb in (("vA", sKA), ("vB", sKB), ("woA", sWO), ("woB", sWO)):
            issue_upto(st["ip"])
            vmem(f"buffer_load_dword v{vDUM}, off, {SRD(n)}, s{sb}")
    issue_upto(qpos + dmin)
    eQ = ("q", 0); rQ = RING0 + 4 * slot[eQ]
    wait_for(vidx[eQ])
    a(f"s_mov_b32 s{sCNT}, 0")
    a.label("L_qchk")
    a(f"v_cmp_ne_u32 vcc, v{rQ+1}, v{vTAG}"); a(f"v_cmp_ne_u32 s[{sMY}:{sMY+1}], v{rQ+3}, v{vTAG}")
    a(f"s_or_b64 vcc, vcc, s[{sMY}:{sMY+1}]")
    a("s_cbranch_scc0 L_qok" if "noq" not in diag else "s_branch L_qok")
    a(qload(rQ))
    a(f"s_add_u32 s{sCNT}, s{sCNT}, 1")
    a(f"s_cmp_lt_u32 s{sCNT}, 0x20000")
    a("s_waitcnt vmcnt(0)")
    a("s_cbranch_scc1 L_qchk")
    a.label("L_qok")
    a(f"v_mov_b32 v{rQ+1}, v{rQ+2}")
    a("v_lshlrev_b32 v7, 3, v0"); a(f"s_lshl_b32 s{sT}, s{sW}, 9"); a(f"v_add_u32 v7, s{sT}, v7")
    a(f"ds_write_b64 v7, v[{rQ}:{rQ+1}] offset:{L_Q}")
    a("v_lshlrev_b32 v7, 5, v6"); a("v_lshl_add_u32 v7, v5, 3, v7")
    barrier()
    release(eQ)
    for w in range(4): a(f"ds_read_b64 v[{partB[2*w]}:{partB[2*w+1]}], v7 offset:{L_Q + (4 + w)*512}")
    for w in range(4): a(f"ds_read_b64 v[{partA[2*w]}:{partA[2*w+1]}], v7 offset:{L_Q + w*512}")
    st["tgt"] = float(st["ip"] - 1) + 1
    issue_upto(int(st["tgt"]))
    a("s_waitcnt lgkmcnt(0)")
    q_finish(partB, qB); q_finish(partA, qA)
    if "startprof" not in diag: stamp()

    steps = []
    ready = {"kB": True, "kA": True, "vA": False, "vB": False, "woA": False, "woB": False}
    pending = []; cnt = {n: 0 for n in ready}; tot = {"kB": 64, "vB": 64}
    def push(e):
        steps.append(("c", e)); cnt[e[0]] += 1
        n, i = e
        if n in ("kB", "kA") and i % 16 == 15: steps.append(("rs", n, i // 16))
        if sub and e == ("vB", a_span): ready["woA"] = True
        if cnt[n] != tot.get(n, 16): return
        if n == "kA": steps.append(("op", "maxA")); ready["vA"] = True
        if n in ("vA", "kB") and cnt["vA"] == 16 and cnt["kB"] == 64:
            steps.append(("op", "mid")); ready["vB"] = True; ready["woA"] = not sub

        if n == "woA": steps.append(("op", "yA"))
        if n == "vB": steps.append(("op", "oB")); ready["woB"] = True
        if n == "woB": steps.append(("op", "yB"))
    def drain():
        again = True
        while again:
            again = False
            for e in list(pending):
                if ready[e[0]]:
                    pending.remove(e); push(e); again = True; break
    for e in issue:
        if e[0] == "q": continue
        if ready[e[0]] and not any(p[0] == e[0] for p in pending):
            push(e); drain()
        else: pending.append(e)
    drain(); assert not pending

    YA = qA[0]; ML = qB; YD = partB[8:12]
    def y_exchange(lb, br, dst):
        a(f"s_lshl_b32 s{sRW}, s{sP}, 11"); a(f"s_add_u32 s{sRW}, s{sRW}, {WS_Y + br * 256 * 2048}")
        a(f"ds_write_b128 v{vYW}, {R(accX)} offset:{lb}")
        a(f"ds_write_b128 v{vYW}, {R(accH)} offset:{lb + 1024}")
        barrier()
        u = partB
        for w in range(4): a(f"ds_read2st64_b32 v[{u[2*w]}:{u[2*w+1]}], v{vY} offset0:{lb//256 + 16*w} offset1:{lb//256 + 16*w + 8}")
        if br == 0:
            t = partA
            a("v_mov_b32 v10, 0")
            for k in range(4): a(f"ds_read_b128 v[{t[4*k]}:{t[4*k+3]}], v10 offset:{L_LS + 16*k}")
            bump()
        a("s_waitcnt lgkmcnt(0)")
        tree(u, 8)
        a(f"v_add_u32 v{dst}, 0x800, v{u[0]}")
        a(f"v_bfi_b32 v{dst}, s{sTM}, v{vTAG}, v{dst}")
        if br == 0:
            tree(t[0:8], 8); tree(t[8:16], 8)
            a("v_cmp_gt_u32 vcc, 8, v0")
            a(f"v_cndmask_b32 v{ML[0]}, v{vMB}, v{vMA}, vcc"); a(f"v_cndmask_b32 v{ML[2]}, v{t[8]}, v{t[0]}, vcc")
            a(f"v_mov_b32 v{ML[1]}, v{vTAG}"); a(f"v_mov_b32 v{ML[3]}, v{vTAG}")
    def ml_store():
        if "noml" in diag: return
        a(f"s_lshl_b32 s{sT}, s{sP}, 7"); a(f"s_add_u32 s{sT}, s{sT}, {WS_ML}")
        a(f"s_cmp_eq_u32 s{sW}, 0"); a(f"s_cselect_b32 s{sT}, s{sT}, {OOB}")
        if mlfull:
            a("v_lshrrev_b32 v5, 3, v0"); a("v_lshlrev_b32 v5, 15, v5"); a("v_and_b32 v6, 7, v0"); a("v_lshl_add_u32 v5, v6, 4, v5")
            a(f"v_mov_b32 v6, {OOB}")
            a("v_cmp_gt_u32 vcc, 16, v0"); a("v_cndmask_b32 v5, v6, v5, vcc")
        else:
            a("v_lshlrev_b32 v5, 15, v0"); a(f"v_mov_b32 v6, {OOB}")
            a("v_cmp_gt_u32 vcc, 2, v0"); a("v_cndmask_b32 v5, v6, v5, vcc")
        last_store["i"] = vmem(f"buffer_store_dwordx4 {R(ML)}, v5, {SRD('ws')}, s{sT} offen sc1")
        st["tgt"] += 2; issue_upto(int(st["tgt"]))
    def y_store(br, src):
        if br == 0 and "noya" in diag: return
        last_store["i"] = vmem(f"buffer_store_dword v{src}, v{vY}, {SRD('ws')}, s{sRW} offen sc1")
    MLR = [partA[0:4], partA[4:8]]; vRM, vRY = partA[8], partA[9]
    sRM, sRY = sKA, sWQ
    mli = {}
    def ml_loads():
        for i in range(2):
            if "noml" in diag: mli[i] = 0; continue
            mli[i] = vmem(f"buffer_load_dwordx4 {R(MLR[i])}, v{vRM}, {SRD('ws')}, s{sRM} offen offset:{1024 * i} sc1")
    def red_setup():
        if redsel == 0: a(f"s_mov_b32 s{sRO}, s2")
        else:
            a(f"s_and_b32 s{sRO}, s2, 31"); a(f"s_bfe_u32 s{sT}, s2, 0x10006"); a(f"s_lshl_b32 s{sT}, s{sT}, 5"); a(f"s_or_b32 s{sRO}, s{sRO}, s{sT}")
            a(f"s_and_b32 s{sT}, s{sJ}, 0x15"); a(f"s_bcnt1_i32_b32 s{sT}, s{sT}"); a(f"s_and_b32 s{sT}, s{sT}, 1"); a(f"s_lshl_b32 s{sT}, s{sT}, 6")
            a(f"s_or_b32 s{sRO}, s{sRO}, s{sT}")
            a(f"s_bfe_u32 s{sT}, s{sJ}, 0x10004"); a(f"s_xor_b32 s{sT}, s{sT}, {redsel - 1}"); a(f"s_lshl_b32 s{sT}, s{sT}, 6")
            a(f"s_or_b32 s{sRO}, s{sRO}, s{sT}")
        a("v_lshrrev_b32 v5, 3, v0")
        a(f"s_lshl_b32 s{sT}, s{sW}, 4"); a(f"v_add_u32 v5, s{sT}, v5")
        a("v_and_b32 v6, 7, v0"); a("v_lshlrev_b32 v6, 4, v6")
        a(f"v_lshl_add_u32 v{vRY}, v5, 11, v6")
        a(f"v_lshlrev_b32 v{vRM}, 7, v5")
        a(f"s_lshr_b32 s{sT}, s{sRO}, 4")
        a(f"s_lshl_b32 s{sRY}, s{sT}, 18"); a(f"s_and_b32 s{sT2}, s{sRO}, 15"); a(f"s_lshl_b32 s{sT2}, s{sT2}, 7")
        a(f"s_add_u32 s{sRY}, s{sRY}, s{sT2}")
        a(f"s_lshl_b32 s{sRM}, s{sT}, 14"); a(f"s_add_u32 s{sRM}, s{sRM}, {WS_ML}")
        a(f"s_cmp_lt_u32 s{sRO}, 64"); a(f"s_cselect_b32 s{sRM}, s{sRM}, {OOB}")
        if warmout:
            a(f"s_cselect_b32 s{sT}, 0, {OOB}")
            vmem(f"buffer_load_dword v{vDUM}, off, {SRD('out')}, s{sT}")
        if not mllate: ml_loads()
        else: mli[0] = mli[1] = 0
    apub = {"have": False, "done": False}
    nxt = {}

    inmain["v"] = True; inmain0["v"] = True
    for s in steps:
        if s[0] == "c":
            e = s[1]; n, i = e
            if not (sub and n in ("woA", "woB")):
                st["tgt"] = max(pos[e] + dmin, st["tgt"] + decay)
                issue_upto(int(st["tgt"]))
            if wtail and Fend and n == "vB" and st["ip"] > pos[("vB", 63)]:
                st["tgt"] = max(st["tgt"], pos[e] + Fend - 1); issue_upto(int(st["tgt"]))
            if e == ("vB", 63):
                wait_for(vidx[e])
                while st["ip"] < len(issue): issue_one(False)
            assert e in slot, ("deadlock", e)
            if apub["have"] and not mli and st["ip"] >= len(issue) - mlpos: red_setup()
            if apub["have"] and not apub["done"] and st["ip"] >= len(issue) - apos:
                if mllate: ml_store()
                y_store(0, YA); apub["done"] = True
            if n == "kB": klike(e, qB, partB[i % 16])
            elif n == "kA": klike(e, qA, partA[i])
            elif n == "vA": vlike(e, accX, PA, i, i == 0)
            elif n == "vB": vlike(e, accB, PB[i // 16], i % 16, i == 0)
            elif sub and n in ("woA", "woB"):
                if i == 15:
                    if n == "woA":
                        st["tgt"] += subburst; issue_upto(int(st["tgt"]))
                    wait_for(vidx[e])
                    a(f"s_call_b64 s[{sRET}:{sRET+1}], L_proj")
                    a.hist = []
                    for k in range(16): release((n, k))
            else: wlike(e, i)
        elif s[0] == "rs":
            if rsb:
                st["tgt"] += rsb; issue_upto(int(st["tgt"]))
            if s[1] == "kB": reduce_scatter16(partB, PB[s[2]])
            else: reduce_scatter16(partA, PA)
        else:
            op = s[1]
            if op == "maxA":
                max_write(vMA, [PA], 0)
                barrier()
                max_read(partA, 0)
                bump()
                a("s_waitcnt lgkmcnt(0)")
                max_finish(vMA, partA, [PA], 0)
            elif op == "mid":
                max_write(vMB, PB, 32)
                part_write(accX, L_OA)
                barrier()
                max_read(partA, 32)
                if not sub: o_read(L_OA, partB)
                bump()
                a("s_waitcnt lgkmcnt(0)")
                max_finish(vMB, partA, PB, 32)
                if not sub: o_finish(partB)
                stamp()
            elif op == "yA":
                if sub:
                    a(f"v_mov_b32 v{YA[0]}, v{YD[0]}"); a(f"v_mov_b32 v{YA[2]}, v{YD[2]}")
                    a(f"v_mov_b32 v{YA[1]}, v{vTAG}"); a(f"v_mov_b32 v{YA[3]}, v{vTAG}")
                    a(f"s_lshl_b32 s{sRW}, s{sP}, 12")
                    t = partA
                    a("v_mov_b32 v10, 0")
                    for k in range(4): a(f"ds_read_b128 v[{t[4*k]}:{t[4*k+3]}], v10 offset:{L_LS + 16*k}")
                    a("s_waitcnt lgkmcnt(0)")
                    tree(t[0:8], 8); tree(t[8:16], 8)
                    a("v_cmp_eq_u32 vcc, 0, v0")
                    a(f"v_cndmask_b32 v{ML[0]}, v{vMB}, v{vMA}, vcc"); a(f"v_cndmask_b32 v{ML[2]}, v{t[8]}, v{t[0]}, vcc")
                    a(f"v_mov_b32 v{ML[1]}, v{vTAG}"); a(f"v_mov_b32 v{ML[3]}, v{vTAG}")
                else: y_exchange(L_YA, 0, YA)
                if not mllate: ml_store()
                apub["have"] = True
            elif op == "oB":
                stamp()
                part_write(accB, L_OA if sub else L_OB)
                if sub:
                    a(f"s_add_u32 s{sRW}, s{sRW}, {256 * 4096}")
                    stamp()
                else:
                    barrier()
                    stamp()
                    o_read(L_OB, partB)
                    a("s_waitcnt lgkmcnt(0)")
                    o_finish(partB)
            elif op == "yB":
                if sub: y_store(1, YD)
                else:
                    y_exchange(L_YB, 1, accB[0]); y_store(1, accB[0])
                stamp()
    inmain["v"] = False
    assert st["ip"] == len(issue) and apub["done"]

    if "nored" in diag: a("s_branch L_fin")
    a(f"s_cmp_ge_u32 s{sRO}, 64")
    a("s_cbranch_scc1 L_fin")
    YF = list(range(44, 52)); BUF = [RING0 + 8 * k for k in range(nb)]
    a(f"s_add_u32 s{sOFF}, s{sRY}, {8 * 2048}")
    def poll(k):
        a(f"buffer_load_dwordx4 v[{BUF[k]}:{BUF[k]+3}], v{vRY}, {SRD('ws')}, s{sRY} offen sc1")
        a(f"buffer_load_dwordx4 v[{BUF[k]+4}:{BUF[k]+7}], v{vRY}, {SRD('ws')}, s{sOFF} offen sc1")
    if mllate:
        for i in range(2): a(f"buffer_load_dwordx4 {R(MLR[i])}, v{vRM}, {SRD('ws')}, s{sRM} offen offset:{1024 * i} sc1")
    poll(0)
    a(f"s_mov_b32 s{sCNT}, 0")
    if mllate: a("s_waitcnt vmcnt(2)")
    def mlcmp():
        a(f"v_xor_b32 v7, v{MLR[0][1]}, v{vTAG}"); a(f"v_xor_b32 v8, v{MLR[0][3]}, v{vTAG}")
        a(f"v_xor_b32 v9, v{MLR[1][1]}, v{vTAG}"); a(f"v_xor_b32 v10, v{MLR[1][3]}, v{vTAG}")
        a("v_or3_b32 v7, v7, v8, v9"); a("v_or_b32 v7, v7, v10")
        a("v_cmp_ne_u32 vcc, 0, v7"); a("s_cmp_lg_u64 vcc, 0")
    assert mli[1] < done["upto"]
    mlcmp()
    a("s_cbranch_scc0 L_mlok")
    a.label("L_mlchk")
    for i in range(2): a(f"buffer_load_dwordx4 {R(MLR[i])}, v{vRM}, {SRD('ws')}, s{sRM} offen offset:{1024 * i} sc1")
    a(f"s_add_u32 s{sCNT}, s{sCNT}, 1")
    a("s_waitcnt vmcnt(0)")
    a(f"s_cmp_ge_u32 s{sCNT}, 0x20000")
    a("s_cbranch_scc1 L_mlre")
    mlcmp()
    a("s_cbranch_scc1 L_mlchk")
    a.label("L_mlre")
    poll(0)
    a.label("L_mlok")
    W = [18, 19]; T = [7, 8]; U = [9, 10]
    for i in range(2): a(f"v_max_f32_dpp v{T[i]}, v{MLR[i][0]}, v{MLR[i][0]} row_ror:8 {DPPF}")
    for i in range(2): a(f"v_mov_b32 v{U[i]}, v{T[i]}")
    for i in range(2): a(f"v_permlane16_swap_b32 v{T[i]}, v{U[i]}")
    for i in range(2): a(f"v_max_f32 v{T[i]}, v{T[i]}, v{U[i]}")
    for i in range(2): a(f"v_sub_f32 v{T[i]}, v{MLR[i][0]}, v{T[i]}")
    for i in range(2): a(f"v_mul_f32 v{T[i]}, s{sL2E}, v{T[i]}")
    for i in range(2): a(f"v_exp_f32 v{W[i]}, v{T[i]}")
    for i in range(2): a(f"v_mul_f32 v{T[i]}, v{W[i]}, v{MLR[i][2]}")
    for i in range(2): a(f"v_add_f32_dpp v{T[i]}, v{T[i]}, v{T[i]} row_ror:8 {DPPF}")
    for i in range(2): a(f"v_mov_b32 v{U[i]}, v{T[i]}")
    for i in range(2): a(f"v_permlane16_swap_b32 v{T[i]}, v{U[i]}")
    for i in range(2): a(f"v_add_f32 v{T[i]}, v{T[i]}, v{U[i]}")
    for i in range(2): a(f"v_rcp_f32 v{T[i]}, v{T[i]}")
    for i in range(2): a(f"v_mul_f32 v{W[i]}, v{W[i]}, v{T[i]}")
    a("v_and_b32 v11, 7, v0"); a("v_lshlrev_b32 v11, 2, v11")
    a("v_bfe_u32 v7, v0, 3, 1"); a("v_lshl_add_u32 v11, v7, 1, v11")
    a("v_bfe_u32 v7, v0, 4, 1"); a("v_add_u32 v11, v7, v11"); a("v_lshlrev_b32 v11, 2, v11")
    a(f"s_lshl_b32 s{sT2}, s{sW}, 7"); a(f"v_add_u32 v11, s{sT2}, v11")
    a("v_and_b32 v16, 15, v0"); a("v_lshlrev_b32 v17, 3, v16")
    a("v_and_b32 v7, 1, v0"); a("v_lshlrev_b32 v7, 2, v7"); a("v_lshrrev_b32 v16, 1, v16"); a("v_lshl_add_u32 v16, v16, 4, v7")
    a(f"s_bfe_u32 s{sKB}, s{sRO}, 0x10004"); a(f"s_lshl_b32 s{sKB}, s{sKB}, 11")
    a(f"s_lshr_b32 s{sT2}, s{sRO}, 5"); a(f"s_lshl_b32 s{sT2}, s{sT2}, 10"); a(f"s_add_u32 s{sKB}, s{sKB}, s{sT2}")
    a(f"s_and_b32 s{sT2}, s{sRO}, 7"); a(f"s_lshl_b32 s{sT2}, s{sT2}, 7"); a(f"s_add_u32 s{sKB}, s{sKB}, s{sT2}")
    a(f"s_and_b32 s{sT2}, s{sRO}, 8"); a(f"s_add_u32 s{sKB}, s{sKB}, s{sT2}")
    a(f"s_mov_b64 s[{sMY}:{sMY+1}], -1")
    a(f"s_not_b32 s{sWO}, s{sTM}")
    a(f"v_and_b32 v20, s{sTM}, v{vTAG}")
    for k in range(1, nb):
        if gap: a(f"s_sleep {gap if k > 1 else max(gap - 4, 1)}")
        poll(k)
    a.label("L_poll")
    for k in range(nb):
        B = BUF[k]
        a(f"s_waitcnt vmcnt({2 * (nb - 1)})")
        a(f"v_or3_b32 v7, v{B}, v{B+1}, v{B+2}"); a(f"v_or3_b32 v7, v7, v{B+3}, v{B+4}"); a(f"v_or3_b32 v7, v7, v{B+5}, v{B+6}")
        a(f"v_bitop3_b32 v8, v{B}, v{B+1}, v{B+2} bitop3:0x80"); a(f"v_bitop3_b32 v8, v8, v{B+3}, v{B+4} bitop3:0x80"); a(f"v_bitop3_b32 v8, v8, v{B+5}, v{B+6} bitop3:0x80")
        a(f"v_or_b32 v7, v7, v{B+7}"); a(f"v_and_b32 v8, v8, v{B+7}")
        a(f"v_and_b32 v7, s{sTM}, v7"); a(f"v_and_b32 v8, s{sTM}, v8")
        a("v_cmp_eq_u32 vcc, v7, v20"); a(f"v_cmp_eq_u32 s[{sMM}:{sMM+1}], v8, v20")
        a(f"s_and_b64 vcc, vcc, s[{sMM}:{sMM+1}]")
        a(f"s_and_b64 exec, vcc, s[{sMY}:{sMY+1}]")
        for j in range(8): a(f"v_and_b32 v{YF[j]}, s{sWO}, v{B+j}")
        a(f"s_andn2_b64 s[{sMY}:{sMY+1}], s[{sMY}:{sMY+1}], vcc")
        a("s_cbranch_scc0 L_poll_ok")
        a(f"s_mov_b64 exec, s[{sMY}:{sMY+1}]")
        poll(k)
        a("s_mov_b64 exec, -1")
    a(f"s_add_u32 s{sCNT}, s{sCNT}, 1")
    a(f"s_cmp_lt_u32 s{sCNT}, 0x20000")
    a("s_cbranch_scc1 L_poll")
    a.label("L_poll_ok")
    a("s_mov_b64 exec, -1")
    if "redprof" in diag:
        a(f"s_memrealtime s[{sST}:{sST+1}]"); a("s_waitcnt lgkmcnt(0)")
        a(f"v_writelane_b32 v{vSTAMP}, s{sST}, 1")
        a(f"v_readlane_b32 s{sT2}, v{vSTAMP}, 0"); a(f"s_add_u32 s{sT2}, s{sT2}, s{sCNT}"); a(f"v_writelane_b32 v{vSTAMP}, s{sT2}, 2")
    y = YF
    for k in range(4): a(f"v_mul_f32 v{y[k]}, v{W[0]}, v{y[k]}")
    for k in range(4): a(f"v_fmac_f32 v{y[k]}, v{W[1]}, v{y[k+4]}")
    for k in range(2): a(f"v_add_f32_dpp v{y[k]}, v{y[k]}, v{y[k]} row_ror:8 row_mask:0xf bank_mask:0x3")
    for k in range(2): a(f"v_add_f32_dpp v{y[k]}, v{y[k+2]}, v{y[k+2]} row_ror:8 row_mask:0xf bank_mask:0xc")
    a(f"v_permlane16_swap_b32 v{y[0]}, v{y[1]}")
    a(f"v_add_f32 v{y[0]}, v{y[0]}, v{y[1]}")
    a(f"v_mov_b32 v{y[1]}, v{y[0]}")
    a(f"v_permlane32_swap_b32 v{y[0]}, v{y[1]}")
    a(f"v_add_f32 v{y[0]}, v{y[0]}, v{y[1]}")
    a(f"ds_write_b32 v11, v{y[0]} offset:{L_RED}")
    barrier()
    a(f"s_cmp_lg_u32 s{sW}, 0")
    a("s_cbranch_scc1 L_fin")
    t = partA
    for w in range(8): a(f"ds_read_b64 v[{t[2*w]}:{t[2*w+1]}], v17 offset:{L_RED + w*128}")
    a("s_waitcnt lgkmcnt(0)")
    tree(t, 16, 2)
    a(f"v_cvt_pk_bf16_f32 v7, v{t[0]}, v{t[1]}")
    a("s_mov_b64 exec, 0xffff")
    a(f"buffer_store_dword v7, v16, {SRD('out')}, s{sKB} offen {outpol}")
    a(f"s_cmp_lg_u32 s{sRO}, 32")
    a("s_cbranch_scc1 L_fin")
    a("s_mov_b64 exec, 1")
    a(f"s_mov_b32 s{sT}, {hex(WS_EP)}")
    a(f"buffer_store_dword v{vTAG}, v16, {SRD('ws')}, s{sT} offen sc1")
    a.label("L_fin")
    if "pad" in diag:
        if "padx" in diag:
            a("s_getreg_b32 s80, hwreg(HW_REG_XCC_ID)"); a("s_and_b32 s80, s80, 15"); a("s_and_b32 s81, s2, 7")
            a("s_cmp_eq_u32 s80, s81"); a("s_cbranch_scc1 L_padend")
        a.label("L_pad")
        a("s_memrealtime s[80:81]"); a("s_waitcnt lgkmcnt(0)")
        a("s_sub_u32 s80, s80, s92"); a("s_cmp_lt_u32 s80, 10000"); a("s_cbranch_scc1 L_pad")
        a.label("L_padend")
    if stamps:
        a("s_mov_b64 exec, -1")
        stamp()
        if "tailprof" in diag:
            a("s_memtime s[88:89]"); a("s_waitcnt lgkmcnt(0)")
            for k in range(7): a(f"v_writelane_b32 v{vSTAMP}, s{76 + 2*k}, {k}")
            a(f"v_writelane_b32 v{vSTAMP}, s90, 7")
        assert stampn["n"] == 8, stampn
        a(f"s_lshl_b32 s{sT}, s2, 3"); a(f"s_add_u32 s{sT}, s{sT}, s{sW}"); a(f"s_lshl_b32 s{sT}, s{sT}, 5")
        a(f"s_add_u32 s{sT}, s{sT}, {WS_ST}")
        a("v_lshlrev_b32 v5, 2, v0")
        a("s_mov_b64 exec, 0xff")
        a(f"buffer_store_dword v{vSTAMP}, v5, {SRD('ws')}, s{sT} offen")
        if "dbgst" in diag:
            a("s_load_dwordx2 s[76:77], s[0:1], 88"); a("s_mov_b32 s78, 256"); a("s_mov_b32 s79, 0x20000")
            a(f"s_cmp_eq_u32 s2, 64"); a(f"s_cselect_b32 s{sT}, 0, {OOB}")
            a(f"s_cmp_eq_u32 s2, 205"); a(f"s_cselect_b32 s{sT}, 32, s{sT}")
            a(f"s_cmp_eq_u32 s{sW}, 0"); a(f"s_cselect_b32 s{sT}, s{sT}, {OOB}")
            a(f"v_readlane_b32 s{sT2}, v{vSTAMP}, 0")
            a(f"v_subrev_u32 v{vSTAMP}, s{sT2}, v{vSTAMP}")
            a("s_waitcnt lgkmcnt(0)")
            a(f"buffer_store_dword v{vSTAMP}, v5, s[76:79], s{sT} offen")
    a.label("L_end")
    a("s_endpgm")
    if sub:
        a.label("L_proj")
        a.hist = []
        tp = "tailprof" in diag
        if tp: a("s_memtime s[76:77]")
        barrier()
        if tp: a("s_memtime s[78:79]")
        o_read(L_OA, partB)
        a(f"v_mov_b32 v{YD[1]}, v{vTAG}"); a(f"v_mov_b32 v{YD[3]}, v{vTAG}")
        a("s_waitcnt lgkmcnt(0)")
        if tp: a("s_memtime s[80:81]")
        o_finish(partB)
        selk["k"] = 0
        cur = sel_bcast(OX, 0)
        for i in range(16):
            nx = sel_bcast(OX, i + 1) if i < 15 else None
            mfma(accX, cur, RING0 + 4 * (WB0 + i), i == 0); cur = nx
        if tp: a("s_memtime s[82:83]")
        part_write(accX, L_YA)
        barrier()
        if tp: a("s_memtime s[84:85]")
        a(f"ds_read_b64 v[6:7], v{vYR} offset:{L_YA}")
        a(f"ds_read_b64 v[8:9], v{vYR} offset:{L_YA + 2048}")
        a("s_waitcnt lgkmcnt(0)")
        a(f"v_add_f32 v{YD[0]}, v6, v8"); a(f"v_add_f32 v{YD[2]}, v7, v9")
        if tp: a("s_memtime s[86:87]")
        a(f"s_setpc_b64 s[{sRET}:{sRET+1}]")
    a.raw('.section .rodata,"a"'); a.raw(".p2align 6"); a.raw(f".amdhsa_kernel {NAME}")
    a.raw("  .amdhsa_next_free_vgpr 256"); a.raw(f"  .amdhsa_next_free_sgpr {NSGPR}"); a.raw("  .amdhsa_accum_offset 256")
    a.raw("  .amdhsa_group_segment_fixed_size 0"); a.raw("  .amdhsa_kernarg_size 104"); a.raw("  .amdhsa_user_sgpr_count 2")
    a.raw("  .amdhsa_user_sgpr_kernarg_segment_ptr 1"); a.raw("  .amdhsa_system_sgpr_workgroup_id_x 1"); a.raw(".end_amdhsa_kernel")
    return a.text()

if __name__ == "__main__":
    out = sys.argv[1]
    kw = json.loads(sys.argv[2]) if len(sys.argv) > 2 else {}
    open(out, "w").write(gen(**kw))
```

```python
import sys, json
from asmlib import Asm

NAME = "concat_heads__sliding_block_cached__mha_block_cached__decode_kernel"
HEADER = open("concat_heads__sliding_block_cached__mha_block_cached__decode.s.ref").read().split("; Override launch")[0]
DPPF = "row_mask:0xf bank_mask:0xf"

WS_Y = 0
WS_ML = 0x100000
WS_Q = 0x120000
WS_EP = 0x1b0000
WS_ST = 0x340000
WS_SIZE = 0x400000
OOB = 0x40000000
DOC = '''; Decode attention, two branches (A: GQA sliding window, B: MHA), one launch, 256 workgroups x 8 waves (one per CU).
;  1. q projection is shared: every wg multiplies a 128x128 tile of wq (both batches) and hands the partial over
;  All loads run as one stream per wave with a bounded window; generated by a script (static vmcnt counts).
'''

def gen(F=5, dmin=5, burst=1, stamps=False, pol="nt", shpol="", qpos=22, decay=0.5, rsh=2, diag="",
        relax=4, slp=8, slpthr=16, early=1, apos=0, sub=False, subburst=3, warmred=True, a_span=27, b_start=36, pre=6, post=2, wb=(16,12,13), ib=(14,11,15,10,17,18), preb=0, rota=(1,2,4,3), rotw=(2,0,1,3), wba=(16,12,13), iba=(14,11,15,10), nb=2, gap=0, mlpos=12, warm=False, rsb=0, redsel=0, sync=6, mlfull=True, mllate=True, warmout=False, sync0=6, wtail=0, Fend=None, outpol='sc1', rb=(1,2,4,3,6,7), earlypoll=True):
    if dmin is None: dmin = F - 1
    a = Asm()
    names = ["xA", "kA", "vA", "wqA", "woA", "xB", "kB", "vB", "wqB", "woB", "out", "dbg", "ws"]
    sizes = {"x": 2048, "wq": 4 << 20, "kA": 32 << 20, "vA": 32 << 20, "woA": 4 << 20,
             "kB": 128 << 20, "vB": 128 << 20, "woB": 4 << 20, "out": 4096, "ws": WS_SIZE}
    srd = {n: 8 + 4 * i for i, n in enumerate(sizes)}
    def SRD(n): return f"s[{srd[n]}:{srd[n]+3}]"
    sW, sH, sB, sS, sT = 3, 4, 5, 6, 7
    sX, sJ, sT2, sKB, sKA, sWQ, sWO, sOFF, sP, sTAG, sSC, sL2E, sCNT, sRW = range(48, 62)
    sM1, sM0, sST, sMY, sMM = 62, 64, 66, 68, 70
    sRET = 72; sTM = 74; sRO = 75; sRY2 = 76
    NSGPR = 96 if (stamps or diag) else 80
    vL16, vWo, vPW, vOR = 1, 2, 3, 4
    vSTAMP, vMA, vMB, vTAG = 12, 13, 14, 15
    qB = list(range(16, 20)); qA = list(range(20, 24))
    accB = list(range(24, 28)); accX = list(range(28, 32))
    MK = list(range(32, 36))
    SEL = [list(range(36, 40)), list(range(40, 44))]
    partB = list(range(44, 60)); partA = list(range(60, 76))
    PB = list(range(76, 80)); PA = 80; OX = 81; vY = 82; vYR = 83; vDUM = 84; vYW = 85; S2 = [86, 87]; M2 = [88, 89]
    accH = partA[12:16]
    RING0 = 92
    NS = (256 - RING0) // 4
    L_QP = 0
    L_Q = 8192; L_OA = L_OB = 12288
    L_YA = L_YB = 16896 // 256 * 256 + 256
    L_MX = L_YA + 16384; L_LS = L_MX + 64; L_RED = L_MX + 256
    LDS = L_RED + 1024

    a.raw(HEADER.rstrip("\n"))
    a.raw(f"; @launch grid=(256,1,1) block=(512,1,1) lds={LDS}")
    a.raw(DOC.rstrip("\n"))
    a.raw('.amdgcn_target "amdgcn-amd-amdhsa--gfx950"')
    a.raw(".text"); a.raw(f".globl {NAME}"); a.raw(".p2align 8"); a.raw(f".type {NAME},@function")
    a.label(NAME)
    a("s_cmp_ge_u32 s2, 256")
    a("s_cbranch_scc1 L_end")
    a(f"s_and_b32 s{sT}, s2, 1"); a(f"s_mul_i32 s{sT}, s{sT}, 40"); a(f"s_add_u32 s{sT2}, s{sT}, 24")
    a(f"s_load_dwordx2 s[{srd['wq']}:{srd['wq']+1}], s[0:1], s{sT2}")
    a(f"s_load_dwordx2 s[{srd['x']}:{srd['x']+1}], s[0:1], s{sT}")
    for n in ["kB", "ws", "kA"]:
        a(f"s_load_dwordx2 s[{srd[n]}:{srd[n]+1}], s[0:1], {8 * names.index(n)}")
    if stamps: a(f"s_memrealtime s[{sST}:{sST+1}]")
    if "tailprof" in diag: a("s_memtime s[90:91]")
    if "pad" in diag: a("s_memrealtime s[92:93]")
    stampn = {"n": 1}
    def stamp():
        if not stamps: return
        a(f"s_memrealtime s[{sST}:{sST+1}]"); a("s_waitcnt lgkmcnt(0)")
        a(f"v_writelane_b32 v{vSTAMP}, s{sST}, {stampn['n']}"); stampn["n"] += 1
    def srdw(n):
        a(f"s_mov_b32 s{srd[n]+2}, {hex(sizes[n])}"); a(f"s_mov_b32 s{srd[n]+3}, 0x20000")
    a("v_lshrrev_b32 v1, 6, v0")
    a("v_and_b32 v0, 63, v0")
    a(f"v_readfirstlane_b32 s{sW}, v1")
    srdw("wq"); srdw("x")
    a("v_lshrrev_b32 v5, 4, v0"); a("v_and_b32 v6, 15, v0")
    a("v_lshlrev_b32 v7, 4, v6")
    a("v_lshl_add_u32 v9, v5, 15, v7")
    a("v_bfe_u32 v8, v0, 3, 1"); a("v_lshlrev_b32 v8, 10, v8"); a("v_lshl_add_u32 v8, v5, 3, v8")
    a(f"s_lshr_b32 s{sJ}, s2, 3")
    a(f"s_and_b32 s{sT}, s2, 6"); a(f"s_lshl_b32 s{sT}, s{sT}, 2"); a(f"s_add_u32 s{sT}, s{sT}, s{sW}")
    a(f"s_lshl_b32 s{sRW}, s{sT}, 5")
    a(f"s_lshl_b32 s{sWQ}, s{sT}, 17"); a(f"s_lshl_b32 s{sT2}, s{sJ}, 8"); a(f"s_add_u32 s{sWQ}, s{sWQ}, s{sT2}")
    a("s_waitcnt lgkmcnt(0)")
    if stamps: a(f"v_writelane_b32 v{vSTAMP}, s{sST}, 0")
    if "startprof" in diag: stamp()

    vm = {"n": 0}; done = {"upto": 0}; last_store = {"i": -100}
    def vmem(text):
        a(text); vm["n"] += 1; return vm["n"] - 1
    def wait_for(idx):
        if idx < done["upto"]: return
        n = vm["n"] - 1 - idx
        assert n <= 63
        a(f"s_waitcnt vmcnt({n})"); done["upto"] = idx + 1
    def limit(f):
        tgt = vm["n"] - f
        if tgt >= last_store["i"] and vm["n"] - last_store["i"] <= f + relax - 1: tgt = last_store["i"] - 1
        if tgt >= 0: wait_for(tgt)

    free = list(range(NS))
    wsl = [free.pop(0) for _ in range(4)]
    wr = [RING0 + 4 * s for s in wsl]
    ix = vmem(f"buffer_load_dwordx2 v[10:11], v8, {SRD('x')}, s{sRW} offen")
    iw = []
    for i in range(4):
        if i: a(f"s_add_u32 s{sOFF}, s{sWQ}, {i * 8192}")
        iw.append(vmem(f"buffer_load_dwordx4 v[{wr[i]}:{wr[i]+3}], v9, {SRD('wq')}, s{sOFF if i else sWQ} offen {pol}"))

    srdw("kB")
    a(f"v_lshlrev_b32 v{vL16}, 4, v0")
    a(f"s_and_b32 s{sX}, s2, 7")
    a(f"s_lshr_b32 s{sH}, s{sJ}, 3"); a(f"s_lshl_b32 s{sT}, s{sX}, 2"); a(f"s_add_u32 s{sH}, s{sH}, s{sT}")
    a(f"s_bfe_u32 s{sB}, s{sJ}, 0x10002"); a(f"s_and_b32 s{sS}, s{sJ}, 3")
    a(f"s_lshl_b32 s{sP}, s{sB}, 5"); a(f"s_add_u32 s{sP}, s{sP}, s{sH}")
    a(f"s_lshl_b32 s{sP}, s{sP}, 2"); a(f"s_add_u32 s{sP}, s{sP}, s{sS}")
    def scatter(dst, pairs, first=False):
        for reg, src, bit in pairs:
            a(f"s_bfe_u32 s{sT}, s{reg}, {hex(0x10000 | src)}")
            if first: a(f"s_lshl_b32 s{dst}, s{sT}, {bit}"); first = False
            else: a(f"s_lshl_b32 s{sT}, s{sT}, {bit}"); a(f"s_or_b32 s{dst}, s{dst}, s{sT}")
    pb = [(sW, 2, wb[0]), (sW, 0, wb[1]), (sW, 1, wb[2])] + [(2, (rb[k] if rb else k + rsh), d) for k, d in enumerate(ib)]
    pa = [(sW, 2, wba[0]), (sW, 0, wba[1]), (sW, 1, wba[2])] + [(2, sr, d) for sr, d in zip(rota, iba) if sr is not None and sr >= 0]
    assert all(sr <= 5 for r_, sr, d in pa[3:])
    common = [p for p in pb if p in pa]
    scatter(sKA, common, True)
    a(f"s_lshl_b32 s{sKB}, s{sP}, 19"); a(f"s_or_b32 s{sKB}, s{sKB}, s{sKA}")
    scatter(sKB, [p for p in pb if p not in common])
    def late_setup():
        scatter(sKA, [p for p in pa if p not in common])
        a(f"s_lshl_b32 s{sT}, s{sB}, 3"); a(f"s_add_u32 s{sT}, s{sT}, s{sX}")
        a(f"s_lshl_b32 s{sT}, s{sT}, 4"); a(f"s_add_u32 s{sT}, s{sT}, s{sS}"); a(f"s_add_u32 s{sT}, s{sT}, 12")
        a(f"s_lshl_b32 s{sT}, s{sT}, 17"); a(f"s_or_b32 s{sKA}, s{sKA}, s{sT}")
        for n in srd:
            if n not in ("wq", "x", "kB"): srdw(n)
        a(f"s_mov_b32 s{sCNT}, {hex(WS_EP)}")

    P = [("kB", i) for i in range(64)] + [("vB", i) for i in range(64)]
    issue = []
    after = {}
    for i in range(16):
        after.setdefault(2 * i, []).append(("kA", i))
        after.setdefault(32 + 2 * i, []).append(("vA", i))
        if sub:
            after.setdefault(64 + (i * a_span) // 16, []).append(("woA", i))
            after.setdefault(64 + b_start + (i * (63 - b_start)) // 16, []).append(("woB", i))
        else:
            after.setdefault(64 + 2 * i, []).append(("woA", i))
            nw = 16 - wtail
            after.setdefault(96 + (i * 32) // nw if i < nw else 127, []).append(("woB", i))
    for i, e in enumerate(P):
        issue.append(e); issue += after.get(i, [])
    assert wtail or issue[-1][0] == "vB"
    issue.insert(qpos, ("q", 0))
    pos = {e: i for i, e in enumerate(issue)}
    slot = {}; vidx = {}; lastbar = {"ip": 0}; inmain0 = {"v": False}
    st = {"ip": 0, "tgt": 0.0}
    def qload(r):
        return f"buffer_load_dwordx4 v[{r}:{r+3}], v{vL16}, {SRD('ws')}, s{sWQ} offen sc1"
    WB0 = NS - 16
    def pick(n, i):
        if sub:
            if n in ("woA", "woB"):
                return WB0 + i if (WB0 + i) in free else None
            cand = [s for s in free if s < WB0 or st["ip"] < 56]
            return cand[0] if cand else None
        return free[0] if free else None
    def issue_one(lim=True):
        e = issue[st["ip"]]; n, i = e
        s = pick(n, i); free.remove(s); slot[e] = s
        r = RING0 + 4 * s
        if n == "q":
            if lim: limit(F)
            vidx[e] = vmem(qload(r))
        else:
            if n in ("kB", "vB"): base, off, va, pl = sKB, sum(((i >> k) & 1) << b for k, b in enumerate(ib)), vL16, pol
            elif n in ("kA", "vA"): base, off, va, pl = sKA, sum(((i >> k) & 1) << b for k, b in enumerate(iba)), vL16, shpol
            else: base, off, va, pl = sWO, i * 1024, vL16, shpol
            if off:
                a(f"s_xor_b32 s{sOFF}, s{base}, {off}"); so = sOFF
            else: so = base
            if lim: limit(Fend if (Fend and n == "woB" and i >= 16 - wtail) else F)
            vidx[e] = vmem(f"buffer_load_dwordx4 v[{r}:{r+3}], v{va}, {SRD(n)}, s{so} offen {pl}")
        st["ip"] += 1
        per = sync if inmain0["v"] else sync0
        if per and st["ip"] - lastbar["ip"] >= per and st["ip"] < len(issue) - 2 - wtail:
            a("s_barrier"); lastbar["ip"] = st["ip"]
    def issue_upto(t):
        while st["ip"] <= t and st["ip"] < len(issue) and pick(*issue[st["ip"]]) is not None:
            issue_one()
    def release(e): free.append(slot.pop(e))
    issue_one(False)
    late_setup()
    for _ in range(early - 1): issue_one(False)
    itag = vmem(f"buffer_load_dword v{vTAG}, off, {SRD('ws')}, s{sCNT} sc1")
    for n in ["vA", "vB", "woA", "woB", "out"]:
        a(f"s_load_dwordx2 s[{srd[n]}:{srd[n]+1}], s[0:1], {8 * names.index(n)}")

    selk = {"k": 0}
    def R(regs): return f"v[{regs[0]}:{regs[-1]}]"
    def sel_bcast(p, lane):
        s = SEL[selk["k"]]; selk["k"] ^= 1
        for k in range(4): a(f"v_and_b32_dpp v{s[k]}, v{p}, v{MK[k]} row_newbcast:{lane} {DPPF}")
        return s
    def mfma(acc, s, r, first):
        a(f"v_mfma_f32_16x16x32_bf16 {R(acc)}, {R(s)}, v[{r}:{r+3}], {'0' if first else R(acc)}")
    def vlike(e, acc, p, lane, first):
        s = sel_bcast(p, lane)
        wait_for(vidx[e]); mfma(acc, s, RING0 + 4 * slot[e], first); release(e)
    def klike(e, q, dst):
        r = RING0 + 4 * slot[e]
        wait_for(vidx[e])
        a(f"v_dot2_f32_bf16 v{dst}, v{r}, v{q[0]}, 0")
        for k in range(1, 4): a(f"v_dot2_f32_bf16 v{dst}, v{r+k}, v{q[k]}, v{dst}")
        release(e)
    def reduce_scatter16(r, dst):
        for i in range(8): a(f"v_add_f32_dpp v{r[i]}, v{r[i]}, v{r[i]} row_ror:8 row_mask:0xf bank_mask:0x3")
        for i in range(8): a(f"v_add_f32_dpp v{r[i]}, v{r[i+8]}, v{r[i+8]} row_ror:8 row_mask:0xf bank_mask:0xc")
        for i in range(4): a(f"v_add_f32_dpp v{r[i]}, v{r[i]}, v{r[i]} row_half_mirror row_mask:0xf bank_mask:0x5")
        for i in range(4): a(f"v_add_f32_dpp v{r[i]}, v{r[i+4]}, v{r[i+4]} row_half_mirror row_mask:0xf bank_mask:0xa")
        for i in range(4): a(f"v_add_f32_dpp v{r[i]}, v{r[i]}, v{r[i]} quad_perm:[2,3,0,1] {DPPF}")
        a(f"v_cndmask_b32 v{r[0]}, v{r[0]}, v{r[2]}, s[{sM1}:{sM1+1}]")
        a(f"v_cndmask_b32 v{r[1]}, v{r[1]}, v{r[3]}, s[{sM1}:{sM1+1}]")
        for i in range(2): a(f"v_add_f32_dpp v{r[i]}, v{r[i]}, v{r[i]} quad_perm:[1,0,3,2] {DPPF}")
        a(f"v_cndmask_b32 v{dst}, v{r[0]}, v{r[1]}, s[{sM0}:{sM0+1}]")
        a(f"v_cvt_pk_bf16_f32 v{dst}, 0, v{dst}")
        a(f"v_mul_f32 v{dst}, s{sSC}, v{dst}")
        a(f"v_cvt_pk_bf16_f32 v{dst}, 0, v{dst}")
    def allreduce(op, regs, tmps):
        for sh in (8, 4, 2, 1):
            for r in regs: a(f"{op}_dpp v{r}, v{r}, v{r} row_ror:{sh} {DPPF}")
        for pl in ("v_permlane16_swap_b32", "v_permlane32_swap_b32"):
            for r, t in zip(regs, tmps): a(f"v_mov_b32 v{t}, v{r}")
            for r, t in zip(regs, tmps): a(f"{pl} v{r}, v{t}")
            for r, t in zip(regs, tmps): a(f"{op} v{r}, v{r}, v{t}")
    inmain = {"v": False}
    def barrier():
        if inmain["v"] and preb:
            st["tgt"] += preb; issue_upto(int(st["tgt"]))
        a("s_waitcnt lgkmcnt(0)"); a("s_barrier"); lastbar["ip"] = st["ip"]
    def tree(t, n, stop=1):
        st_ = n // 2
        while st_ >= stop:
            for k in range(st_): a(f"v_add_f32 v{t[k]}, v{t[k]}, v{t[k+st_]}")
            st_ //= 2
    def part_write(acc, lb):
        a("s_mov_b64 exec, 0xffffffff")
        a(f"ds_write_b128 v{vPW}, {R(acc)} offset:{lb}")
        a("s_mov_b64 exec, -1")
    def q_finish(tmp, q):
        tree(tmp, 8, 2)
        a(f"v_cvt_pk_bf16_f32 v{q[0]}, v{tmp[0]}, v{tmp[1]}")
        a(f"v_mov_b32 v{q[1]}, v{q[0]}")
        a(f"v_permlane16_swap_b32 v{q[0]}, v{q[1]}")
        a(f"v_mov_b32 v{q[2]}, v{q[0]}"); a(f"v_mov_b32 v{q[3]}, v{q[1]}")
        a(f"v_permlane32_swap_b32 v{q[0]}, v{q[2]}")
        a(f"v_permlane32_swap_b32 v{q[1]}, v{q[3]}")
    def o_read(lb, tmp):
        a(f"ds_read2_b32 v[{tmp[0]}:{tmp[1]}], v{vOR} offset0:0 offset1:132")
    def o_finish(tmp):
        a(f"v_add_f32 v{tmp[0]}, v{tmp[0]}, v{tmp[1]}")
        a(f"v_add_f32_dpp v{tmp[0]}, v{tmp[0]}, v{tmp[0]} quad_perm:[1,0,3,2] {DPPF}")
        a(f"v_add_f32_dpp v{tmp[0]}, v{tmp[0]}, v{tmp[0]} quad_perm:[2,3,0,1] {DPPF}")
        a(f"v_cvt_pk_bf16_f32 v{OX}, v{tmp[0]}, v{tmp[0]}")
        a(f"v_and_b32 v{S2[0]}, v{OX}, v{M2[0]}"); a(f"v_and_b32 v{S2[1]}, v{OX}, v{M2[1]}")
    def wlike(e, i):
        r = RING0 + 4 * slot[e]
        wait_for(vidx[e])
        a(f"v_mfma_f32_4x4x4_16b_bf16 {R(accX)}, {R(S2)}, v[{r}:{r+1}], {'0' if i == 0 else R(accX)} cbsz:4 abid:{i}")
        a(f"v_mfma_f32_4x4x4_16b_bf16 {R(accH)}, {R(S2)}, v[{r+2}:{r+3}], {'0' if i == 0 else R(accH)} cbsz:4 abid:{i}")
        release(e)
    def bump():
        st["tgt"] += burst; issue_upto(int(st["tgt"]))
    def max_write(m, srcs, off):
        if len(srcs) == 1: a(f"v_mov_b32 v{m}, v{srcs[0]}")
        else:
            a(f"v_max3_f32 v{m}, v{srcs[0]}, v{srcs[1]}, v{srcs[2]}"); a(f"v_max_f32 v{m}, v{m}, v{srcs[3]}")
        allreduce("v_max_f32", [m], [5])
        a(f"s_lshl_b32 s{sT}, s{sW}, 2"); a(f"v_mov_b32 v5, s{sT}")
        a(f"ds_write_b32 v5, v{m} offset:{L_MX + off}")
    def max_read(t, off):
        a("v_mov_b32 v6, 0")
        for k in range(2): a(f"ds_read_b128 v[{t[4*k]}:{t[4*k+3]}], v6 offset:{L_MX + off + 16*k}")
    def max_finish(m, t, ps, off):
        a(f"v_max3_f32 v{m}, v{t[0]}, v{t[1]}, v{t[2]}"); a(f"v_max3_f32 v{m}, v{m}, v{t[3]}, v{t[4]}")
        a(f"v_max3_f32 v{m}, v{m}, v{t[5]}, v{t[6]}"); a(f"v_max_f32 v{m}, v{m}, v{t[7]}")
        for p in ps: a(f"v_sub_f32 v{p}, v{p}, v{m}")
        for p in ps: a(f"v_mul_f32 v{p}, s{sL2E}, v{p}")
        for p in ps: a(f"v_exp_f32 v{p}, v{p}")
        if len(ps) == 1: a(f"v_mov_b32 v7, v{ps[0]}")
        else:
            a(f"v_add_f32 v7, v{ps[0]}, v{ps[1]}"); a(f"v_add_f32 v8, v{ps[2]}, v{ps[3]}"); a("v_add_f32 v7, v7, v8")
        for p in ps: a(f"v_cvt_pk_bf16_f32 v{p}, v{p}, v{p}")
        allreduce("v_add_f32", [7], [8])
        a(f"s_lshl_b32 s{sT}, s{sW}, 2"); a(f"v_mov_b32 v5, s{sT}")
        a(f"ds_write_b32 v5, v7 offset:{L_LS + off}")

    a("v_and_b32 v7, 1, v0"); a("v_lshlrev_b32 v7, 4, v7"); a("v_mov_b32 v8, 0xffff"); a("v_lshlrev_b32 v7, v7, v8")
    a("v_bfe_u32 v8, v0, 1, 2")
    for k in range(4):
        a(f"v_cmp_eq_u32 vcc, {k}, v8"); a(f"v_cndmask_b32 v{MK[k]}, 0, v7, vcc")
    a("v_and_b32 v7, 1, v5"); a("v_lshlrev_b32 v7, 4, v7"); a("v_lshl_add_u32 v7, v6, 5, v7")
    a("v_lshrrev_b32 v8, 1, v5"); a("v_lshl_add_u32 v7, v8, 12, v7")
    a(f"s_lshl_b32 s{sT}, s{sW}, 9"); a(f"v_add_u32 v{vPW}, s{sT}, v7")
    a(f"s_mov_b32 s{sT2}, 0")
    for k, src in enumerate(rotw or ()):
        if src is None or src < 0: continue
        a(f"s_bfe_u32 s{sT}, s{sH}, {hex(0x10000 | src)}"); a(f"s_lshl_b32 s{sT}, s{sT}, {k}"); a(f"s_or_b32 s{sT2}, s{sT2}, s{sT}")
    a("v_lshrrev_b32 v7, 2, v0"); a(f"v_xor_b32 v7, s{sT2}, v7"); a("v_lshlrev_b32 v7, 2, v7")
    a("v_and_b32 v8, 3, v0"); a("v_mul_u32_u24 v8, 1056, v8"); a("v_add_u32 v7, v7, v8")
    a(f"s_lshl_b32 s{sT}, s{sW}, 6"); a(f"s_add_u32 s{sT}, s{sT}, {L_OA}"); a(f"v_add_u32 v{vOR}, s{sT}, v7")
    a(f"s_lshl_b32 s{sWO}, s{sH}, 17"); a(f"s_lshl_b32 s{sT}, s{sW}, 14"); a(f"s_or_b32 s{sWO}, s{sWO}, s{sT}")
    a(f"s_lshl_b32 s{sT2}, s{sT2}, 10"); a(f"s_or_b32 s{sWO}, s{sWO}, s{sT2}")
    a(f"v_or_b32 v{M2[0]}, v{MK[0]}, v{MK[2]}"); a(f"v_or_b32 v{M2[1]}, v{MK[1]}, v{MK[3]}")
    a(f"s_lshl_b32 s{sT}, s{sW}, 11"); a(f"v_add_u32 v{vYW}, s{sT}, v{vL16}")
    a(f"s_lshl_b32 s{sT}, s{sW}, 8"); a("v_lshlrev_b32 v7, 2, v0"); a(f"v_add_u32 v{vY}, s{sT}, v7")
    a(f"s_movk_i32 s{sTM}, 0xfff")
    a(f"s_mov_b32 s{sM1}, 0xcccccccc"); a(f"s_mov_b32 s{sM1+1}, 0xcccccccc")
    a(f"s_mov_b32 s{sM0}, 0xaaaaaaaa"); a(f"s_mov_b32 s{sM0+1}, 0xaaaaaaaa")
    a(f"s_mov_b32 s{sSC}, 0x3db504f3"); a(f"s_mov_b32 s{sL2E}, 0x3fb8aa3b")
    a(f"s_mov_b32 s{sT}, 0x01000100"); a(f"s_mov_b32 s{sT2}, 0x03020302")
    wait_for(ix)
    if "startprof" in diag: stamp()
    xs = partA[0:4]
    for i in range(4): a(f"v_perm_b32 v{xs[i]}, v{10 + i // 2}, v{10 + i // 2}, s{sT2 if i & 1 else sT}")
    for i in range(4):
        s = SEL[i & 1]
        for k in range(4): a(f"v_and_b32 v{s[k]}, v{xs[i]}, v{MK[k]}")
        wait_for(iw[i])
        mfma(accX, s, wr[i], i == 0)
    free.extend(wsl)
    issue_upto(early)
    a("v_cmp_gt_u32 vcc, 8, v6")
    for k in range(4): a(f"v_cndmask_b32 v{MK[k]}, 0, v{MK[k]}, vcc")
    a(f"ds_write_b128 v{vPW}, {R(accX)} offset:{L_QP}")
    a(f"s_lshl_b32 s{sT}, s{sW}, 4"); a(f"v_add_u32 v{vPW}, s{sT}, v{vPW}")
    a(f"s_bfe_u32 s{sT}, s{sW}, 0x10001"); a(f"s_lshl_b32 s{sT}, s{sT}, 12"); a(f"s_and_b32 s{sT2}, s{sW}, 1"); a(f"s_lshl_b32 s{sT2}, s{sT2}, 8")
    a(f"s_add_u32 s{sT}, s{sT}, s{sT2}")
    a("v_lshlrev_b32 v7, 2, v0"); a(f"v_add_u32 v7, s{sT}, v7")
    issue_upto(early + pre)
    barrier()
    t = partB
    for w in range(4): a(f"ds_read2st64_b32 v[{t[2*w]}:{t[2*w+1]}], v7 offset0:{L_QP//256 + 4*w} offset1:{L_QP//256 + 4*w+2}")
    issue_upto(early + pre + post)
    wait_for(itag)
    a(f"s_mov_b32 s{sTAG}, 0x9e3779b1")
    a(f"v_mul_lo_u32 v{vTAG}, v{vTAG}, s{sTAG}"); a(f"v_add_u32 v{vTAG}, 0x7f4a7c15, v{vTAG}")
    a(f"s_bfe_u32 s{sT}, s{sW}, 0x10001"); a(f"s_lshl_b32 s{sT}, s{sT}, 5"); a(f"s_add_u32 s{sT}, s{sT}, s{sJ}")
    a(f"s_lshl_b32 s{sT}, s{sT}, 1"); a(f"s_and_b32 s{sOFF}, s{sX}, 1"); a(f"s_add_u32 s{sT}, s{sT}, s{sOFF}")
    a(f"s_lshl_b32 s{sT}, s{sT}, 2"); a(f"s_lshr_b32 s{sOFF}, s{sX}, 1"); a(f"s_add_u32 s{sT}, s{sT}, s{sOFF}")
    a(f"s_lshl_b32 s{sT}, s{sT}, 10")
    a(f"s_lshl_b32 s{sT2}, s{sT2}, 1"); a(f"s_add_u32 s{sT}, s{sT}, s{sT2}"); a(f"s_add_u32 s{sT}, s{sT}, {WS_Q}")
    a(f"s_cmp_lt_u32 s{sW}, 4"); a(f"s_cselect_b32 s{sT}, s{sT}, {OOB}")
    a("v_lshlrev_b32 v7, 3, v0")
    a("s_waitcnt lgkmcnt(0)")
    tree(t, 8)
    a(f"v_mov_b32 v{t[1]}, v{vTAG}")
    if "noq" not in diag: last_store["i"] = vmem(f"buffer_store_dwordx2 v[{t[0]}:{t[1]}], v7, {SRD('ws')}, s{sT} offen sc1")
    a(f"s_lshl_b32 s{sWQ}, s{sB}, 5"); a(f"s_add_u32 s{sWQ}, s{sWQ}, s{sH}"); a(f"s_lshl_b32 s{sWQ}, s{sWQ}, 3")
    a(f"s_add_u32 s{sWQ}, s{sWQ}, s{sW}"); a(f"s_lshl_b32 s{sWQ}, s{sWQ}, 10"); a(f"s_add_u32 s{sWQ}, s{sWQ}, {WS_Q}")
    if "startprof" not in diag: stamp()
    if warm:
        for n, sb in (("vA", sKA), ("vB", sKB), ("woA", sWO), ("woB", sWO)):
            issue_upto(st["ip"])
            vmem(f"buffer_load_dword v{vDUM}, off, {SRD(n)}, s{sb}")
    issue_upto(qpos + dmin)
    eQ = ("q", 0); rQ = RING0 + 4 * slot[eQ]
    wait_for(vidx[eQ])
    a(f"s_mov_b32 s{sCNT}, 0")
    a.label("L_qchk")
    a(f"v_cmp_ne_u32 vcc, v{rQ+1}, v{vTAG}"); a(f"v_cmp_ne_u32 s[{sMY}:{sMY+1}], v{rQ+3}, v{vTAG}")
    a(f"s_or_b64 vcc, vcc, s[{sMY}:{sMY+1}]")
    a("s_cbranch_scc0 L_qok" if "noq" not in diag else "s_branch L_qok")
    a(qload(rQ))
    a(f"s_add_u32 s{sCNT}, s{sCNT}, 1")
    a(f"s_cmp_lt_u32 s{sCNT}, 0x20000")
    a("s_waitcnt vmcnt(0)")
    a("s_cbranch_scc1 L_qchk")
    a.label("L_qok")
    a(f"v_mov_b32 v{rQ+1}, v{rQ+2}")
    a("v_lshlrev_b32 v7, 3, v0"); a(f"s_lshl_b32 s{sT}, s{sW}, 9"); a(f"v_add_u32 v7, s{sT}, v7")
    a(f"ds_write_b64 v7, v[{rQ}:{rQ+1}] offset:{L_Q}")
    a("v_lshlrev_b32 v7, 5, v6"); a("v_lshl_add_u32 v7, v5, 3, v7")
    barrier()
    release(eQ)
    for w in range(4): a(f"ds_read_b64 v[{partB[2*w]}:{partB[2*w+1]}], v7 offset:{L_Q + (4 + w)*512}")
    for w in range(4): a(f"ds_read_b64 v[{partA[2*w]}:{partA[2*w+1]}], v7 offset:{L_Q + w*512}")
    st["tgt"] = float(st["ip"] - 1) + 1
    issue_upto(int(st["tgt"]))
    a("s_waitcnt lgkmcnt(0)")
    q_finish(partB, qB); q_finish(partA, qA)
    if "startprof" not in diag: stamp()

    steps = []
    ready = {"kB": True, "kA": True, "vA": False, "vB": False, "woA": False, "woB": False}
    pending = []; cnt = {n: 0 for n in ready}; tot = {"kB": 64, "vB": 64}
    def push(e):
        steps.append(("c", e)); cnt[e[0]] += 1
        n, i = e
        if n in ("kB", "kA") and i % 16 == 15: steps.append(("rs", n, i // 16))
        if sub and e == ("vB", a_span): ready["woA"] = True
        if cnt[n] != tot.get(n, 16): return
        if n == "kA": steps.append(("op", "maxA")); ready["vA"] = True
        if n in ("vA", "kB") and cnt["vA"] == 16 and cnt["kB"] == 64:
            steps.append(("op", "mid")); ready["vB"] = True; ready["woA"] = not sub

        if n == "woA": steps.append(("op", "yA"))
        if n == "vB": steps.append(("op", "oB")); ready["woB"] = True
        if n == "woB": steps.append(("op", "yB"))
    def drain():
        again = True
        while again:
            again = False
            for e in list(pending):
                if ready[e[0]]:
                    pending.remove(e); push(e); again = True; break
    for e in issue:
        if e[0] == "q": continue
        if ready[e[0]] and not any(p[0] == e[0] for p in pending):
            push(e); drain()
        else: pending.append(e)
    drain(); assert not pending

    YA = qA[0]; ML = qB; YD = partB[8:12]
    def y_exchange(lb, br, dst):
        a(f"s_lshl_b32 s{sRW}, s{sP}, 11"); a(f"s_add_u32 s{sRW}, s{sRW}, {WS_Y + br * 256 * 2048}")
        a(f"ds_write_b128 v{vYW}, {R(accX)} offset:{lb}")
        a(f"ds_write_b128 v{vYW}, {R(accH)} offset:{lb + 1024}")
        barrier()
        u = partB
        for w in range(4): a(f"ds_read2st64_b32 v[{u[2*w]}:{u[2*w+1]}], v{vY} offset0:{lb//256 + 16*w} offset1:{lb//256 + 16*w + 8}")
        if br == 0:
            t = partA
            a("v_mov_b32 v10, 0")
            for k in range(4): a(f"ds_read_b128 v[{t[4*k]}:{t[4*k+3]}], v10 offset:{L_LS + 16*k}")
            bump()
        a("s_waitcnt lgkmcnt(0)")
        tree(u, 8)
        a(f"v_add_u32 v{dst}, 0x800, v{u[0]}")
        a(f"v_bfi_b32 v{dst}, s{sTM}, v{vTAG}, v{dst}")
        if br == 0:
            tree(t[0:8], 8); tree(t[8:16], 8)
            a("v_cmp_gt_u32 vcc, 8, v0")
            a(f"v_cndmask_b32 v{ML[0]}, v{vMB}, v{vMA}, vcc"); a(f"v_cndmask_b32 v{ML[2]}, v{t[8]}, v{t[0]}, vcc")
            a(f"v_mov_b32 v{ML[1]}, v{vTAG}"); a(f"v_mov_b32 v{ML[3]}, v{vTAG}")
    def ml_store():
        if "noml" in diag: return
        a(f"s_lshl_b32 s{sT}, s{sP}, 7"); a(f"s_add_u32 s{sT}, s{sT}, {WS_ML}")
        a(f"s_cmp_eq_u32 s{sW}, 0"); a(f"s_cselect_b32 s{sT}, s{sT}, {OOB}")
        if mlfull:
            a("v_lshrrev_b32 v5, 3, v0"); a("v_lshlrev_b32 v5, 15, v5"); a("v_and_b32 v6, 7, v0"); a("v_lshl_add_u32 v5, v6, 4, v5")
            a(f"v_mov_b32 v6, {OOB}")
            a("v_cmp_gt_u32 vcc, 16, v0"); a("v_cndmask_b32 v5, v6, v5, vcc")
        else:
            a("v_lshlrev_b32 v5, 15, v0"); a(f"v_mov_b32 v6, {OOB}")
            a("v_cmp_gt_u32 vcc, 2, v0"); a("v_cndmask_b32 v5, v6, v5, vcc")
        last_store["i"] = vmem(f"buffer_store_dwordx4 {R(ML)}, v5, {SRD('ws')}, s{sT} offen sc1")
        st["tgt"] += 2; issue_upto(int(st["tgt"]))
    def y_store(br, src):
        if br == 0 and "noya" in diag: return
        last_store["i"] = vmem(f"buffer_store_dword v{src}, v{vY}, {SRD('ws')}, s{sRW} offen sc1")
    MLR = [partA[0:4], partA[4:8]]; vRM, vRY = partA[8], partA[9]
    sRM, sRY = sKA, sWQ
    mli = {}
    BUF = []
    def poll(k, track=False):
        f = vmem if track else a
        f(f"buffer_load_dwordx4 v[{BUF[k][0]}:{BUF[k][0]+3}], v{vRY}, {SRD('ws')}, s{sRY} offen sc1")
        f(f"buffer_load_dwordx4 v[{BUF[k][1]}:{BUF[k][1]+3}], v{vRY}, {SRD('ws')}, s{sRY2} offen sc1")
    def ml_loads():
        for i in range(2):
            if "noml" in diag: mli[i] = 0; continue
            mli[i] = vmem(f"buffer_load_dwordx4 {R(MLR[i])}, v{vRM}, {SRD('ws')}, s{sRM} offen offset:{1024 * i} sc1")
    def red_setup():
        if redsel == 0: a(f"s_mov_b32 s{sRO}, s2")
        else:
            a(f"s_and_b32 s{sRO}, s2, 31"); a(f"s_bfe_u32 s{sT}, s2, 0x10006"); a(f"s_lshl_b32 s{sT}, s{sT}, 5"); a(f"s_or_b32 s{sRO}, s{sRO}, s{sT}")
            a(f"s_and_b32 s{sT}, s{sJ}, 0x15"); a(f"s_bcnt1_i32_b32 s{sT}, s{sT}"); a(f"s_and_b32 s{sT}, s{sT}, 1"); a(f"s_lshl_b32 s{sT}, s{sT}, 6")
            a(f"s_or_b32 s{sRO}, s{sRO}, s{sT}")
            a(f"s_bfe_u32 s{sT}, s{sJ}, 0x10004"); a(f"s_xor_b32 s{sT}, s{sT}, {redsel - 1}"); a(f"s_lshl_b32 s{sT}, s{sT}, 6")
            a(f"s_or_b32 s{sRO}, s{sRO}, s{sT}")
        a("v_lshrrev_b32 v5, 3, v0")
        a(f"s_lshl_b32 s{sT}, s{sW}, 4"); a(f"v_add_u32 v5, s{sT}, v5")
        a("v_and_b32 v6, 7, v0"); a("v_lshlrev_b32 v6, 4, v6")
        a(f"v_lshl_add_u32 v{vRY}, v5, 11, v6")
        a(f"v_lshlrev_b32 v{vRM}, 7, v5")
        a(f"s_lshr_b32 s{sT}, s{sRO}, 4")
        a(f"s_lshl_b32 s{sRY}, s{sT}, 18"); a(f"s_and_b32 s{sT2}, s{sRO}, 15"); a(f"s_lshl_b32 s{sT2}, s{sT2}, 7")
        a(f"s_add_u32 s{sRY}, s{sRY}, s{sT2}")
        a(f"s_lshl_b32 s{sRM}, s{sT}, 14"); a(f"s_add_u32 s{sRM}, s{sRM}, {WS_ML}")
        a(f"s_cmp_lt_u32 s{sRO}, 64"); a(f"s_cselect_b32 s{sRM}, s{sRM}, {OOB}")
        a(f"s_cselect_b32 s{sRY}, s{sRY}, {OOB}")
        a(f"s_add_u32 s{sRY2}, s{sRY}, {8 * 2048}")
        if warmout:
            a(f"s_cselect_b32 s{sT}, 0, {OOB}")
            vmem(f"buffer_load_dword v{vDUM}, off, {SRD('out')}, s{sT}")
        if not mllate: ml_loads()
        else: mli[0] = mli[1] = 0
    apub = {"have": False, "done": False}
    nxt = {}

    inmain["v"] = True; inmain0["v"] = True
    for s in steps:
        if s[0] == "c":
            e = s[1]; n, i = e
            if not (sub and n in ("woA", "woB")):
                st["tgt"] = max(pos[e] + dmin, st["tgt"] + decay)
                issue_upto(int(st["tgt"]))
            if wtail and Fend and n == "vB" and st["ip"] > pos[("vB", 63)]:
                st["tgt"] = max(st["tgt"], pos[e] + Fend - 1); issue_upto(int(st["tgt"]))
            if e == ("vB", 63):
                wait_for(vidx[e])
                while st["ip"] < len(issue): issue_one(False)
            assert e in slot, ("deadlock", e)
            if apub["have"] and not mli and st["ip"] >= len(issue) - mlpos: red_setup()
            if apub["have"] and not apub["done"] and st["ip"] >= len(issue) - apos:
                if mllate: ml_store()
                y_store(0, YA); apub["done"] = True
            if n == "kB": klike(e, qB, partB[i % 16])
            elif n == "kA": klike(e, qA, partA[i])
            elif n == "vA": vlike(e, accX, PA, i, i == 0)
            elif n == "vB": vlike(e, accB, PB[i // 16], i % 16, i == 0)
            elif sub and n in ("woA", "woB"):
                if i == 15:
                    if n == "woA":
                        st["tgt"] += subburst; issue_upto(int(st["tgt"]))
                    wait_for(vidx[e])
                    a(f"s_call_b64 s[{sRET}:{sRET+1}], L_proj")
                    a.hist = []
                    for k in range(16): release((n, k))
            else: wlike(e, i)
        elif s[0] == "rs":
            if rsb:
                st["tgt"] += rsb; issue_upto(int(st["tgt"]))
            if s[1] == "kB": reduce_scatter16(partB, PB[s[2]])
            else: reduce_scatter16(partA, PA)
        else:
            op = s[1]
            if op == "maxA":
                max_write(vMA, [PA], 0)
                barrier()
                max_read(partA, 0)
                bump()
                a("s_waitcnt lgkmcnt(0)")
                max_finish(vMA, partA, [PA], 0)
            elif op == "mid":
                max_write(vMB, PB, 32)
                part_write(accX, L_OA)
                barrier()
                max_read(partA, 32)
                if not sub: o_read(L_OA, partB)
                bump()
                a("s_waitcnt lgkmcnt(0)")
                max_finish(vMB, partA, PB, 32)
                if not sub: o_finish(partB)
                stamp()
            elif op == "yA":
                if sub:
                    a(f"v_mov_b32 v{YA[0]}, v{YD[0]}"); a(f"v_mov_b32 v{YA[2]}, v{YD[2]}")
                    a(f"v_mov_b32 v{YA[1]}, v{vTAG}"); a(f"v_mov_b32 v{YA[3]}, v{vTAG}")
                    a(f"s_lshl_b32 s{sRW}, s{sP}, 12")
                    t = partA
                    a("v_mov_b32 v10, 0")
                    for k in range(4): a(f"ds_read_b128 v[{t[4*k]}:{t[4*k+3]}], v10 offset:{L_LS + 16*k}")
                    a("s_waitcnt lgkmcnt(0)")
                    tree(t[0:8], 8); tree(t[8:16], 8)
                    a("v_cmp_eq_u32 vcc, 0, v0")
                    a(f"v_cndmask_b32 v{ML[0]}, v{vMB}, v{vMA}, vcc"); a(f"v_cndmask_b32 v{ML[2]}, v{t[8]}, v{t[0]}, vcc")
                    a(f"v_mov_b32 v{ML[1]}, v{vTAG}"); a(f"v_mov_b32 v{ML[3]}, v{vTAG}")
                else: y_exchange(L_YA, 0, YA)
                if not mllate: ml_store()
                apub["have"] = True
            elif op == "oB":
                stamp()
                part_write(accB, L_OA if sub else L_OB)
                if sub:
                    a(f"s_add_u32 s{sRW}, s{sRW}, {256 * 4096}")
                    stamp()
                else:
                    barrier()
                    stamp()
                    o_read(L_OB, partB)
                    for k in range(nb): BUF.append([RING0 + 4 * free.pop(), RING0 + 4 * free.pop()])
                    if earlypoll:
                        ml_loads(); poll(0, True)
                    a("s_waitcnt lgkmcnt(0)")
                    o_finish(partB)
            elif op == "yB":
                if sub: y_store(1, YD)
                else:
                    y_exchange(L_YB, 1, accB[0]); y_store(1, accB[0])
                stamp()
    inmain["v"] = False
    assert st["ip"] == len(issue) and apub["done"]

    if "nored" in diag: a("s_branch L_fin")
    a(f"s_cmp_ge_u32 s{sRO}, 64")
    a("s_cbranch_scc1 L_fin")
    YF = list(range(44, 52))
    def evalbuf(k):
        B = [BUF[k][0] + j for j in range(4)] + [BUF[k][1] + j for j in range(4)]
        a(f"v_or3_b32 v7, v{B[0]}, v{B[1]}, v{B[2]}"); a(f"v_or3_b32 v7, v7, v{B[3]}, v{B[4]}"); a(f"v_or3_b32 v7, v7, v{B[5]}, v{B[6]}")
        a(f"v_bitop3_b32 v8, v{B[0]}, v{B[1]}, v{B[2]} bitop3:0x80"); a(f"v_bitop3_b32 v8, v8, v{B[3]}, v{B[4]} bitop3:0x80"); a(f"v_bitop3_b32 v8, v8, v{B[5]}, v{B[6]} bitop3:0x80")
        a(f"v_or_b32 v7, v7, v{B[7]}"); a(f"v_and_b32 v8, v8, v{B[7]}")
        a(f"v_and_b32 v7, s{sTM}, v7"); a(f"v_and_b32 v8, s{sTM}, v8")
        a("v_cmp_eq_u32 vcc, v7, v21"); a(f"v_cmp_eq_u32 s[{sMM}:{sMM+1}], v8, v21")
        a(f"s_and_b64 vcc, vcc, s[{sMM}:{sMM+1}]")
        a(f"s_and_b64 exec, vcc, s[{sMY}:{sMY+1}]")
        for j in range(8): a(f"v_and_b32 v{YF[j]}, s{sWO}, v{B[j]}")
        a(f"s_andn2_b64 s[{sMY}:{sMY+1}], s[{sMY}:{sMY+1}], vcc")
    a(f"s_mov_b32 s{sCNT}, 0")
    a(f"s_mov_b64 s[{sMY}:{sMY+1}], -1")
    a(f"s_not_b32 s{sWO}, s{sTM}")
    a(f"v_and_b32 v21, s{sTM}, v{vTAG}")
    assert earlypoll
    a("s_waitcnt vmcnt(1)")
    evalbuf(0)
    a("s_cbranch_scc0 L_nopoll0")
    a(f"s_mov_b64 exec, s[{sMY}:{sMY+1}]")
    poll(0)
    a.label("L_nopoll0")
    a("s_mov_b64 exec, -1")
    def mlcmp():
        a(f"v_xor_b32 v7, v{MLR[0][1]}, v{vTAG}"); a(f"v_xor_b32 v8, v{MLR[0][3]}, v{vTAG}")
        a(f"v_xor_b32 v9, v{MLR[1][1]}, v{vTAG}"); a(f"v_xor_b32 v10, v{MLR[1][3]}, v{vTAG}")
        a("v_or3_b32 v7, v7, v8, v9"); a("v_or_b32 v7, v7, v10")
        a("v_cmp_ne_u32 vcc, 0, v7"); a("s_cmp_lg_u64 vcc, 0")
    mlcmp()
    a("s_cbranch_scc0 L_mlok")
    a.label("L_mlchk")
    for i in range(2): a(f"buffer_load_dwordx4 {R(MLR[i])}, v{vRM}, {SRD('ws')}, s{sRM} offen offset:{1024 * i} sc1")
    a(f"s_add_u32 s{sCNT}, s{sCNT}, 1")
    a("s_waitcnt vmcnt(0)")
    a(f"s_cmp_ge_u32 s{sCNT}, 0x20000")
    a("s_cbranch_scc1 L_mlok")
    mlcmp()
    a("s_cbranch_scc1 L_mlchk")
    a.label("L_mlok")
    W = [18, 19]; T = [7, 8]; U = [9, 10]
    for i in range(2): a(f"v_max_f32_dpp v{T[i]}, v{MLR[i][0]}, v{MLR[i][0]} row_ror:8 {DPPF}")
    for i in range(2): a(f"v_mov_b32 v{U[i]}, v{T[i]}")
    for i in range(2): a(f"v_permlane16_swap_b32 v{T[i]}, v{U[i]}")
    for i in range(2): a(f"v_max_f32 v{T[i]}, v{T[i]}, v{U[i]}")
    for i in range(2): a(f"v_sub_f32 v{T[i]}, v{MLR[i][0]}, v{T[i]}")
    for i in range(2): a(f"v_mul_f32 v{T[i]}, s{sL2E}, v{T[i]}")
    for i in range(2): a(f"v_exp_f32 v{W[i]}, v{T[i]}")
    for i in range(2): a(f"v_mul_f32 v{T[i]}, v{W[i]}, v{MLR[i][2]}")
    for i in range(2): a(f"v_add_f32_dpp v{T[i]}, v{T[i]}, v{T[i]} row_ror:8 {DPPF}")
    for i in range(2): a(f"v_mov_b32 v{U[i]}, v{T[i]}")
    for i in range(2): a(f"v_permlane16_swap_b32 v{T[i]}, v{U[i]}")
    for i in range(2): a(f"v_add_f32 v{T[i]}, v{T[i]}, v{U[i]}")
    for i in range(2): a(f"v_rcp_f32 v{T[i]}, v{T[i]}")
    for i in range(2): a(f"v_mul_f32 v{W[i]}, v{W[i]}, v{T[i]}")
    a("v_and_b32 v11, 7, v0"); a("v_lshlrev_b32 v11, 2, v11")
    a("v_bfe_u32 v7, v0, 3, 1"); a("v_lshl_add_u32 v11, v7, 1, v11")
    a("v_bfe_u32 v7, v0, 4, 1"); a("v_add_u32 v11, v7, v11"); a("v_lshlrev_b32 v11, 2, v11")
    a(f"s_lshl_b32 s{sT2}, s{sW}, 7"); a(f"v_add_u32 v11, s{sT2}, v11")
    a("v_and_b32 v16, 15, v0"); a("v_lshlrev_b32 v17, 3, v16")
    a("v_and_b32 v7, 1, v0"); a("v_lshlrev_b32 v7, 2, v7"); a("v_lshrrev_b32 v16, 1, v16"); a("v_lshl_add_u32 v16, v16, 4, v7")
    a(f"s_bfe_u32 s{sKB}, s{sRO}, 0x10004"); a(f"s_lshl_b32 s{sKB}, s{sKB}, 11")
    a(f"s_lshr_b32 s{sT2}, s{sRO}, 5"); a(f"s_lshl_b32 s{sT2}, s{sT2}, 10"); a(f"s_add_u32 s{sKB}, s{sKB}, s{sT2}")
    a(f"s_and_b32 s{sT2}, s{sRO}, 7"); a(f"s_lshl_b32 s{sT2}, s{sT2}, 7"); a(f"s_add_u32 s{sKB}, s{sKB}, s{sT2}")
    a(f"s_and_b32 s{sT2}, s{sRO}, 8"); a(f"s_add_u32 s{sKB}, s{sKB}, s{sT2}")
    a(f"s_cmp_eq_u64 s[{sMY}:{sMY+1}], 0")
    a("s_cbranch_scc1 L_poll_ok")
    if nb > 1:
        a(f"s_mov_b64 exec, s[{sMY}:{sMY+1}]")
        for k in range(1, nb): poll(k)
        a("s_mov_b64 exec, -1")
    a.label("L_poll")
    for k in range(nb):
        a(f"s_waitcnt vmcnt({2 * (nb - 1)})")
        evalbuf(k)
        a("s_cbranch_scc0 L_poll_ok")
        a(f"s_mov_b64 exec, s[{sMY}:{sMY+1}]")
        poll(k)
        a("s_mov_b64 exec, -1")
    a(f"s_add_u32 s{sCNT}, s{sCNT}, 1")
    a(f"s_cmp_lt_u32 s{sCNT}, 0x20000")
    a("s_cbranch_scc1 L_poll")
    a.label("L_poll_ok")
    a("s_mov_b64 exec, -1")
    if "redprof" in diag:
        a(f"s_memrealtime s[{sST}:{sST+1}]"); a("s_waitcnt lgkmcnt(0)")
        a(f"v_writelane_b32 v{vSTAMP}, s{sST}, 1")
        a(f"v_readlane_b32 s{sT2}, v{vSTAMP}, 0"); a(f"s_add_u32 s{sT2}, s{sT2}, s{sCNT}"); a(f"v_writelane_b32 v{vSTAMP}, s{sT2}, 2")
    y = YF
    for k in range(4): a(f"v_mul_f32 v{y[k]}, v{W[0]}, v{y[k]}")
    for k in range(4): a(f"v_fmac_f32 v{y[k]}, v{W[1]}, v{y[k+4]}")
    for k in range(2): a(f"v_add_f32_dpp v{y[k]}, v{y[k]}, v{y[k]} row_ror:8 row_mask:0xf bank_mask:0x3")
    for k in range(2): a(f"v_add_f32_dpp v{y[k]}, v{y[k+2]}, v{y[k+2]} row_ror:8 row_mask:0xf bank_mask:0xc")
    a(f"v_permlane16_swap_b32 v{y[0]}, v{y[1]}")
    a(f"v_add_f32 v{y[0]}, v{y[0]}, v{y[1]}")
    a(f"v_mov_b32 v{y[1]}, v{y[0]}")
    a(f"v_permlane32_swap_b32 v{y[0]}, v{y[1]}")
    a(f"v_add_f32 v{y[0]}, v{y[0]}, v{y[1]}")
    a(f"ds_write_b32 v11, v{y[0]} offset:{L_RED}")
    barrier()
    a(f"s_cmp_lg_u32 s{sW}, 0")
    a("s_cbranch_scc1 L_fin")
    t = partA
    for w in range(8): a(f"ds_read_b64 v[{t[2*w]}:{t[2*w+1]}], v17 offset:{L_RED + w*128}")
    a("s_waitcnt lgkmcnt(0)")
    tree(t, 16, 2)
    a(f"v_cvt_pk_bf16_f32 v7, v{t[0]}, v{t[1]}")
    a("s_mov_b64 exec, 0xffff")
    a(f"buffer_store_dword v7, v16, {SRD('out')}, s{sKB} offen {outpol}")
    a(f"s_cmp_lg_u32 s{sRO}, 32")
    a("s_cbranch_scc1 L_fin")
    a("s_mov_b64 exec, 1")
    a(f"s_mov_b32 s{sT}, {hex(WS_EP)}")
    a(f"buffer_store_dword v{vTAG}, v16, {SRD('ws')}, s{sT} offen sc1")
    a.label("L_fin")
    if "pad" in diag:
        if "padx" in diag:
            a("s_getreg_b32 s80, hwreg(HW_REG_XCC_ID)"); a("s_and_b32 s80, s80, 15"); a("s_and_b32 s81, s2, 7")
            a("s_cmp_eq_u32 s80, s81"); a("s_cbranch_scc1 L_padend")
        a.label("L_pad")
        a("s_memrealtime s[80:81]"); a("s_waitcnt lgkmcnt(0)")
        a("s_sub_u32 s80, s80, s92"); a("s_cmp_lt_u32 s80, 10000"); a("s_cbranch_scc1 L_pad")
        a.label("L_padend")
    if stamps:
        a("s_mov_b64 exec, -1")
        stamp()
        if "tailprof" in diag:
            a("s_memtime s[88:89]"); a("s_waitcnt lgkmcnt(0)")
            for k in range(7): a(f"v_writelane_b32 v{vSTAMP}, s{76 + 2*k}, {k}")
            a(f"v_writelane_b32 v{vSTAMP}, s90, 7")
        assert stampn["n"] == 8, stampn
        a(f"s_lshl_b32 s{sT}, s2, 3"); a(f"s_add_u32 s{sT}, s{sT}, s{sW}"); a(f"s_lshl_b32 s{sT}, s{sT}, 5")
        a(f"s_add_u32 s{sT}, s{sT}, {WS_ST}")
        a("v_lshlrev_b32 v5, 2, v0")
        a("s_mov_b64 exec, 0xff")
        a(f"buffer_store_dword v{vSTAMP}, v5, {SRD('ws')}, s{sT} offen")
        if "dbgst" in diag:
            a("s_load_dwordx2 s[76:77], s[0:1], 88"); a("s_mov_b32 s78, 256"); a("s_mov_b32 s79, 0x20000")
            a(f"s_cmp_eq_u32 s2, 64"); a(f"s_cselect_b32 s{sT}, 0, {OOB}")
            a(f"s_cmp_eq_u32 s2, 205"); a(f"s_cselect_b32 s{sT}, 32, s{sT}")
            a(f"s_cmp_eq_u32 s{sW}, 0"); a(f"s_cselect_b32 s{sT}, s{sT}, {OOB}")
            a(f"v_readlane_b32 s{sT2}, v{vSTAMP}, 0")
            a(f"v_subrev_u32 v{vSTAMP}, s{sT2}, v{vSTAMP}")
            a("s_waitcnt lgkmcnt(0)")
            a(f"buffer_store_dword v{vSTAMP}, v5, s[76:79], s{sT} offen")
    a.label("L_end")
    a("s_endpgm")
    if sub:
        a.label("L_proj")
        a.hist = []
        tp = "tailprof" in diag
        if tp: a("s_memtime s[76:77]")
        barrier()
        if tp: a("s_memtime s[78:79]")
        o_read(L_OA, partB)
        a(f"v_mov_b32 v{YD[1]}, v{vTAG}"); a(f"v_mov_b32 v{YD[3]}, v{vTAG}")
        a("s_waitcnt lgkmcnt(0)")
        if tp: a("s_memtime s[80:81]")
        o_finish(partB)
        selk["k"] = 0
        cur = sel_bcast(OX, 0)
        for i in range(16):
            nx = sel_bcast(OX, i + 1) if i < 15 else None
            mfma(accX, cur, RING0 + 4 * (WB0 + i), i == 0); cur = nx
        if tp: a("s_memtime s[82:83]")
        part_write(accX, L_YA)
        barrier()
        if tp: a("s_memtime s[84:85]")
        a(f"ds_read_b64 v[6:7], v{vYR} offset:{L_YA}")
        a(f"ds_read_b64 v[8:9], v{vYR} offset:{L_YA + 2048}")
        a("s_waitcnt lgkmcnt(0)")
        a(f"v_add_f32 v{YD[0]}, v6, v8"); a(f"v_add_f32 v{YD[2]}, v7, v9")
        if tp: a("s_memtime s[86:87]")
        a(f"s_setpc_b64 s[{sRET}:{sRET+1}]")
    a.raw('.section .rodata,"a"'); a.raw(".p2align 6"); a.raw(f".amdhsa_kernel {NAME}")
    a.raw("  .amdhsa_next_free_vgpr 256"); a.raw(f"  .amdhsa_next_free_sgpr {NSGPR}"); a.raw("  .amdhsa_accum_offset 256")
    a.raw("  .amdhsa_group_segment_fixed_size 0"); a.raw("  .amdhsa_kernarg_size 104"); a.raw("  .amdhsa_user_sgpr_count 2")
    a.raw("  .amdhsa_user_sgpr_kernarg_segment_ptr 1"); a.raw("  .amdhsa_system_sgpr_workgroup_id_x 1"); a.raw(".end_amdhsa_kernel")
    return a.text()

if __name__ == "__main__":
    out = sys.argv[1]
    kw = json.loads(sys.argv[2]) if len(sys.argv) > 2 else {}
    open(out, "w").write(gen(**kw))
```

```python
import sys, json
from asmlib import Asm

NAME = "concat_heads__sliding_block_cached__mha_block_cached__decode_kernel"
HEADER = open("concat_heads__sliding_block_cached__mha_block_cached__decode.s.ref").read().split("; Override launch")[0]
DPPF = "row_mask:0xf bank_mask:0xf"

WS_Y = 0
WS_ML = 0x100000
WS_Q = 0x120000
WS_EP = 0x1b0000
WS_ST = 0x340000
WS_SIZE = 0x400000
OOB = 0x40000000
DOC = '''; Decode attention, two branches (A: GQA sliding window, B: MHA), one launch, 256 workgroups x 8 waves (one per CU).
;  1. q projection is shared: every wg multiplies a 128x128 tile of wq (both batches) and hands the partial over
;  All loads run as one stream per wave with a bounded window; generated by a script (static vmcnt counts).
'''

def gen(F=5, dmin=5, burst=1, stamps=False, pol="nt", shpol="", qpos=22, decay=0.5, rsh=2, diag="",
        relax=4, slp=8, slpthr=16, early=1, apos=0, sub=False, subburst=3, warmred=True, a_span=27, b_start=36, pre=6, post=2, wb=(16,12,13), ib=(14,11,15,10,17,18), preb=0, rota=(1,2,4,3), rotw=(2,0,1,3), wba=(16,12,13), iba=(14,11,15,10), nb=2, gap=0, mlpos=12, warm=False, rsb=0, redsel=0, sync=6, mlfull=True, mllate=True, warmout=False, sync0=6, wtail=0, Fend=None, outpol='sc1', rb=(1,2,4,3,6,7), earlypoll=True, Flast=None, Nlast=0, Ffirst=None, Nfirst=0, qpol='sc1', refill=True):
    if dmin is None: dmin = F - 1
    a = Asm()
    names = ["xA", "kA", "vA", "wqA", "woA", "xB", "kB", "vB", "wqB", "woB", "out", "dbg", "ws"]
    sizes = {"x": 2048, "wq": 4 << 20, "kA": 32 << 20, "vA": 32 << 20, "woA": 4 << 20,
             "kB": 128 << 20, "vB": 128 << 20, "woB": 4 << 20, "out": 4096, "ws": WS_SIZE}
    srd = {n: 8 + 4 * i for i, n in enumerate(sizes)}
    def SRD(n): return f"s[{srd[n]}:{srd[n]+3}]"
    sW, sH, sB, sS, sT = 3, 4, 5, 6, 7
    sX, sJ, sT2, sKB, sKA, sWQ, sWO, sOFF, sP, sTAG, sSC, sL2E, sCNT, sRW = range(48, 62)
    sM1, sM0, sST, sMY, sMM = 62, 64, 66, 68, 70
    sRET = 72; sTM = 74; sRO = 75; sRY2 = 76
    NSGPR = 96 if (stamps or diag) else 80
    vL16, vWo, vPW, vOR = 1, 2, 3, 4
    vSTAMP, vMA, vMB, vTAG = 12, 13, 14, 15
    qB = list(range(16, 20)); qA = list(range(20, 24))
    accB = list(range(24, 28)); accX = list(range(28, 32))
    MK = list(range(32, 36))
    SEL = [list(range(36, 40)), list(range(40, 44))]
    partB = list(range(44, 60)); partA = list(range(60, 76))
    PB = list(range(76, 80)); PA = 80; OX = 81; vY = 82; vYR = 83; vDUM = 84; vYW = 85; S2 = [86, 87]; M2 = [88, 89]
    accH = partA[12:16]
    RING0 = 92
    NS = (256 - RING0) // 4
    L_QP = 0
    L_Q = 8192; L_OA = L_OB = 12288
    L_YA = L_YB = 16896 // 256 * 256 + 256
    L_MX = L_YA + 16384; L_LS = L_MX + 64; L_RED = L_MX + 256
    LDS = L_RED + 1024

    a.raw(HEADER.rstrip("\n"))
    a.raw(f"; @launch grid=(256,1,1) block=(512,1,1) lds={LDS}")
    a.raw(DOC.rstrip("\n"))
    a.raw('.amdgcn_target "amdgcn-amd-amdhsa--gfx950"')
    a.raw(".text"); a.raw(f".globl {NAME}"); a.raw(".p2align 8"); a.raw(f".type {NAME},@function")
    a.label(NAME)
    if "padA" in diag:
        a("s_memrealtime s[92:93]"); a("s_waitcnt lgkmcnt(0)")
    a("s_cmp_ge_u32 s2, 256")
    a("s_cbranch_scc1 L_end")
    a(f"s_and_b32 s{sT}, s2, 1"); a(f"s_mul_i32 s{sT}, s{sT}, 40"); a(f"s_add_u32 s{sT2}, s{sT}, 24")
    a(f"s_load_dwordx2 s[{srd['wq']}:{srd['wq']+1}], s[0:1], s{sT2}")
    a(f"s_load_dwordx2 s[{srd['x']}:{srd['x']+1}], s[0:1], s{sT}")
    for n in ["kB", "ws", "kA"]:
        a(f"s_load_dwordx2 s[{srd[n]}:{srd[n]+1}], s[0:1], {8 * names.index(n)}")
    if stamps: a(f"s_memrealtime s[{sST}:{sST+1}]")
    if "tailprof" in diag: a("s_memtime s[90:91]")
    if "pad" in diag and "padA" not in diag: a("s_memrealtime s[92:93]")
    stampn = {"n": 1}
    def stamp():
        if not stamps: return
        a(f"s_memrealtime s[{sST}:{sST+1}]"); a("s_waitcnt lgkmcnt(0)")
        a(f"v_writelane_b32 v{vSTAMP}, s{sST}, {stampn['n']}"); stampn["n"] += 1
    def srdw(n):
        a(f"s_mov_b32 s{srd[n]+2}, {hex(sizes[n])}"); a(f"s_mov_b32 s{srd[n]+3}, 0x20000")
    a("v_lshrrev_b32 v1, 6, v0")
    a("v_and_b32 v0, 63, v0")
    a(f"v_readfirstlane_b32 s{sW}, v1")
    srdw("wq"); srdw("x")
    a("v_lshrrev_b32 v5, 4, v0"); a("v_and_b32 v6, 15, v0")
    a("v_lshlrev_b32 v7, 4, v6")
    a("v_lshl_add_u32 v9, v5, 15, v7")
    a("v_bfe_u32 v8, v0, 3, 1"); a("v_lshlrev_b32 v8, 10, v8"); a("v_lshl_add_u32 v8, v5, 3, v8")
    a(f"s_lshr_b32 s{sJ}, s2, 3")
    a(f"s_and_b32 s{sT}, s2, 6"); a(f"s_lshl_b32 s{sT}, s{sT}, 2"); a(f"s_add_u32 s{sT}, s{sT}, s{sW}")
    a(f"s_lshl_b32 s{sRW}, s{sT}, 5")
    a(f"s_lshl_b32 s{sWQ}, s{sT}, 17"); a(f"s_lshl_b32 s{sT2}, s{sJ}, 8"); a(f"s_add_u32 s{sWQ}, s{sWQ}, s{sT2}")
    a("s_waitcnt lgkmcnt(0)")
    if stamps: a(f"v_writelane_b32 v{vSTAMP}, s{sST}, 0")
    if "startprof" in diag: stamp()

    vm = {"n": 0}; done = {"upto": 0}; last_store = {"i": -100}
    def vmem(text):
        a(text); vm["n"] += 1; return vm["n"] - 1
    def wait_for(idx):
        if idx < done["upto"]: return
        n = vm["n"] - 1 - idx
        assert n <= 63
        a(f"s_waitcnt vmcnt({n})"); done["upto"] = idx + 1
    def limit(f):
        tgt = vm["n"] - f
        if tgt >= last_store["i"] and vm["n"] - last_store["i"] <= f + relax - 1: tgt = last_store["i"] - 1
        if tgt >= 0: wait_for(tgt)

    free = list(range(NS))
    wsl = [free.pop(0) for _ in range(4)]
    wr = [RING0 + 4 * s for s in wsl]
    ix = vmem(f"buffer_load_dwordx2 v[10:11], v8, {SRD('x')}, s{sRW} offen")
    iw = []
    for i in range(4):
        if i: a(f"s_add_u32 s{sOFF}, s{sWQ}, {i * 8192}")
        iw.append(vmem(f"buffer_load_dwordx4 v[{wr[i]}:{wr[i]+3}], v9, {SRD('wq')}, s{sOFF if i else sWQ} offen {pol}"))

    srdw("kB")
    a(f"v_lshlrev_b32 v{vL16}, 4, v0")
    a(f"s_and_b32 s{sX}, s2, 7")
    a(f"s_lshr_b32 s{sH}, s{sJ}, 3"); a(f"s_lshl_b32 s{sT}, s{sX}, 2"); a(f"s_add_u32 s{sH}, s{sH}, s{sT}")
    a(f"s_bfe_u32 s{sB}, s{sJ}, 0x10002"); a(f"s_and_b32 s{sS}, s{sJ}, 3")
    a(f"s_lshl_b32 s{sP}, s{sB}, 5"); a(f"s_add_u32 s{sP}, s{sP}, s{sH}")
    a(f"s_lshl_b32 s{sP}, s{sP}, 2"); a(f"s_add_u32 s{sP}, s{sP}, s{sS}")
    def scatter(dst, pairs, first=False):
        for reg, src, bit in pairs:
            a(f"s_bfe_u32 s{sT}, s{reg}, {hex(0x10000 | src)}")
            if first: a(f"s_lshl_b32 s{dst}, s{sT}, {bit}"); first = False
            else: a(f"s_lshl_b32 s{sT}, s{sT}, {bit}"); a(f"s_or_b32 s{dst}, s{dst}, s{sT}")
    pb = [(sW, 2, wb[0]), (sW, 0, wb[1]), (sW, 1, wb[2])] + [(2, (rb[k] if rb else k + rsh), d) for k, d in enumerate(ib)]
    pa = [(sW, 2, wba[0]), (sW, 0, wba[1]), (sW, 1, wba[2])] + [(2, sr, d) for sr, d in zip(rota, iba) if sr is not None and sr >= 0]
    assert all(sr <= 5 for r_, sr, d in pa[3:])
    common = [p for p in pb if p in pa]
    scatter(sKA, common, True)
    a(f"s_lshl_b32 s{sKB}, s{sP}, 19"); a(f"s_or_b32 s{sKB}, s{sKB}, s{sKA}")
    scatter(sKB, [p for p in pb if p not in common])
    def late_setup():
        scatter(sKA, [p for p in pa if p not in common])
        a(f"s_lshl_b32 s{sT}, s{sB}, 3"); a(f"s_add_u32 s{sT}, s{sT}, s{sX}")
        a(f"s_lshl_b32 s{sT}, s{sT}, 4"); a(f"s_add_u32 s{sT}, s{sT}, s{sS}"); a(f"s_add_u32 s{sT}, s{sT}, 12")
        a(f"s_lshl_b32 s{sT}, s{sT}, 17"); a(f"s_or_b32 s{sKA}, s{sKA}, s{sT}")
        for n in srd:
            if n not in ("wq", "x", "kB"): srdw(n)
        a(f"s_mov_b32 s{sCNT}, {hex(WS_EP)}")

    P = [("kB", i) for i in range(64)] + [("vB", i) for i in range(64)]
    issue = []
    after = {}
    for i in range(16):
        after.setdefault(2 * i, []).append(("kA", i))
        after.setdefault(32 + 2 * i, []).append(("vA", i))
        if sub:
            after.setdefault(64 + (i * a_span) // 16, []).append(("woA", i))
            after.setdefault(64 + b_start + (i * (63 - b_start)) // 16, []).append(("woB", i))
        else:
            after.setdefault(64 + 2 * i, []).append(("woA", i))
            nw = 16 - wtail
            after.setdefault(96 + (i * 32) // nw if i < nw else 127, []).append(("woB", i))
    for i, e in enumerate(P):
        issue.append(e); issue += after.get(i, [])
    assert wtail or issue[-1][0] == "vB"
    issue.insert(qpos, ("q", 0))
    pos = {e: i for i, e in enumerate(issue)}
    slot = {}; vidx = {}; lastbar = {"ip": 0}; inmain0 = {"v": False}
    st = {"ip": 0, "tgt": 0.0}
    def qload(r, pl="sc1"):
        return f"buffer_load_dwordx4 v[{r}:{r+3}], v{vL16}, {SRD('ws')}, s{sWQ} offen {pl}"
    WB0 = NS - 16
    def pick(n, i):
        if sub:
            if n in ("woA", "woB"):
                return WB0 + i if (WB0 + i) in free else None
            cand = [s for s in free if s < WB0 or st["ip"] < 56]
            return cand[0] if cand else None
        return free[0] if free else None
    def curF():
        if Flast and st["ip"] >= len(issue) - Nlast: return Flast
        if Ffirst and st["ip"] < Nfirst: return Ffirst
        return F
    def issue_one(lim=True):
        e = issue[st["ip"]]; n, i = e
        s = pick(n, i); free.remove(s); slot[e] = s
        r = RING0 + 4 * s
        if n == "q":
            if lim: limit(F)
            vidx[e] = vmem(qload(r, qpol))
        else:
            if n in ("kB", "vB"): base, off, va, pl = sKB, sum(((i >> k) & 1) << b for k, b in enumerate(ib)), vL16, pol
            elif n in ("kA", "vA"): base, off, va, pl = sKA, sum(((i >> k) & 1) << b for k, b in enumerate(iba)), vL16, shpol
            else: base, off, va, pl = sWO, i * 1024, vL16, shpol
            if off:
                a(f"s_xor_b32 s{sOFF}, s{base}, {off}"); so = sOFF
            else: so = base
            if lim: limit(Fend if (Fend and n == "woB" and i >= 16 - wtail) else curF())
            vidx[e] = vmem(f"buffer_load_dwordx4 v[{r}:{r+3}], v{va}, {SRD(n)}, s{so} offen {pl}")
        st["ip"] += 1
        per = sync if inmain0["v"] else sync0
        if per and st["ip"] - lastbar["ip"] >= per and st["ip"] < len(issue) - 2 - wtail:
            a("s_barrier"); lastbar["ip"] = st["ip"]
    def issue_upto(t):
        while st["ip"] <= t and st["ip"] < len(issue) and pick(*issue[st["ip"]]) is not None:
            issue_one()
    def release(e): free.append(slot.pop(e))
    issue_one(False)
    late_setup()
    for _ in range(early - 1): issue_one(False)
    itag = vmem(f"buffer_load_dword v{vTAG}, off, {SRD('ws')}, s{sCNT} sc1")
    for n in ["vA", "vB", "woA", "woB", "out"]:
        a(f"s_load_dwordx2 s[{srd[n]}:{srd[n]+1}], s[0:1], {8 * names.index(n)}")

    selk = {"k": 0}
    def R(regs): return f"v[{regs[0]}:{regs[-1]}]"
    def sel_bcast(p, lane):
        s = SEL[selk["k"]]; selk["k"] ^= 1
        for k in range(4): a(f"v_and_b32_dpp v{s[k]}, v{p}, v{MK[k]} row_newbcast:{lane} {DPPF}")
        return s
    def mfma(acc, s, r, first):
        a(f"v_mfma_f32_16x16x32_bf16 {R(acc)}, {R(s)}, v[{r}:{r+3}], {'0' if first else R(acc)}")
    def vlike(e, acc, p, lane, first):
        s = sel_bcast(p, lane)
        wait_for(vidx[e]); mfma(acc, s, RING0 + 4 * slot[e], first); release(e)
    def klike(e, q, dst):
        r = RING0 + 4 * slot[e]
        wait_for(vidx[e])
        a(f"v_dot2_f32_bf16 v{dst}, v{r}, v{q[0]}, 0")
        for k in range(1, 4): a(f"v_dot2_f32_bf16 v{dst}, v{r+k}, v{q[k]}, v{dst}")
        release(e)
    def reduce_scatter16(r, dst):
        for i in range(8): a(f"v_add_f32_dpp v{r[i]}, v{r[i]}, v{r[i]} row_ror:8 row_mask:0xf bank_mask:0x3")
        for i in range(8): a(f"v_add_f32_dpp v{r[i]}, v{r[i+8]}, v{r[i+8]} row_ror:8 row_mask:0xf bank_mask:0xc")
        for i in range(4): a(f"v_add_f32_dpp v{r[i]}, v{r[i]}, v{r[i]} row_half_mirror row_mask:0xf bank_mask:0x5")
        for i in range(4): a(f"v_add_f32_dpp v{r[i]}, v{r[i+4]}, v{r[i+4]} row_half_mirror row_mask:0xf bank_mask:0xa")
        for i in range(4): a(f"v_add_f32_dpp v{r[i]}, v{r[i]}, v{r[i]} quad_perm:[2,3,0,1] {DPPF}")
        a(f"v_cndmask_b32 v{r[0]}, v{r[0]}, v{r[2]}, s[{sM1}:{sM1+1}]")
        a(f"v_cndmask_b32 v{r[1]}, v{r[1]}, v{r[3]}, s[{sM1}:{sM1+1}]")
        for i in range(2): a(f"v_add_f32_dpp v{r[i]}, v{r[i]}, v{r[i]} quad_perm:[1,0,3,2] {DPPF}")
        a(f"v_cndmask_b32 v{dst}, v{r[0]}, v{r[1]}, s[{sM0}:{sM0+1}]")
        a(f"v_cvt_pk_bf16_f32 v{dst}, 0, v{dst}")
        a(f"v_mul_f32 v{dst}, s{sSC}, v{dst}")
        a(f"v_cvt_pk_bf16_f32 v{dst}, 0, v{dst}")
    def allreduce(op, regs, tmps):
        for sh in (8, 4, 2, 1):
            for r in regs: a(f"{op}_dpp v{r}, v{r}, v{r} row_ror:{sh} {DPPF}")
        for pl in ("v_permlane16_swap_b32", "v_permlane32_swap_b32"):
            for r, t in zip(regs, tmps): a(f"v_mov_b32 v{t}, v{r}")
            for r, t in zip(regs, tmps): a(f"{pl} v{r}, v{t}")
            for r, t in zip(regs, tmps): a(f"{op} v{r}, v{r}, v{t}")
    inmain = {"v": False}
    def barrier():
        if inmain["v"] and preb:
            st["tgt"] += preb; issue_upto(int(st["tgt"]))
        a("s_waitcnt lgkmcnt(0)"); a("s_barrier"); lastbar["ip"] = st["ip"]
    def tree(t, n, stop=1):
        st_ = n // 2
        while st_ >= stop:
            for k in range(st_): a(f"v_add_f32 v{t[k]}, v{t[k]}, v{t[k+st_]}")
            st_ //= 2
    def part_write(acc, lb):
        a("s_mov_b64 exec, 0xffffffff")
        a(f"ds_write_b128 v{vPW}, {R(acc)} offset:{lb}")
        a("s_mov_b64 exec, -1")
    def q_finish(tmp, q):
        tree(tmp, 8, 2)
        a(f"v_cvt_pk_bf16_f32 v{q[0]}, v{tmp[0]}, v{tmp[1]}")
        a(f"v_mov_b32 v{q[1]}, v{q[0]}")
        a(f"v_permlane16_swap_b32 v{q[0]}, v{q[1]}")
        a(f"v_mov_b32 v{q[2]}, v{q[0]}"); a(f"v_mov_b32 v{q[3]}, v{q[1]}")
        a(f"v_permlane32_swap_b32 v{q[0]}, v{q[2]}")
        a(f"v_permlane32_swap_b32 v{q[1]}, v{q[3]}")
    def o_read(lb, tmp):
        a(f"ds_read2_b32 v[{tmp[0]}:{tmp[1]}], v{vOR} offset0:0 offset1:132")
    def o_finish(tmp):
        a(f"v_add_f32 v{tmp[0]}, v{tmp[0]}, v{tmp[1]}")
        a(f"v_add_f32_dpp v{tmp[0]}, v{tmp[0]}, v{tmp[0]} quad_perm:[1,0,3,2] {DPPF}")
        a(f"v_add_f32_dpp v{tmp[0]}, v{tmp[0]}, v{tmp[0]} quad_perm:[2,3,0,1] {DPPF}")
        a(f"v_cvt_pk_bf16_f32 v{OX}, v{tmp[0]}, v{tmp[0]}")
        a(f"v_and_b32 v{S2[0]}, v{OX}, v{M2[0]}"); a(f"v_and_b32 v{S2[1]}, v{OX}, v{M2[1]}")
    def wlike(e, i):
        r = RING0 + 4 * slot[e]
        wait_for(vidx[e])
        a(f"v_mfma_f32_4x4x4_16b_bf16 {R(accX)}, {R(S2)}, v[{r}:{r+1}], {'0' if i == 0 else R(accX)} cbsz:4 abid:{i}")
        a(f"v_mfma_f32_4x4x4_16b_bf16 {R(accH)}, {R(S2)}, v[{r+2}:{r+3}], {'0' if i == 0 else R(accH)} cbsz:4 abid:{i}")
        release(e)
    def bump():
        st["tgt"] += burst; issue_upto(int(st["tgt"]))
    def max_write(m, srcs, off):
        if len(srcs) == 1: a(f"v_mov_b32 v{m}, v{srcs[0]}")
        else:
            a(f"v_max3_f32 v{m}, v{srcs[0]}, v{srcs[1]}, v{srcs[2]}"); a(f"v_max_f32 v{m}, v{m}, v{srcs[3]}")
        allreduce("v_max_f32", [m], [5])
        a(f"s_lshl_b32 s{sT}, s{sW}, 2"); a(f"v_mov_b32 v5, s{sT}")
        a(f"ds_write_b32 v5, v{m} offset:{L_MX + off}")
    def max_read(t, off):
        a("v_mov_b32 v6, 0")
        for k in range(2): a(f"ds_read_b128 v[{t[4*k]}:{t[4*k+3]}], v6 offset:{L_MX + off + 16*k}")
    def max_finish(m, t, ps, off):
        a(f"v_max3_f32 v{m}, v{t[0]}, v{t[1]}, v{t[2]}"); a(f"v_max3_f32 v{m}, v{m}, v{t[3]}, v{t[4]}")
        a(f"v_max3_f32 v{m}, v{m}, v{t[5]}, v{t[6]}"); a(f"v_max_f32 v{m}, v{m}, v{t[7]}")
        for p in ps: a(f"v_sub_f32 v{p}, v{p}, v{m}")
        for p in ps: a(f"v_mul_f32 v{p}, s{sL2E}, v{p}")
        for p in ps: a(f"v_exp_f32 v{p}, v{p}")
        if len(ps) == 1: a(f"v_mov_b32 v7, v{ps[0]}")
        else:
            a(f"v_add_f32 v7, v{ps[0]}, v{ps[1]}"); a(f"v_add_f32 v8, v{ps[2]}, v{ps[3]}"); a("v_add_f32 v7, v7, v8")
        for p in ps: a(f"v_cvt_pk_bf16_f32 v{p}, v{p}, v{p}")
        allreduce("v_add_f32", [7], [8])
        a(f"s_lshl_b32 s{sT}, s{sW}, 2"); a(f"v_mov_b32 v5, s{sT}")
        a(f"ds_write_b32 v5, v7 offset:{L_LS + off}")

    a("v_and_b32 v7, 1, v0"); a("v_lshlrev_b32 v7, 4, v7"); a("v_mov_b32 v8, 0xffff"); a("v_lshlrev_b32 v7, v7, v8")
    a("v_bfe_u32 v8, v0, 1, 2")
    for k in range(4):
        a(f"v_cmp_eq_u32 vcc, {k}, v8"); a(f"v_cndmask_b32 v{MK[k]}, 0, v7, vcc")
    a("v_and_b32 v7, 1, v5"); a("v_lshlrev_b32 v7, 4, v7"); a("v_lshl_add_u32 v7, v6, 5, v7")
    a("v_lshrrev_b32 v8, 1, v5"); a("v_lshl_add_u32 v7, v8, 12, v7")
    a(f"s_lshl_b32 s{sT}, s{sW}, 9"); a(f"v_add_u32 v{vPW}, s{sT}, v7")
    a(f"s_mov_b32 s{sT2}, 0")
    for k, src in enumerate(rotw or ()):
        if src is None or src < 0: continue
        a(f"s_bfe_u32 s{sT}, s{sH}, {hex(0x10000 | src)}"); a(f"s_lshl_b32 s{sT}, s{sT}, {k}"); a(f"s_or_b32 s{sT2}, s{sT2}, s{sT}")
    a("v_lshrrev_b32 v7, 2, v0"); a(f"v_xor_b32 v7, s{sT2}, v7"); a("v_lshlrev_b32 v7, 2, v7")
    a("v_and_b32 v8, 3, v0"); a("v_mul_u32_u24 v8, 1056, v8"); a("v_add_u32 v7, v7, v8")
    a(f"s_lshl_b32 s{sT}, s{sW}, 6"); a(f"s_add_u32 s{sT}, s{sT}, {L_OA}"); a(f"v_add_u32 v{vOR}, s{sT}, v7")
    a(f"s_lshl_b32 s{sWO}, s{sH}, 17"); a(f"s_lshl_b32 s{sT}, s{sW}, 14"); a(f"s_or_b32 s{sWO}, s{sWO}, s{sT}")
    a(f"s_lshl_b32 s{sT2}, s{sT2}, 10"); a(f"s_or_b32 s{sWO}, s{sWO}, s{sT2}")
    a(f"v_or_b32 v{M2[0]}, v{MK[0]}, v{MK[2]}"); a(f"v_or_b32 v{M2[1]}, v{MK[1]}, v{MK[3]}")
    a(f"s_lshl_b32 s{sT}, s{sW}, 11"); a(f"v_add_u32 v{vYW}, s{sT}, v{vL16}")
    a(f"s_lshl_b32 s{sT}, s{sW}, 8"); a("v_lshlrev_b32 v7, 2, v0"); a(f"v_add_u32 v{vY}, s{sT}, v7")
    a(f"s_movk_i32 s{sTM}, 0xfff")
    a(f"s_mov_b32 s{sM1}, 0xcccccccc"); a(f"s_mov_b32 s{sM1+1}, 0xcccccccc")
    a(f"s_mov_b32 s{sM0}, 0xaaaaaaaa"); a(f"s_mov_b32 s{sM0+1}, 0xaaaaaaaa")
    a(f"s_mov_b32 s{sSC}, 0x3db504f3"); a(f"s_mov_b32 s{sL2E}, 0x3fb8aa3b")
    a(f"s_mov_b32 s{sT}, 0x01000100"); a(f"s_mov_b32 s{sT2}, 0x03020302")
    wait_for(ix)
    if "padC" in diag: a("s_memrealtime s[92:93]")
    if "startprof" in diag: stamp()
    xs = partA[0:4]
    for i in range(4): a(f"v_perm_b32 v{xs[i]}, v{10 + i // 2}, v{10 + i // 2}, s{sT2 if i & 1 else sT}")
    for i in range(4):
        s = SEL[i & 1]
        for k in range(4): a(f"v_and_b32 v{s[k]}, v{xs[i]}, v{MK[k]}")
        wait_for(iw[i])
        if refill: issue_one(False)
        mfma(accX, s, wr[i], i == 0)
    free.extend(wsl)
    issue_upto(early)
    a("v_cmp_gt_u32 vcc, 8, v6")
    for k in range(4): a(f"v_cndmask_b32 v{MK[k]}, 0, v{MK[k]}, vcc")
    a(f"ds_write_b128 v{vPW}, {R(accX)} offset:{L_QP}")
    a(f"s_lshl_b32 s{sT}, s{sW}, 4"); a(f"v_add_u32 v{vPW}, s{sT}, v{vPW}")
    a(f"s_bfe_u32 s{sT}, s{sW}, 0x10001"); a(f"s_lshl_b32 s{sT}, s{sT}, 12"); a(f"s_and_b32 s{sT2}, s{sW}, 1"); a(f"s_lshl_b32 s{sT2}, s{sT2}, 8")
    a(f"s_add_u32 s{sT}, s{sT}, s{sT2}")
    a("v_lshlrev_b32 v7, 2, v0"); a(f"v_add_u32 v7, s{sT}, v7")
    issue_upto(early + pre)
    wait_for(itag)
    barrier()
    t = partB
    for w in range(4): a(f"ds_read2st64_b32 v[{t[2*w]}:{t[2*w+1]}], v7 offset0:{L_QP//256 + 4*w} offset1:{L_QP//256 + 4*w+2}")
    issue_upto(early + pre + post)
    wait_for(itag)
    a(f"s_mov_b32 s{sTAG}, 0x9e3779b1")
    a(f"v_mul_lo_u32 v{vTAG}, v{vTAG}, s{sTAG}"); a(f"v_add_u32 v{vTAG}, 0x7f4a7c15, v{vTAG}")
    a(f"s_bfe_u32 s{sT}, s{sW}, 0x10001"); a(f"s_lshl_b32 s{sT}, s{sT}, 5"); a(f"s_add_u32 s{sT}, s{sT}, s{sJ}")
    a(f"s_lshl_b32 s{sT}, s{sT}, 1"); a(f"s_and_b32 s{sOFF}, s{sX}, 1"); a(f"s_add_u32 s{sT}, s{sT}, s{sOFF}")
    a(f"s_lshl_b32 s{sT}, s{sT}, 2"); a(f"s_lshr_b32 s{sOFF}, s{sX}, 1"); a(f"s_add_u32 s{sT}, s{sT}, s{sOFF}")
    a(f"s_lshl_b32 s{sT}, s{sT}, 10")
    a(f"s_lshl_b32 s{sT2}, s{sT2}, 1"); a(f"s_add_u32 s{sT}, s{sT}, s{sT2}"); a(f"s_add_u32 s{sT}, s{sT}, {WS_Q}")
    a(f"s_cmp_lt_u32 s{sW}, 4"); a(f"s_cselect_b32 s{sT}, s{sT}, {OOB}")
    a("v_lshlrev_b32 v7, 3, v0")
    a("s_waitcnt lgkmcnt(0)")
    tree(t, 8)
    a(f"v_mov_b32 v{t[1]}, v{vTAG}")
    if "noq" not in diag: last_store["i"] = vmem(f"buffer_store_dwordx2 v[{t[0]}:{t[1]}], v7, {SRD('ws')}, s{sT} offen sc1")
    a(f"s_lshl_b32 s{sWQ}, s{sB}, 5"); a(f"s_add_u32 s{sWQ}, s{sWQ}, s{sH}"); a(f"s_lshl_b32 s{sWQ}, s{sWQ}, 3")
    a(f"s_add_u32 s{sWQ}, s{sWQ}, s{sW}"); a(f"s_lshl_b32 s{sWQ}, s{sWQ}, 10"); a(f"s_add_u32 s{sWQ}, s{sWQ}, {WS_Q}")
    if "startprof" not in diag: stamp()
    if warm:
        for n, sb in (("vA", sKA), ("vB", sKB), ("woA", sWO), ("woB", sWO)):
            issue_upto(st["ip"])
            vmem(f"buffer_load_dword v{vDUM}, off, {SRD(n)}, s{sb}")
    issue_upto(qpos + dmin)
    eQ = ("q", 0); rQ = RING0 + 4 * slot[eQ]
    wait_for(vidx[eQ])
    a(f"s_mov_b32 s{sCNT}, 0")
    a.label("L_qchk")
    a(f"v_cmp_ne_u32 vcc, v{rQ+1}, v{vTAG}"); a(f"v_cmp_ne_u32 s[{sMY}:{sMY+1}], v{rQ+3}, v{vTAG}")
    a(f"s_or_b64 vcc, vcc, s[{sMY}:{sMY+1}]")
    a("s_cbranch_scc0 L_qok" if "noq" not in diag else "s_branch L_qok")
    a(qload(rQ))
    a(f"s_add_u32 s{sCNT}, s{sCNT}, 1")
    a(f"s_cmp_lt_u32 s{sCNT}, 0x20000")
    a("s_waitcnt vmcnt(0)")
    a("s_cbranch_scc1 L_qchk")
    a.label("L_qok")
    a(f"v_mov_b32 v{rQ+1}, v{rQ+2}")
    a("v_lshlrev_b32 v7, 3, v0"); a(f"s_lshl_b32 s{sT}, s{sW}, 9"); a(f"v_add_u32 v7, s{sT}, v7")
    a(f"ds_write_b64 v7, v[{rQ}:{rQ+1}] offset:{L_Q}")
    a("v_lshlrev_b32 v7, 5, v6"); a("v_lshl_add_u32 v7, v5, 3, v7")
    barrier()
    release(eQ)
    for w in range(4): a(f"ds_read_b64 v[{partB[2*w]}:{partB[2*w+1]}], v7 offset:{L_Q + (4 + w)*512}")
    for w in range(4): a(f"ds_read_b64 v[{partA[2*w]}:{partA[2*w+1]}], v7 offset:{L_Q + w*512}")
    st["tgt"] = float(st["ip"] - 1) + 1
    issue_upto(int(st["tgt"]))
    a("s_waitcnt lgkmcnt(0)")
    q_finish(partB, qB); q_finish(partA, qA)
    if "padD" in diag:
        a("s_memrealtime s[92:93]"); a("s_waitcnt lgkmcnt(0)")
    if "startprof" not in diag: stamp()

    steps = []
    ready = {"kB": True, "kA": True, "vA": False, "vB": False, "woA": False, "woB": False}
    pending = []; cnt = {n: 0 for n in ready}; tot = {"kB": 64, "vB": 64}
    def push(e):
        steps.append(("c", e)); cnt[e[0]] += 1
        n, i = e
        if n in ("kB", "kA") and i % 16 == 15: steps.append(("rs", n, i // 16))
        if sub and e == ("vB", a_span): ready["woA"] = True
        if cnt[n] != tot.get(n, 16): return
        if n == "kA": steps.append(("op", "maxA")); ready["vA"] = True
        if n in ("vA", "kB") and cnt["vA"] == 16 and cnt["kB"] == 64:
            steps.append(("op", "mid")); ready["vB"] = True; ready["woA"] = not sub

        if n == "woA": steps.append(("op", "yA"))
        if n == "vB": steps.append(("op", "oB")); ready["woB"] = True
        if n == "woB": steps.append(("op", "yB"))
    def drain():
        again = True
        while again:
            again = False
            for e in list(pending):
                if ready[e[0]]:
                    pending.remove(e); push(e); again = True; break
    for e in issue:
        if e[0] == "q": continue
        if ready[e[0]] and not any(p[0] == e[0] for p in pending):
            push(e); drain()
        else: pending.append(e)
    drain(); assert not pending

    YA = qA[0]; ML = qB; YD = partB[8:12]
    def y_exchange(lb, br, dst):
        a(f"s_lshl_b32 s{sRW}, s{sP}, 11"); a(f"s_add_u32 s{sRW}, s{sRW}, {WS_Y + br * 256 * 2048}")
        a(f"ds_write_b128 v{vYW}, {R(accX)} offset:{lb}")
        a(f"ds_write_b128 v{vYW}, {R(accH)} offset:{lb + 1024}")
        barrier()
        u = partB
        for w in range(4): a(f"ds_read2st64_b32 v[{u[2*w]}:{u[2*w+1]}], v{vY} offset0:{lb//256 + 16*w} offset1:{lb//256 + 16*w + 8}")
        if br == 0:
            t = partA
            a("v_mov_b32 v10, 0")
            for k in range(4): a(f"ds_read_b128 v[{t[4*k]}:{t[4*k+3]}], v10 offset:{L_LS + 16*k}")
            bump()
        a("s_waitcnt lgkmcnt(0)")
        tree(u, 8)
        a(f"v_add_u32 v{dst}, 0x800, v{u[0]}")
        a(f"v_bfi_b32 v{dst}, s{sTM}, v{vTAG}, v{dst}")
        if br == 0:
            tree(t[0:8], 8); tree(t[8:16], 8)
            a("v_cmp_gt_u32 vcc, 8, v0")
            a(f"v_cndmask_b32 v{ML[0]}, v{vMB}, v{vMA}, vcc"); a(f"v_cndmask_b32 v{ML[2]}, v{t[8]}, v{t[0]}, vcc")
            a(f"v_mov_b32 v{ML[1]}, v{vTAG}"); a(f"v_mov_b32 v{ML[3]}, v{vTAG}")
    def ml_store():
        if "noml" in diag: return
        a(f"s_lshl_b32 s{sT}, s{sP}, 7"); a(f"s_add_u32 s{sT}, s{sT}, {WS_ML}")
        a(f"s_cmp_eq_u32 s{sW}, 0"); a(f"s_cselect_b32 s{sT}, s{sT}, {OOB}")
        if mlfull:
            a("v_lshrrev_b32 v5, 3, v0"); a("v_lshlrev_b32 v5, 15, v5"); a("v_and_b32 v6, 7, v0"); a("v_lshl_add_u32 v5, v6, 4, v5")
            a(f"v_mov_b32 v6, {OOB}")
            a("v_cmp_gt_u32 vcc, 16, v0"); a("v_cndmask_b32 v5, v6, v5, vcc")
        else:
            a("v_lshlrev_b32 v5, 15, v0"); a(f"v_mov_b32 v6, {OOB}")
            a("v_cmp_gt_u32 vcc, 2, v0"); a("v_cndmask_b32 v5, v6, v5, vcc")
        last_store["i"] = vmem(f"buffer_store_dwordx4 {R(ML)}, v5, {SRD('ws')}, s{sT} offen sc1")
        st["tgt"] += 2; issue_upto(int(st["tgt"]))
    def y_store(br, src):
        if br == 0 and "noya" in diag: return
        last_store["i"] = vmem(f"buffer_store_dword v{src}, v{vY}, {SRD('ws')}, s{sRW} offen sc1")
    MLR = [partA[0:4], partA[4:8]]; vRM, vRY = partA[8], partA[9]
    sRM, sRY = sKA, sWQ
    mli = {}
    BUF = []
    def poll(k, track=False):
        f = vmem if track else a
        f(f"buffer_load_dwordx4 v[{BUF[k][0]}:{BUF[k][0]+3}], v{vRY}, {SRD('ws')}, s{sRY} offen sc1")
        f(f"buffer_load_dwordx4 v[{BUF[k][1]}:{BUF[k][1]+3}], v{vRY}, {SRD('ws')}, s{sRY2} offen sc1")
    def ml_loads():
        for i in range(2):
            if "noml" in diag: mli[i] = 0; continue
            mli[i] = vmem(f"buffer_load_dwordx4 {R(MLR[i])}, v{vRM}, {SRD('ws')}, s{sRM} offen offset:{1024 * i} sc1")
    def red_setup():
        if redsel == 0: a(f"s_mov_b32 s{sRO}, s2")
        else:
            a(f"s_and_b32 s{sRO}, s2, 31"); a(f"s_bfe_u32 s{sT}, s2, 0x10006"); a(f"s_lshl_b32 s{sT}, s{sT}, 5"); a(f"s_or_b32 s{sRO}, s{sRO}, s{sT}")
            a(f"s_and_b32 s{sT}, s{sJ}, 0x15"); a(f"s_bcnt1_i32_b32 s{sT}, s{sT}"); a(f"s_and_b32 s{sT}, s{sT}, 1"); a(f"s_lshl_b32 s{sT}, s{sT}, 6")
            a(f"s_or_b32 s{sRO}, s{sRO}, s{sT}")
            a(f"s_bfe_u32 s{sT}, s{sJ}, 0x10004"); a(f"s_xor_b32 s{sT}, s{sT}, {redsel - 1}"); a(f"s_lshl_b32 s{sT}, s{sT}, 6")
            a(f"s_or_b32 s{sRO}, s{sRO}, s{sT}")
        a("v_lshrrev_b32 v5, 3, v0")
        a(f"s_lshl_b32 s{sT}, s{sW}, 4"); a(f"v_add_u32 v5, s{sT}, v5")
        a("v_and_b32 v6, 7, v0"); a("v_lshlrev_b32 v6, 4, v6")
        a(f"v_lshl_add_u32 v{vRY}, v5, 11, v6")
        a(f"v_lshlrev_b32 v{vRM}, 7, v5")
        a(f"s_lshr_b32 s{sT}, s{sRO}, 4")
        a(f"s_lshl_b32 s{sRY}, s{sT}, 18"); a(f"s_and_b32 s{sT2}, s{sRO}, 15"); a(f"s_lshl_b32 s{sT2}, s{sT2}, 7")
        a(f"s_add_u32 s{sRY}, s{sRY}, s{sT2}")
        a(f"s_lshl_b32 s{sRM}, s{sT}, 14"); a(f"s_add_u32 s{sRM}, s{sRM}, {WS_ML}")
        a(f"s_cmp_lt_u32 s{sRO}, 64"); a(f"s_cselect_b32 s{sRM}, s{sRM}, {OOB}")
        a(f"s_cselect_b32 s{sRY}, s{sRY}, {OOB}")
        a(f"s_add_u32 s{sRY2}, s{sRY}, {8 * 2048}")
        if warmout:
            a(f"s_cselect_b32 s{sT}, 0, {OOB}")
            vmem(f"buffer_load_dword v{vDUM}, off, {SRD('out')}, s{sT}")
        if not mllate: ml_loads()
        else: mli[0] = mli[1] = 0
    apub = {"have": False, "done": False}
    nxt = {}

    inmain["v"] = True; inmain0["v"] = True
    for s in steps:
        if s[0] == "c":
            e = s[1]; n, i = e
            if not (sub and n in ("woA", "woB")):
                st["tgt"] = max(pos[e] + dmin + curF() - F, st["tgt"] + decay)
                issue_upto(int(st["tgt"]))
            if wtail and Fend and n == "vB" and st["ip"] > pos[("vB", 63)]:
                st["tgt"] = max(st["tgt"], pos[e] + Fend - 1); issue_upto(int(st["tgt"]))
            if e == ("vB", 63):
                wait_for(vidx[e])
                while st["ip"] < len(issue): issue_one(False)
            assert e in slot, ("deadlock", e)
            if apub["have"] and not mli and st["ip"] >= len(issue) - mlpos: red_setup()
            if apub["have"] and not apub["done"] and st["ip"] >= len(issue) - apos:
                if mllate: ml_store()
                y_store(0, YA); apub["done"] = True
            if n == "kB": klike(e, qB, partB[i % 16])
            elif n == "kA": klike(e, qA, partA[i])
            elif n == "vA": vlike(e, accX, PA, i, i == 0)
            elif n == "vB": vlike(e, accB, PB[i // 16], i % 16, i == 0)
            elif sub and n in ("woA", "woB"):
                if i == 15:
                    if n == "woA":
                        st["tgt"] += subburst; issue_upto(int(st["tgt"]))
                    wait_for(vidx[e])
                    a(f"s_call_b64 s[{sRET}:{sRET+1}], L_proj")
                    a.hist = []
                    for k in range(16): release((n, k))
            else: wlike(e, i)
        elif s[0] == "rs":
            if rsb:
                st["tgt"] += rsb; issue_upto(int(st["tgt"]))
            if s[1] == "kB": reduce_scatter16(partB, PB[s[2]])
            else: reduce_scatter16(partA, PA)
        else:
            op = s[1]
            if op == "maxA":
                max_write(vMA, [PA], 0)
                barrier()
                max_read(partA, 0)
                bump()
                a("s_waitcnt lgkmcnt(0)")
                max_finish(vMA, partA, [PA], 0)
            elif op == "mid":
                max_write(vMB, PB, 32)
                part_write(accX, L_OA)
                barrier()
                max_read(partA, 32)
                if not sub: o_read(L_OA, partB)
                bump()
                a("s_waitcnt lgkmcnt(0)")
                max_finish(vMB, partA, PB, 32)
                if not sub: o_finish(partB)
                stamp()
            elif op == "yA":
                if sub:
                    a(f"v_mov_b32 v{YA[0]}, v{YD[0]}"); a(f"v_mov_b32 v{YA[2]}, v{YD[2]}")
                    a(f"v_mov_b32 v{YA[1]}, v{vTAG}"); a(f"v_mov_b32 v{YA[3]}, v{vTAG}")
                    a(f"s_lshl_b32 s{sRW}, s{sP}, 12")
                    t = partA
                    a("v_mov_b32 v10, 0")
                    for k in range(4): a(f"ds_read_b128 v[{t[4*k]}:{t[4*k+3]}], v10 offset:{L_LS + 16*k}")
                    a("s_waitcnt lgkmcnt(0)")
                    tree(t[0:8], 8); tree(t[8:16], 8)
                    a("v_cmp_eq_u32 vcc, 0, v0")
                    a(f"v_cndmask_b32 v{ML[0]}, v{vMB}, v{vMA}, vcc"); a(f"v_cndmask_b32 v{ML[2]}, v{t[8]}, v{t[0]}, vcc")
                    a(f"v_mov_b32 v{ML[1]}, v{vTAG}"); a(f"v_mov_b32 v{ML[3]}, v{vTAG}")
                else: y_exchange(L_YA, 0, YA)
                if not mllate: ml_store()
                apub["have"] = True
            elif op == "oB":
                stamp()
                part_write(accB, L_OA if sub else L_OB)
                if sub:
                    a(f"s_add_u32 s{sRW}, s{sRW}, {256 * 4096}")
                    stamp()
                else:
                    barrier()
                    stamp()
                    o_read(L_OB, partB)
                    for k in range(nb): BUF.append([RING0 + 4 * free.pop(), RING0 + 4 * free.pop()])
                    if earlypoll:
                        ml_loads(); poll(0, True)
                    a("s_waitcnt lgkmcnt(0)")
                    o_finish(partB)
            elif op == "yB":
                if sub: y_store(1, YD)
                else:
                    y_exchange(L_YB, 1, accB[0]); y_store(1, accB[0])
                stamp()
    inmain["v"] = False
    assert st["ip"] == len(issue) and apub["done"]

    if "nored" in diag: a("s_branch L_fin")
    a(f"s_cmp_ge_u32 s{sRO}, 64")
    a("s_cbranch_scc1 L_fin")
    YF = list(range(44, 52))
    def evalbuf(k):
        B = [BUF[k][0] + j for j in range(4)] + [BUF[k][1] + j for j in range(4)]
        a(f"v_or3_b32 v7, v{B[0]}, v{B[1]}, v{B[2]}"); a(f"v_or3_b32 v7, v7, v{B[3]}, v{B[4]}"); a(f"v_or3_b32 v7, v7, v{B[5]}, v{B[6]}")
        a(f"v_bitop3_b32 v8, v{B[0]}, v{B[1]}, v{B[2]} bitop3:0x80"); a(f"v_bitop3_b32 v8, v8, v{B[3]}, v{B[4]} bitop3:0x80"); a(f"v_bitop3_b32 v8, v8, v{B[5]}, v{B[6]} bitop3:0x80")
        a(f"v_or_b32 v7, v7, v{B[7]}"); a(f"v_and_b32 v8, v8, v{B[7]}")
        a(f"v_and_b32 v7, s{sTM}, v7"); a(f"v_and_b32 v8, s{sTM}, v8")
        a("v_cmp_eq_u32 vcc, v7, v21"); a(f"v_cmp_eq_u32 s[{sMM}:{sMM+1}], v8, v21")
        a(f"s_and_b64 vcc, vcc, s[{sMM}:{sMM+1}]")
        a(f"s_and_b64 exec, vcc, s[{sMY}:{sMY+1}]")
        for j in range(8): a(f"v_and_b32 v{YF[j]}, s{sWO}, v{B[j]}")
        a(f"s_andn2_b64 s[{sMY}:{sMY+1}], s[{sMY}:{sMY+1}], vcc")
    a(f"s_mov_b32 s{sCNT}, 0")
    a(f"s_mov_b64 s[{sMY}:{sMY+1}], -1")
    a(f"s_not_b32 s{sWO}, s{sTM}")
    a(f"v_and_b32 v21, s{sTM}, v{vTAG}")
    assert earlypoll
    a("s_waitcnt vmcnt(1)")
    evalbuf(0)
    a("s_cbranch_scc0 L_nopoll0")
    a(f"s_mov_b64 exec, s[{sMY}:{sMY+1}]")
    poll(0)
    a.label("L_nopoll0")
    a("s_mov_b64 exec, -1")
    def mlcmp():
        a(f"v_xor_b32 v7, v{MLR[0][1]}, v{vTAG}"); a(f"v_xor_b32 v8, v{MLR[0][3]}, v{vTAG}")
        a(f"v_xor_b32 v9, v{MLR[1][1]}, v{vTAG}"); a(f"v_xor_b32 v10, v{MLR[1][3]}, v{vTAG}")
        a("v_or3_b32 v7, v7, v8, v9"); a("v_or_b32 v7, v7, v10")
        a("v_cmp_ne_u32 vcc, 0, v7"); a("s_cmp_lg_u64 vcc, 0")
    mlcmp()
    a("s_cbranch_scc0 L_mlok")
    a.label("L_mlchk")
    for i in range(2): a(f"buffer_load_dwordx4 {R(MLR[i])}, v{vRM}, {SRD('ws')}, s{sRM} offen offset:{1024 * i} sc1")
    a(f"s_add_u32 s{sCNT}, s{sCNT}, 1")
    a("s_waitcnt vmcnt(0)")
    a(f"s_cmp_ge_u32 s{sCNT}, 0x20000")
    a("s_cbranch_scc1 L_mlok")
    mlcmp()
    a("s_cbranch_scc1 L_mlchk")
    a.label("L_mlok")
    W = [18, 19]; T = [7, 8]; U = [9, 10]
    for i in range(2): a(f"v_max_f32_dpp v{T[i]}, v{MLR[i][0]}, v{MLR[i][0]} row_ror:8 {DPPF}")
    for i in range(2): a(f"v_mov_b32 v{U[i]}, v{T[i]}")
    for i in range(2): a(f"v_permlane16_swap_b32 v{T[i]}, v{U[i]}")
    for i in range(2): a(f"v_max_f32 v{T[i]}, v{T[i]}, v{U[i]}")
    for i in range(2): a(f"v_sub_f32 v{T[i]}, v{MLR[i][0]}, v{T[i]}")
    for i in range(2): a(f"v_mul_f32 v{T[i]}, s{sL2E}, v{T[i]}")
    for i in range(2): a(f"v_exp_f32 v{W[i]}, v{T[i]}")
    for i in range(2): a(f"v_mul_f32 v{T[i]}, v{W[i]}, v{MLR[i][2]}")
    for i in range(2): a(f"v_add_f32_dpp v{T[i]}, v{T[i]}, v{T[i]} row_ror:8 {DPPF}")
    for i in range(2): a(f"v_mov_b32 v{U[i]}, v{T[i]}")
    for i in range(2): a(f"v_permlane16_swap_b32 v{T[i]}, v{U[i]}")
    for i in range(2): a(f"v_add_f32 v{T[i]}, v{T[i]}, v{U[i]}")
    for i in range(2): a(f"v_rcp_f32 v{T[i]}, v{T[i]}")
    for i in range(2): a(f"v_mul_f32 v{W[i]}, v{W[i]}, v{T[i]}")
    a("v_and_b32 v11, 7, v0"); a("v_lshlrev_b32 v11, 2, v11")
    a("v_bfe_u32 v7, v0, 3, 1"); a("v_lshl_add_u32 v11, v7, 1, v11")
    a("v_bfe_u32 v7, v0, 4, 1"); a("v_add_u32 v11, v7, v11"); a("v_lshlrev_b32 v11, 2, v11")
    a(f"s_lshl_b32 s{sT2}, s{sW}, 7"); a(f"v_add_u32 v11, s{sT2}, v11")
    a("v_and_b32 v16, 15, v0"); a("v_lshlrev_b32 v17, 3, v16")
    a("v_and_b32 v7, 1, v0"); a("v_lshlrev_b32 v7, 2, v7"); a("v_lshrrev_b32 v16, 1, v16"); a("v_lshl_add_u32 v16, v16, 4, v7")
    a(f"s_bfe_u32 s{sKB}, s{sRO}, 0x10004"); a(f"s_lshl_b32 s{sKB}, s{sKB}, 11")
    a(f"s_lshr_b32 s{sT2}, s{sRO}, 5"); a(f"s_lshl_b32 s{sT2}, s{sT2}, 10"); a(f"s_add_u32 s{sKB}, s{sKB}, s{sT2}")
    a(f"s_and_b32 s{sT2}, s{sRO}, 7"); a(f"s_lshl_b32 s{sT2}, s{sT2}, 7"); a(f"s_add_u32 s{sKB}, s{sKB}, s{sT2}")
    a(f"s_and_b32 s{sT2}, s{sRO}, 8"); a(f"s_add_u32 s{sKB}, s{sKB}, s{sT2}")
    a(f"s_cmp_eq_u64 s[{sMY}:{sMY+1}], 0")
    a("s_cbranch_scc1 L_poll_ok")
    if nb > 1:
        a(f"s_mov_b64 exec, s[{sMY}:{sMY+1}]")
        for k in range(1, nb): poll(k)
        a("s_mov_b64 exec, -1")
    a.label("L_poll")
    for k in range(nb):
        a(f"s_waitcnt vmcnt({2 * (nb - 1)})")
        evalbuf(k)
        a("s_cbranch_scc0 L_poll_ok")
        a(f"s_mov_b64 exec, s[{sMY}:{sMY+1}]")
        poll(k)
        a("s_mov_b64 exec, -1")
    a(f"s_add_u32 s{sCNT}, s{sCNT}, 1")
    a(f"s_cmp_lt_u32 s{sCNT}, 0x20000")
    a("s_cbranch_scc1 L_poll")
    a.label("L_poll_ok")
    a("s_mov_b64 exec, -1")
    if "redprof" in diag:
        a(f"s_memrealtime s[{sST}:{sST+1}]"); a("s_waitcnt lgkmcnt(0)")
        a(f"v_writelane_b32 v{vSTAMP}, s{sST}, 1")
        a(f"v_readlane_b32 s{sT2}, v{vSTAMP}, 0"); a(f"s_add_u32 s{sT2}, s{sT2}, s{sCNT}"); a(f"v_writelane_b32 v{vSTAMP}, s{sT2}, 2")
    y = YF
    for k in range(4): a(f"v_mul_f32 v{y[k]}, v{W[0]}, v{y[k]}")
    for k in range(4): a(f"v_fmac_f32 v{y[k]}, v{W[1]}, v{y[k+4]}")
    for k in range(2): a(f"v_add_f32_dpp v{y[k]}, v{y[k]}, v{y[k]} row_ror:8 row_mask:0xf bank_mask:0x3")
    for k in range(2): a(f"v_add_f32_dpp v{y[k]}, v{y[k+2]}, v{y[k+2]} row_ror:8 row_mask:0xf bank_mask:0xc")
    a(f"v_permlane16_swap_b32 v{y[0]}, v{y[1]}")
    a(f"v_add_f32 v{y[0]}, v{y[0]}, v{y[1]}")
    a(f"v_mov_b32 v{y[1]}, v{y[0]}")
    a(f"v_permlane32_swap_b32 v{y[0]}, v{y[1]}")
    a(f"v_add_f32 v{y[0]}, v{y[0]}, v{y[1]}")
    a(f"ds_write_b32 v11, v{y[0]} offset:{L_RED}")
    barrier()
    a(f"s_cmp_lg_u32 s{sW}, 0")
    a("s_cbranch_scc1 L_fin")
    t = partA
    for w in range(8): a(f"ds_read_b64 v[{t[2*w]}:{t[2*w+1]}], v17 offset:{L_RED + w*128}")
    a("s_waitcnt lgkmcnt(0)")
    tree(t, 16, 2)
    a(f"v_cvt_pk_bf16_f32 v7, v{t[0]}, v{t[1]}")
    a("s_mov_b64 exec, 0xffff")
    a(f"buffer_store_dword v7, v16, {SRD('out')}, s{sKB} offen {outpol}")
    a(f"s_cmp_lg_u32 s{sRO}, 32")
    a("s_cbranch_scc1 L_fin")
    a("s_mov_b64 exec, 1")
    a(f"s_mov_b32 s{sT}, {hex(WS_EP)}")
    a(f"buffer_store_dword v{vTAG}, v16, {SRD('ws')}, s{sT} offen sc1")
    a.label("L_fin")
    if "pad" in diag:
        if "padx" in diag:
            a("s_getreg_b32 s80, hwreg(HW_REG_XCC_ID)"); a("s_and_b32 s80, s80, 15"); a("s_and_b32 s81, s2, 7")
            a("s_cmp_eq_u32 s80, s81"); a("s_cbranch_scc1 L_padend")
        import re as _re
        mm = _re.search(r"padw(\d+)", diag)
        if mm:
            a(f"s_cmp_lg_u32 s2, {mm.group(1)}"); a("s_cbranch_scc1 L_padend")
        a.label("L_pad")
        a("s_memrealtime s[80:81]"); a("s_waitcnt lgkmcnt(0)")
        a("s_sub_u32 s80, s80, s92"); a(f"s_cmp_lt_u32 s80, {20000 if 'pad2' in diag else 10000}"); a("s_cbranch_scc1 L_pad")
        a.label("L_padend")
    if stamps:
        a("s_mov_b64 exec, -1")
        stamp()
        if "tailprof" in diag:
            a("s_memtime s[88:89]"); a("s_waitcnt lgkmcnt(0)")
            for k in range(7): a(f"v_writelane_b32 v{vSTAMP}, s{76 + 2*k}, {k}")
            a(f"v_writelane_b32 v{vSTAMP}, s90, 7")
        assert stampn["n"] == 8, stampn
        a(f"s_lshl_b32 s{sT}, s2, 3"); a(f"s_add_u32 s{sT}, s{sT}, s{sW}"); a(f"s_lshl_b32 s{sT}, s{sT}, 5")
        a(f"s_add_u32 s{sT}, s{sT}, {WS_ST}")
        a("v_lshlrev_b32 v5, 2, v0")
        a("s_mov_b64 exec, 0xff")
        a(f"buffer_store_dword v{vSTAMP}, v5, {SRD('ws')}, s{sT} offen")
        if "dbgst" in diag:
            a("s_load_dwordx2 s[76:77], s[0:1], 88"); a("s_mov_b32 s78, 256"); a("s_mov_b32 s79, 0x20000")
            a(f"s_cmp_eq_u32 s2, 64"); a(f"s_cselect_b32 s{sT}, 0, {OOB}")
            a(f"s_cmp_eq_u32 s2, 205"); a(f"s_cselect_b32 s{sT}, 32, s{sT}")
            a(f"s_cmp_eq_u32 s{sW}, 0"); a(f"s_cselect_b32 s{sT}, s{sT}, {OOB}")
            a(f"v_readlane_b32 s{sT2}, v{vSTAMP}, 0")
            a(f"v_subrev_u32 v{vSTAMP}, s{sT2}, v{vSTAMP}")
            a("s_waitcnt lgkmcnt(0)")
            a(f"buffer_store_dword v{vSTAMP}, v5, s[76:79], s{sT} offen")
    a.label("L_end")
    a("s_endpgm")
    if sub:
        a.label("L_proj")
        a.hist = []
        tp = "tailprof" in diag
        if tp: a("s_memtime s[76:77]")
        barrier()
        if tp: a("s_memtime s[78:79]")
        o_read(L_OA, partB)
        a(f"v_mov_b32 v{YD[1]}, v{vTAG}"); a(f"v_mov_b32 v{YD[3]}, v{vTAG}")
        a("s_waitcnt lgkmcnt(0)")
        if tp: a("s_memtime s[80:81]")
        o_finish(partB)
        selk["k"] = 0
        cur = sel_bcast(OX, 0)
        for i in range(16):
            nx = sel_bcast(OX, i + 1) if i < 15 else None
            mfma(accX, cur, RING0 + 4 * (WB0 + i), i == 0); cur = nx
        if tp: a("s_memtime s[82:83]")
        part_write(accX, L_YA)
        barrier()
        if tp: a("s_memtime s[84:85]")
        a(f"ds_read_b64 v[6:7], v{vYR} offset:{L_YA}")
        a(f"ds_read_b64 v[8:9], v{vYR} offset:{L_YA + 2048}")
        a("s_waitcnt lgkmcnt(0)")
        a(f"v_add_f32 v{YD[0]}, v6, v8"); a(f"v_add_f32 v{YD[2]}, v7, v9")
        if tp: a("s_memtime s[86:87]")
        a(f"s_setpc_b64 s[{sRET}:{sRET+1}]")
    a.raw('.section .rodata,"a"'); a.raw(".p2align 6"); a.raw(f".amdhsa_kernel {NAME}")
    a.raw("  .amdhsa_next_free_vgpr 256"); a.raw(f"  .amdhsa_next_free_sgpr {NSGPR}"); a.raw("  .amdhsa_accum_offset 256")
    a.raw("  .amdhsa_group_segment_fixed_size 0"); a.raw("  .amdhsa_kernarg_size 104"); a.raw("  .amdhsa_user_sgpr_count 2")
    a.raw("  .amdhsa_user_sgpr_kernarg_segment_ptr 1"); a.raw("  .amdhsa_system_sgpr_workgroup_id_x 1"); a.raw(".end_amdhsa_kernel")
    return a.text()

if __name__ == "__main__":
    out = sys.argv[1]
    kw = json.loads(sys.argv[2]) if len(sys.argv) > 2 else {}
    open(out, "w").write(gen(**kw))
```
